```python
import torch

def _softmax(x, axis=-1):
    return torch.softmax(x, dim=axis)
def _gelu(x):
    return torch.nn.functional.gelu(x, approximate="tanh")
def _silu(x):
    return torch.nn.functional.silu(x)
def _sigmoid(x):
    return torch.sigmoid(x)
def _layernorm(x, axis=-1, eps=1e-5):
    m = x.mean(dim=axis, keepdim=True)
    v = x.var(dim=axis, keepdim=True, unbiased=False)
    return (x - m) / torch.sqrt(v + eps)
def _scatter_add(tgt, idx, src, axis=0):
    return tgt.clone().index_add_(axis, idx, src)
def _segment_sum(src, seg, n):
    out = torch.zeros((n,) + src.shape[1:], dtype=src.dtype)
    return out.index_add_(0, seg, src)
def _pad(x, pw):
    flat = tuple(v for pair in reversed(pw) for v in pair)
    return torch.nn.functional.pad(x, flat)

kernel_name = 'parallel_sum__spectral_gfnet__mixer_token_mlp__prompt'

def setup_inputs():

    _w = (lambda a: (lambda t: t.to(torch.bfloat16) if t.is_floating_point() else t)(torch.as_tensor(a)))
    def _A_setup():
        B, S, D = 1, 2048, 576
        Df = D // 2 + 1
        return {
            "x": _w((lambda *s: torch.randn(*s, dtype=torch.bfloat16) * 0.05)(B, S, D)),
            "w_r": _w((lambda *s: torch.randn(*s, dtype=torch.bfloat16) * 3.2)(S, Df) * 0.02),
            "w_i": _w((lambda *s: torch.randn(*s, dtype=torch.bfloat16) * 3.2)(S, Df) * 0.02),
        }
    _A_in = _A_setup()

    def _B_setup():
        B, S, D, F = 1, 2048, 576, 4608
        return {
            "x": _w((lambda *s: torch.randn(*s, dtype=torch.bfloat16) * 0.05)(B, S, D)),
            "w1": _w((lambda *s: torch.randn(*s, dtype=torch.bfloat16) * 0.4)(S, F) * (S ** -0.5)),
            "b1": _w((lambda *s: torch.randn(*s, dtype=torch.bfloat16) * 3.2)(F) * 0.02),
            "w2": _w((lambda *s: torch.randn(*s, dtype=torch.bfloat16) * 0.8)(F, S) * (F ** -0.5)),
            "b2": _w((lambda *s: torch.randn(*s, dtype=torch.bfloat16) * 3.2)(S) * 0.02),
        }
    _B_in = _B_setup()

    return {
        "A_x": _A_in["x"],
        "A_w_r": _A_in["w_r"],
        "A_w_i": _A_in["w_i"],
        "B_x": _B_in["x"],
        "B_w1": _B_in["w1"],
        "B_b1": _B_in["b1"],
        "B_w2": _B_in["w2"],
        "B_b2": _B_in["b2"],
    }

def reference(A_x, A_w_r, A_w_i, B_x, B_w1, B_b1, B_w2, B_b2):
    def _A_ref(x, w_r, w_i):
        B, S, D = x.shape
        X = (lambda x, axes=(-2,-1): torch.fft.rfft2(x.float(), dim=axes))(x, axes=(-2, -1))
        W = w_r + 1j * w_i
        X = X * W
        y = (lambda x, s, axes=(-2,-1): torch.fft.irfft2(x, s=s, dim=axes).to(torch.bfloat16))(X, (S, D), axes=(-2, -1))
        return y

    def _B_ref(x, w1, b1, w2, b2):
        B, S, D = x.shape
        h = _layernorm(x, axis=-1)
        u = torch.einsum("bsd,sf->bdf", h, w1) + b1
        u = _gelu(u)
        y = torch.einsum("bdf,fs->bds", u, w2) + b2
        return (lambda x, *d: x.permute(*d))(y, 0, 2, 1)

    x = A_x
    xn = _layernorm(x, axis=-1)
    return x + _A_ref(xn, A_w_r, A_w_i) + _B_ref(xn, B_w1, B_b1, B_w2, B_b2)
```

```python
import math, struct
def f32bits(x):
    return struct.unpack("<I", struct.pack("<f", x))[0]
def lit(x):
    return "0x%08x" % f32bits(x)

class Pool:
    def __init__(self, lo, hi):
        self.free = list(range(lo, hi))
        self.lo, self.hi = lo, hi
        self.maxused = lo
    def alloc(self):
        r = self.free.pop(0)
        self.maxused = max(self.maxused, r)
        return r
    def alloc_block(self, n, align=2):
        fs = set(self.free)
        for r in sorted(self.free):
            if r % align == 0 and all((r + i) in fs for i in range(n)):
                for i in range(n): self.free.remove(r + i)
                self.maxused = max(self.maxused, r + n - 1)
                return r
        raise RuntimeError("no block")
    def release(self, r):
        assert r not in self.free, r
        self.free.append(r); self.free.sort()
    def release_block(self, r, n):
        for i in range(n): self.release(r + i)

class FG:
    def __init__(self, a, pool):
        self.a = a; self.p = pool
    def fr(self, v):
        self.p.release(v[0])
    def frc(self, c):
        self.fr(c[0]); self.fr(c[1])
    def add(self, x, y, dst=None):
        rx, sx = x; ry, sy = y
        d = self.p.alloc() if dst is None else dst
        a = self.a
        if sx > 0 and sy > 0: a(f"v_add_f32 v{d}, v{rx}, v{ry}"); return (d, 1)
        if sx > 0 and sy < 0: a(f"v_sub_f32 v{d}, v{rx}, v{ry}"); return (d, 1)
        if sx < 0 and sy > 0: a(f"v_sub_f32 v{d}, v{ry}, v{rx}"); return (d, 1)
        if dst is None:
            a(f"v_add_f32 v{d}, v{rx}, v{ry}"); return (d, -1)
        a(f"v_add_f32 v{d}, -v{rx}, -v{ry}"); return (d, 1)
    def sub(self, x, y, dst=None):
        return self.add(x, (y[0], -y[1]), dst)
    def mulc(self, x, c, dst=None):
        d = self.p.alloc() if dst is None else dst
        self.a(f"v_mul_f32 v{d}, {lit(c * x[1])}, v{x[0]}")
        return (d, 1)
    def fmac(self, x, c, y, dst=None):
        d = self.p.alloc() if dst is None else dst
        if y[1] > 0:
            self.a(f"v_fmamk_f32 v{d}, v{x[0]}, {lit(c * x[1])}, v{y[0]}"); return (d, 1)
        if dst is None:
            self.a(f"v_fmamk_f32 v{d}, v{x[0]}, {lit(-c * x[1])}, v{y[0]}"); return (d, -1)
        t = self.p.alloc()
        self.a(f"v_mul_f32 v{t}, {lit(c * x[1])}, v{x[0]}")
        self.a(f"v_sub_f32 v{d}, v{t}, v{y[0]}")
        self.p.release(t)
        return (d, 1)
    def mov(self, x, dst):
        if x[1] > 0:
            if x[0] != dst: self.a(f"v_mov_b32 v{dst}, v{x[0]}")
        else:
            self.a(f"v_xor_b32 v{dst}, 0x80000000, v{x[0]}")
        return (dst, 1)
    def cadd(self, x, y, dst=None):
        return (self.add(x[0], y[0], None if dst is None else dst), self.add(x[1], y[1], None if dst is None else dst + 1))
    def csub(self, x, y, dst=None):
        return (self.sub(x[0], y[0], None if dst is None else dst), self.sub(x[1], y[1], None if dst is None else dst + 1))
    def muli(self, x, s):
        return ((x[1][0], -s * x[1][1]), (x[0][0], s * x[0][1]))
    def cmulc(self, x, wr, wi, dst=None, free=True):
        eps = 1e-12
        if abs(wi) < eps and abs(wr - 1) < eps: r = x
        elif abs(wi) < eps and abs(wr + 1) < eps: r = ((x[0][0], -x[0][1]), (x[1][0], -x[1][1]))
        elif abs(wr) < eps and abs(wi - 1) < eps: r = self.muli(x, 1)
        elif abs(wr) < eps and abs(wi + 1) < eps: r = self.muli(x, -1)
        else:
            t = self.mulc(x[0], wr)
            re = self.fmac(x[1], -wi, t, None if dst is None else dst)
            self.fr(t)
            u = self.mulc(x[0], wi)
            im = self.fmac(x[1], wr, u, None if dst is None else dst + 1)
            self.fr(u)
            if free: self.frc(x)
            return (re, im)
        if dst is not None:
            o = (self.mov(r[0], dst), self.mov(r[1], dst + 1))
            if free: self.frc(x)
            return o
        return r
    def cmul(self, x, wr_reg, wi_reg, conj=False, dst=None, free=True):
        (A, sa), (B, sb) = x
        sd = -1 if conj else 1
        t = self.p.alloc()
        dre = self.p.alloc() if dst is None else dst
        dim = self.p.alloc() if dst is None else dst + 1
        def sg(s): return "-" if s < 0 else ""
        a = self.a
        a(f"v_mul_f32 v{t}, v{A}, v{wr_reg}")
        a(f"v_fma_f32 v{dre}, {sg(-sb*sd)}v{B}, v{wi_reg}, {sg(sa)}v{t}")
        a(f"v_mul_f32 v{t}, v{A}, v{wi_reg}")
        a(f"v_fma_f32 v{dim}, {sg(sb)}v{B}, v{wr_reg}, {sg(sa*sd)}v{t}")
        self.p.release(t)
        if free: self.frc(x)
        return ((dre, 1), (dim, 1))
    def dft(self, xs, sgn, dsts=None):
        n = len(xs)
        D = (lambda k: None) if dsts is None else (lambda k: dsts[k])
        if n == 1:
            if dsts is None: return xs
            o = (self.mov(xs[0][0], dsts[0]), self.mov(xs[0][1], dsts[0] + 1)); self.frc(xs[0]); return [o]
        if n == 2:
            o0 = self.cadd(xs[0], xs[1], D(0)); o1 = self.csub(xs[0], xs[1], D(1))
            self.frc(xs[0]); self.frc(xs[1])
            return [o0, o1]
        if n == 3:
            a0, b0, c0 = xs
            s = self.cadd(b0, c0); d = self.csub(b0, c0)
            self.frc(b0); self.frc(c0)
            X0 = self.cadd(a0, s, D(0))
            t = (self.fmac(s[0], -0.5, a0[0]), self.fmac(s[1], -0.5, a0[1]))
            self.frc(s); self.frc(a0)
            h = math.sqrt(3) / 2 * sgn
            X1 = (self.fmac(d[1], -h, t[0], D(1)), self.fmac(d[0], h, t[1], None if dsts is None else dsts[1] + 1))
            X2 = (self.fmac(d[1], h, t[0], D(2)), self.fmac(d[0], -h, t[1], None if dsts is None else dsts[2] + 1))
            self.frc(d); self.frc(t)
            return [X0, X1, X2]
        if n == 4:
            a0, a1, a2, a3 = xs
            s02 = self.cadd(a0, a2); d02 = self.csub(a0, a2)
            s13 = self.cadd(a1, a3); d13 = self.csub(a1, a3)
            for x in xs: self.frc(x)
            d13i = self.muli(d13, sgn)
            X0 = self.cadd(s02, s13, D(0)); X2 = self.csub(s02, s13, D(2))
            X1 = self.cadd(d02, d13i, D(1)); X3 = self.csub(d02, d13i, D(3))
            for x in (s02, s13, d02, d13): self.frc(x)
            return [X0, X1, X2, X3]
        fac = {8: (2, 4), 16: (4, 4), 9: (3, 3), 32: (4, 8), 6: (2, 3), 12: (3, 4)}[n]
        N1, N2 = fac
        Y = []
        for i2 in range(N2):
            y = self.dft([xs[N2 * i1 + i2] for i1 in range(N1)], sgn)
            row = []
            for k1 in range(N1):
                ang = sgn * 2 * math.pi * i2 * k1 / n
                row.append(self.cmulc(y[k1], math.cos(ang), math.sin(ang)))
            Y.append(row)
        out = [None] * n
        for k1 in range(N1):
            ks = [k1 + N1 * k2 for k2 in range(N2)]
            z = self.dft([Y[i2][k1] for i2 in range(N2)], sgn, None if dsts is None else [dsts[k] for k in ks])
            for k2 in range(N2): out[ks[k2]] = z[k2]
        return out
```

```python
import math, sys
from fftlib import Pool, FG

S, D, F = 2048, 576, 4608
DF = 289
HT_OFF = 0;                 HT_SZ = 256 * 576 * 16
U_OFF = 0x400000;           U_SZ = 576 * 576 * 16
PART_OFF = 0x1000000;       PART_SZ = 4 * 2048 * 576 * 4
PT_OFF = 0x3000000;         PT_SZ = 289 * 2048 * 8
WT_OFF = 0x3800000;         WT_SZ = 289 * 2048 * 4

class Asm:
    def __init__(self):
        self.lines = []
        self.lab = 0
    def __call__(self, s):
        for l in s.strip("\n").split("\n"):
            self.lines.append("    " + l.strip())
    def label(self, name):
        self.lines.append(name + ":")
    def newlabel(self, p="L"):
        self.lab += 1
        return f"{p}_{self.lab}"
    def raw(self, s):
        self.lines.append(s)
    def text(self):
        return "\n".join(self.lines) + "\n"

def f32bits(x):
    import struct
    return struct.unpack("<I", struct.pack("<f", x))[0]
def fl(x):
    return "0x%08x" % f32bits(x)

def srd(a, sd, sbase, off, size):
    if off:
        a(f"s_add_u32 s{sd}, s{sbase}, {off}")
        a(f"s_addc_u32 s{sd+1}, s{sbase+1}, 0")
    else:
        a(f"s_mov_b32 s{sd}, s{sbase}")
        a(f"s_mov_b32 s{sd+1}, s{sbase+1}")
    a(f"s_mov_b32 s{sd+2}, {size}")
    a(f"s_mov_b32 s{sd+3}, 0x00020000")

def kernel_begin(a, name):
    a.raw(f".globl {name}")
    a.raw(".p2align 8")
    a.raw(f".type {name},@function")
    a.label(name)

def kd(a, name, vgpr, sgpr=102):
    acc = (vgpr + 3) // 4 * 4
    a.raw(".p2align 6")
    a.raw(f".amdhsa_kernel {name}")
    a.raw(f"  .amdhsa_next_free_vgpr {vgpr}")
    a.raw(f"  .amdhsa_next_free_sgpr {sgpr}")
    a.raw(f"  .amdhsa_accum_offset {acc}")
    a.raw("  .amdhsa_group_segment_fixed_size 0")
    a.raw("  .amdhsa_kernarg_size 88")
    a.raw("  .amdhsa_user_sgpr_count 2")
    a.raw("  .amdhsa_user_sgpr_kernarg_segment_ptr 1")
    a.raw("  .amdhsa_system_sgpr_workgroup_id_x 1")
    a.raw(".end_amdhsa_kernel")

def wave_reduce(a, vregs, sregs):
    for ctrl in ["row_shr:1", "row_shr:2", "row_shr:4", "row_shr:8"]:
        for v in vregs:
            a(f"v_add_f32_dpp v{v}, v{v}, v{v} {ctrl} row_mask:0xf bank_mask:0xf bound_ctrl:0")
        if len(vregs) < 3:
            a("s_nop 1")
    for v in vregs:
        a(f"v_add_f32_dpp v{v}, v{v}, v{v} row_bcast:15 row_mask:0xa bank_mask:0xf")
    if len(vregs) < 3:
        a("s_nop 1")
    for v in vregs:
        a(f"v_add_f32_dpp v{v}, v{v}, v{v} row_bcast:31 row_mask:0xc bank_mask:0xf")
    a("s_nop 1")
    for v, s in zip(vregs, sregs):
        a(f"v_readlane_b32 s{s}, v{v}, 63")

def round_bf16_pair(a, va, vb, vt):
    a(f"v_cvt_pk_bf16_f32 v{vt}, v{va}, v{vb}")
    a(f"v_lshlrev_b32 v{va}, 16, v{vt}")
    a(f"v_and_b32 v{vb}, 0xffff0000, v{vt}")

def layernorm_pair(a, xa, xb, oa, ob, t0, sbase):
    T = [t0 + i for i in range(12)]
    s0, s1, s2, s3 = sbase, sbase + 1, sbase + 2, sbase + 3
    a(f"v_add_f32 v{T[0]}, v{xa[0]}, v{xa[1]}")
    a(f"v_add_f32 v{T[1]}, v{xb[0]}, v{xb[1]}")
    for i in range(2, 9):
        a(f"v_add_f32 v{T[0]}, v{T[0]}, v{xa[i]}")
        a(f"v_add_f32 v{T[1]}, v{T[1]}, v{xb[i]}")
    a("s_nop 1")
    wave_reduce(a, [T[0], T[1]], [s0, s1])
    a("s_nop 1")
    c576 = fl(1.0 / 576.0)
    a(f"v_mov_b32 v{T[10]}, {c576}")
    a(f"v_mul_f32 v{T[2]}, s{s0}, v{T[10]}")
    a(f"v_mul_f32 v{T[3]}, s{s1}, v{T[10]}")
    a(f"v_sub_f32 v{T[4]}, v{xa[0]}, v{T[2]}")
    a(f"v_sub_f32 v{T[5]}, v{xb[0]}, v{T[3]}")
    a(f"v_mul_f32 v{T[0]}, v{T[4]}, v{T[4]}")
    a(f"v_mul_f32 v{T[1]}, v{T[5]}, v{T[5]}")
    for i in range(1, 9):
        a(f"v_sub_f32 v{T[4]}, v{xa[i]}, v{T[2]}")
        a(f"v_sub_f32 v{T[5]}, v{xb[i]}, v{T[3]}")
        a(f"v_fmac_f32 v{T[0]}, v{T[4]}, v{T[4]}")
        a(f"v_fmac_f32 v{T[1]}, v{T[5]}, v{T[5]}")
    a("s_nop 1")
    wave_reduce(a, [T[0], T[1]], [s2, s3])
    a("s_nop 1")
    a(f"v_mul_f32 v{T[6]}, s{s2}, v{T[10]}")
    a(f"v_mul_f32 v{T[7]}, s{s3}, v{T[10]}")
    round_bf16_pair(a, T[6], T[7], T[8])
    round_bf16_pair(a, T[2], T[3], T[9])
    eps = fl(1e-5)
    a(f"v_add_f32 v{T[6]}, {eps}, v{T[6]}")
    a(f"v_add_f32 v{T[7]}, {eps}, v{T[7]}")
    round_bf16_pair(a, T[6], T[7], T[8])
    a(f"v_sqrt_f32 v{T[6]}, v{T[6]}")
    a(f"v_sqrt_f32 v{T[7]}, v{T[7]}")
    a("s_nop 0")
    round_bf16_pair(a, T[6], T[7], T[8])
    a(f"v_rcp_f32 v{T[6]}, v{T[6]}")
    a(f"v_rcp_f32 v{T[7]}, v{T[7]}")
    for i in range(9):
        a(f"v_sub_f32 v{oa[i]}, v{xa[i]}, v{T[2]}")
        a(f"v_sub_f32 v{ob[i]}, v{xb[i]}, v{T[3]}")
        round_bf16_pair(a, oa[i], ob[i], T[8] if i % 2 == 0 else T[9])
        a(f"v_mul_f32 v{oa[i]}, v{oa[i]}, v{T[6]}")
        a(f"v_mul_f32 v{ob[i]}, v{ob[i]}, v{T[7]}")
        round_bf16_pair(a, oa[i], ob[i], T[4] if i % 2 == 0 else T[5])

K1_NWT = 64
def gen_k1(a):
    name = "k1_kernel"
    kernel_begin(a, name)
    a(f"s_cmp_ge_u32 s2, {256 + K1_NWT}")
    a("s_cbranch_scc1 L_k1_end")
    a("s_load_dwordx2 s[4:5], s[0:1], 0")
    a("s_load_dwordx2 s[6:7], s[0:1], 80")
    a("s_load_dwordx4 s[36:39], s[0:1], 8")
    a("v_lshrrev_b32 v1, 6, v0")
    a("v_and_b32 v2, 63, v0")
    a("s_nop 0")
    a("v_readfirstlane_b32 s20, v1")
    a("s_cmp_ge_u32 s2, 256")
    a("s_cbranch_scc1 L_k1_wt")
    a("s_waitcnt lgkmcnt(0)")
    srd(a, 8, 4, 0, S * D * 2)
    srd(a, 12, 6, HT_OFF, HT_SZ)
    srd(a, 16, 6, PT_OFF, PT_SZ)
    E1 = 9216; E2 = E1 + 20736; QS = 5184; E3 = E1; QS3 = 4672
    a("v_mul_u32_u24 v3, 911, v0")
    a("v_lshrrev_b32 v3, 16, v3")
    a("v_mul_u32_u24 v4, 72, v3")
    a("v_sub_u32 v4, v0, v4")
    a("v_lshrrev_b32 v5, 3, v4")
    a("v_and_b32 v6, 7, v4")
    a(f"v_mul_u32_u24 v7, {QS}, v3")
    a("v_mul_u32_u24 v8, 576, v5")
    a("v_add_u32 v7, v7, v8")
    a("s_cmp_ge_u32 s20, 4")
    a("s_cbranch_scc1 L_k1_skipln")
    a("s_lshl_b32 s21, s2, 3")
    a("s_lshl_b32 s22, s20, 1")
    a("s_add_u32 s21, s21, s22")
    a("s_mul_i32 s21, s21, 1152")
    a("v_lshlrev_b32 v9, 1, v2")
    XA = list(range(10, 19)); XB = list(range(20, 29))
    for i in range(9):
        a(f"buffer_load_ushort v{XA[i]}, v9, s[8:11], s21 offen offset:{128*i}")
        a(f"buffer_load_ushort v{XB[i]}, v9, s[8:11], s21 offen offset:{1152+128*i}")
    a("v_cvt_f32_u32 v60, v2")
    for k1 in range(1, 9):
        a(f"v_mul_f32 v61, {fl(-k1/576.0)}, v60")
        a(f"v_cos_f32 v{80+2*k1}, v61")
        a(f"v_sin_f32 v{81+2*k1}, v61")
    a("s_waitcnt vmcnt(0)")
    for i in range(9):
        a(f"v_lshlrev_b32 v{XA[i]}, 16, v{XA[i]}")
        a(f"v_lshlrev_b32 v{XB[i]}, 16, v{XB[i]}")
    NA = [30 + 2*i for i in range(9)]; NB = [31 + 2*i for i in range(9)]
    layernorm_pair(a, XA, XB, NA, NB, 60, 24)
    HA = list(range(10, 19)); HB = list(range(20, 29))
    layernorm_pair(a, NA, NB, HA, HB, 60, 24)
    a("v_lshlrev_b32 v9, 4, v2")
    a("s_lshl_b32 s22, s20, 2")
    a("v_add_u32 v9, s22, v9")
    for i in range(9):
        a(f"v_cvt_pk_bf16_f32 v{50+i}, v{HA[i]}, v{HB[i]}")
    for i in range(9):
        a(f"ds_write_b32 v9, v{50+i} offset:{1024*i}")
    pool = Pool(100, 160)
    g = FG(a, pool)
    class P2(Pool):
        def release(self, r):
            if r < self.lo or r >= self.hi: return
            Pool.release(self, r)
    pool = P2(100, 160); g = FG(a, pool)
    xs = [((NA[i], 1), (NB[i], 1)) for i in range(9)]
    ys = g.dft(xs, -1)
    a(f"s_mul_i32 s22, s20, {QS}")
    a("v_lshlrev_b32 v9, 3, v2")
    a("v_add_u32 v9, s22, v9")
    for k1 in range(9):
        d = 60 + 2 * k1
        if k1 == 0:
            g.mov(ys[0][0], d); g.mov(ys[0][1], d + 1); g.frc(ys[0])
        else:
            g.cmul(ys[k1], 80 + 2*k1, 81 + 2*k1, dst=d)
    for k1 in range(9):
        d = 60 + 2 * k1
        a(f"ds_write_b64 v9, v[{d}:{d+1}] offset:{E1 + 576*k1}")
    a.label("L_k1_skipln")
    a("v_cvt_f32_u32 v60, v6")
    for c in range(1, 8):
        a(f"v_mul_f32 v61, {fl(-c/64.0)}, v60")
        a(f"v_cos_f32 v{80+2*c}, v61")
        a(f"v_sin_f32 v{81+2*c}, v61")
    a("s_waitcnt lgkmcnt(0)")
    a("s_barrier")
    a("v_cmp_gt_u32 vcc, 288, v0")
    a("s_and_saveexec_b64 s[30:31], vcc")
    a("v_lshlrev_b32 v9, 4, v0")
    a("ds_read_b128 v[10:13], v9")
    a("ds_read_b128 v[14:17], v9 offset:4608")
    a("v_lshlrev_b32 v20, 3, v6")
    a("v_add_u32 v20, v7, v20")
    for b in range(8):
        a(f"ds_read_b64 v[{30+2*b}:{31+2*b}], v20 offset:{E1 + 64*b}")
    a(f"s_mul_i32 s23, s2, {576*16}")
    a("s_waitcnt lgkmcnt(8)")
    a("buffer_store_dwordx4 v[10:13], v9, s[12:15], s23 offen")
    a("v_add_u32 v21, 4608, v9")
    a("buffer_store_dwordx4 v[14:17], v21, s[12:15], s23 offen")
    a("s_waitcnt lgkmcnt(0)")
    pool = P2(100, 160); g = FG(a, pool)
    xs = [((30+2*b, 1), (31+2*b, 1)) for b in range(8)]
    ys = g.dft(xs, -1)
    a("v_mul_u32_u24 v22, 72, v6")
    a("v_add_u32 v22, v7, v22")
    for c in range(8):
        d = 60 + 2 * c
        if c == 0:
            g.mov(ys[0][0], d); g.mov(ys[0][1], d + 1); g.frc(ys[0])
        else:
            g.cmul(ys[c], 80 + 2*c, 81 + 2*c, dst=d)
    for c in range(8):
        d = 60 + 2 * c
        a(f"ds_write_b64 v22, v[{d}:{d+1}] offset:{E2 + 8*c}")
    a("s_waitcnt lgkmcnt(0)")
    a("s_barrier")
    for aa in range(8):
        a(f"ds_read_b64 v[{30+2*aa}:{31+2*aa}], v20 offset:{E2 + 72*aa}")
    a("s_waitcnt lgkmcnt(0)")
    pool = P2(100, 160); g = FG(a, pool)
    xs = [((30+2*b, 1), (31+2*b, 1)) for b in range(8)]
    ys = g.dft(xs, -1, [60 + 2*e for e in range(8)])
    a(f"v_mul_u32_u24 v22, {QS3}, v3")
    a("v_mul_u32_u24 v23, 9, v6")
    a("v_add_u32 v23, v23, v5")
    a("v_lshlrev_b32 v23, 3, v23")
    a("v_add_u32 v22, v22, v23")
    for e in range(8):
        d = 60 + 2 * e
        a(f"ds_write_b64 v22, v[{d}:{d+1}] offset:{E3 + 576*e}")
    a("s_mov_b64 exec, s[30:31]")
    a("s_waitcnt lgkmcnt(0)")
    a("s_barrier")
    a("s_lshl_b32 s23, s2, 6")
    for rnd in range(4):
        a(f"v_add_u32 v10, {320*rnd}, v0")
        if rnd == 3:
            a("v_cmp_gt_u32 vcc, 1156, v10")
            a("s_and_saveexec_b64 s[30:31], vcc")
            a("s_cbranch_execz L_k1_end")
        a("v_lshrrev_b32 v11, 2, v10")
        a("v_and_b32 v12, 3, v10")
        a(f"v_mul_u32_u24 v13, {QS3}, v12")
        a("v_sub_u32 v14, 576, v11")
        a("v_cmp_eq_u32 vcc, 0, v11")
        a("v_lshlrev_b32 v15, 3, v11")
        a("v_add_u32 v15, v15, v13")
        a("v_cndmask_b32 v14, v14, v11, vcc")
        a("v_lshlrev_b32 v14, 3, v14")
        a("v_add_u32 v14, v14, v13")
        b = 30 + 8 * rnd
        a(f"ds_read_b64 v[{b}:{b+1}], v15 offset:{E3}")
        a(f"ds_read_b64 v[{b+2}:{b+3}], v14 offset:{E3}")
        a("v_lshlrev_b32 v16, 14, v11")
        a("v_lshlrev_b32 v17, 4, v12")
        a(f"v_add_u32 v{70+rnd}, v16, v17")
        a("s_waitcnt lgkmcnt(0)")
        a(f"v_add_f32 v{b+4}, v{b}, v{b+2}")
        a(f"v_sub_f32 v{b+5}, v{b+1}, v{b+3}")
        a(f"v_add_f32 v{b+6}, v{b+1}, v{b+3}")
        a(f"v_sub_f32 v{b+7}, v{b+2}, v{b}")
        a(f"buffer_store_dwordx4 v[{b+4}:{b+7}], v{70+rnd}, s[16:19], s23 offen")
    a("s_waitcnt vmcnt(0)")
    a("s_endpgm")
    a.label("L_k1_wt")
    a("s_waitcnt lgkmcnt(0)")
    srd(a, 8, 36, 0, S * DF * 2)
    srd(a, 12, 38, 0, S * DF * 2)
    srd(a, 16, 6, WT_OFF, WT_SZ)
    a("s_sub_u32 s21, s2, 256")
    a("s_mul_i32 s22, s21, 18496")
    a("v_lshlrev_b32 v9, 4, v0")
    for rnd in range(4):
        a(f"v_add_u32 v10, {320*16*rnd}, v9")
        if rnd == 3:
            a("v_cmp_gt_u32 vcc, 18496, v10")
            a("s_and_saveexec_b64 s[30:31], vcc")
        a(f"buffer_load_dwordx4 v[{20+8*rnd}:{23+8*rnd}], v10, s[8:11], s22 offen")
        a(f"buffer_load_dwordx4 v[{24+8*rnd}:{27+8*rnd}], v10, s[12:15], s22 offen")
    a("s_mov_b64 exec, s[30:31]")
    a("s_waitcnt vmcnt(0)")
    for rnd in range(4):
        a(f"v_add_u32 v10, {320*16*rnd}, v9")
        if rnd == 3:
            a("v_cmp_gt_u32 vcc, 18496, v10")
            a("s_and_saveexec_b64 s[30:31], vcc")
        a(f"ds_write_b128 v10, v[{20+8*rnd}:{23+8*rnd}]")
        a(f"ds_write_b128 v10, v[{24+8*rnd}:{27+8*rnd}] offset:18496")
    a("s_mov_b64 exec, s[30:31]")
    a("s_waitcnt lgkmcnt(0)")
    a("s_barrier")
    a("s_lshl_b32 s23, s21, 7")
    a("v_and_b32 v11, 31, v0")
    a("v_mul_u32_u24 v12, 578, v11")
    a("v_lshrrev_b32 v13, 5, v0")
    a("v_lshlrev_b32 v14, 1, v13")
    a("v_add_u32 v12, v12, v14")
    a("v_lshlrev_b32 v14, 13, v13")
    a("v_lshlrev_b32 v15, 2, v11")
    a("v_add_u32 v14, v14, v15")
    for base in range(0, 29, 7):
        rr = list(range(base, min(base + 7, 28)))
        if base == 28:
            rr = [28]
            a("v_cmp_gt_u32 vcc, 288, v0")
            a("s_and_saveexec_b64 s[30:31], vcc")
        for i, rnd in enumerate(rr):
            r0 = 20 + 2 * i
            a(f"ds_read_u16 v{r0}, v12 offset:{20*rnd}")
            a(f"ds_read_u16 v{r0+1}, v12 offset:{18496 + 20*rnd}")
        a("s_waitcnt lgkmcnt(0)")
        for i, rnd in enumerate(rr):
            r0 = 20 + 2 * i
            a(f"v_lshl_or_b32 v{40+i}, v{r0+1}, 16, v{r0}")
            a(f"s_add_u32 s24, s23, {rnd*10*8192}")
            a(f"buffer_store_dword v{40+i}, v14, s[16:19], s24 offen")
    a("s_waitcnt vmcnt(0)")
    a.label("L_k1_end")
    a("s_endpgm")
    return name, 160

DBG = set()
STAMP_OFF = 0x8000000
def stamp(a, idx):
    if "stamp" in DBG:
        a(f"s_memtime s[{60+2*idx}:{61+2*idx}]")
def stamp_flush(a, n, wsbase, slot):
    if "stamp" not in DBG: return
    a("s_waitcnt lgkmcnt(0)")
    srd(a, 56, wsbase, STAMP_OFF + slot * 0x10000, 0x10000)
    a("s_lshl_b32 s55, s2, 6")
    a("s_lshl_b32 s54, s33, 5")
    a("s_add_u32 s55, s55, s54") if False else None
    for i in range(n):
        a(f"v_mov_b32 v121, s{60+2*i}")
        a(f"v_mov_b32 v120, {4*i}")
        a(f"buffer_store_dword v121, v120, s[56:59], s55 offen")
def interleave(a, mf, other, per=2):
    if "nomfma" in DBG: mf = []
    if "noread" in DBG: other = []
    j = 0
    for i, m in enumerate(mf):
        a(m)
        k = min(len(other), (i + 1) * per)
        while j < k:
            a(other[j]); j += 1
    while j < len(other):
        a(other[j]); j += 1

def ring_loader(a, tag, R, NS, SZ, n, dma):
    if "nodma" in DBG:
        dma = lambda wr: []
    a("s_mov_b32 s42, 0")
    for st in range(R):
        a(f"s_mov_b32 s40, {st*SZ}")
        for x in dma(40): a(x)
    a(f"s_waitcnt vmcnt({(R-1)*n})")
    a("s_barrier")
    a("s_mov_b32 s40, 0")
    nst = NS - R
    a(f"s_mov_b32 s45, {nst}")
    lab = f"L_{tag}_ld"
    a.label(lab)
    a(f"s_waitcnt vmcnt({(R-2)*n})")
    a("s_barrier")
    for x in dma(40): a(x)
    a(f"s_add_u32 s40, s40, {SZ}")
    a(f"s_cmp_eq_u32 s40, {R*SZ}")
    a("s_cselect_b32 s40, 0, s40")
    a("s_sub_u32 s45, s45, 1")
    a("s_cmp_lg_u32 s45, 0")
    a(f"s_cbranch_scc1 {lab}")
    for i in range(nst, NS):
        last_issued = NS - 1
        vm = max(0, last_issued - (i + 1)) * n
        a(f"s_waitcnt vmcnt({vm})")
        a("s_barrier")
    a("s_endpgm")

def ring_compute(a, tag, R, NS, SZ, mfmas, reads, addr_upd):
    stamp(a, 1)
    a("s_barrier")
    stamp(a, 2)
    a("s_mov_b32 s41, 0")
    for x in addr_upd(41): a(x)
    for x in reads(0, 0): a(x)
    a(f"s_mov_b32 s45, {NS-1}")
    lab = f"L_{tag}_cp"
    a.label(lab)
    a("s_waitcnt lgkmcnt(0)")
    interleave(a, mfmas(0), reads(1, 1))
    a(f"s_add_u32 s41, s41, {SZ}")
    a(f"s_cmp_eq_u32 s41, {R*SZ}")
    a("s_cselect_b32 s41, 0, s41")
    for x in addr_upd(41): a(x)
    a("s_waitcnt lgkmcnt(0)")
    a("s_barrier")
    interleave(a, mfmas(1), reads(0, 0))
    a("s_sub_u32 s45, s45, 1")
    a("s_cmp_lg_u32 s45, 0")
    a(f"s_cbranch_scc1 {lab}")
    a("s_waitcnt lgkmcnt(0)")
    interleave(a, mfmas(0), reads(1, 1))
    a("s_waitcnt lgkmcnt(0)")
    a("s_barrier")
    interleave(a, mfmas(1), [])
    stamp(a, 3)

def gen_gemm1(a):
    R = 5; NS = 32; SZ = 28672
    srd(a, 12, 4, 0, S * F * 2)
    srd(a, 16, 8, HT_OFF, HT_SZ)
    srd(a, 20, 8, U_OFF, U_SZ)
    srd(a, 24, 6, 0, F * 2)
    a("s_and_b32 s28, s2, 7")
    a("s_lshr_b32 s29, s2, 3")
    a("s_mul_i32 s28, s28, 27")
    a("s_add_u32 s28, s28, s29")
    a("s_mul_i32 s29, s28, 171")
    a("s_lshr_b32 s29, s29, 10")
    a("s_mul_i32 s30, s29, 6")
    a("s_sub_u32 s30, s28, s30")
    a("s_lshl_b32 s31, s29, 8")
    a("s_mul_i32 s32, s30, 1536")
    a("v_lshrrev_b32 v1, 6, v0")
    a("v_and_b32 v2, 63, v0")
    a("s_nop 0")
    a("v_readfirstlane_b32 s33, v1")
    a("s_and_b32 s34, s33, 3")
    a("s_lshr_b32 s35, s33, 2")
    a("s_and_b32 s36, s34, 1")
    a("s_lshr_b32 s37, s34, 1")
    a("v_lshrrev_b32 v3, 4, v2")
    a("v_and_b32 v4, 15, v2")
    a("v_lshrrev_b32 v5, 2, v4")
    a("v_and_b32 v6, 3, v4")
    a("s_cmp_eq_u32 s35, 0")
    a("s_cbranch_scc1 L_g1_compute")
    a("s_lshl_b32 s38, s34, 4")
    a("v_add_u32 v9, s38, v3")
    a("s_mov_b32 s39, 9216")
    a("v_mul_lo_u32 v9, v9, s39")
    a("v_add_u32 v9, s31, v9")
    a("v_lshlrev_b32 v10, 1, v3")
    a("v_xor_b32 v11, v10, v4")
    a("v_lshlrev_b32 v11, 4, v11")
    a("v_add_u32 v20, v9, v11")
    a("v_xor_b32 v11, 8, v10")
    a("v_xor_b32 v11, v11, v4")
    a("v_lshlrev_b32 v11, 4, v11")
    a("v_add_u32 v21, v9, v11")
    for i in range(3):
        a("s_mul_i32 s38, s34, 192")
        a(f"s_add_u32 s38, s38, {64*i}")
        a("v_add_u32 v9, s38, v2")
        a("v_mul_u32_u24 v10, 683, v9")
        a("v_lshrrev_b32 v10, 16, v10")
        a("v_mul_u32_u24 v11, 96, v10")
        a("v_sub_u32 v11, v9, v11")
        a("v_mul_u32_u24 v10, 9216, v10")
        a("v_lshlrev_b32 v11, 4, v11")
        a("v_add_u32 v10, v10, v11")
        a(f"s_sub_u32 s38, s32, {1024*i}") if i else a("s_mov_b32 s38, s32")
        a(f"v_add_u32 v{22+i}, s38, v10")
    a("s_lshl_b32 s43, s34, 12")
    a("s_mul_i32 s46, s34, 3072")
    a("s_add_u32 s46, s46, 16384")
    a("s_mov_b32 s47, 0")
    def dma(wr):
        out = [f"s_add_u32 m0, s{wr}, s43"]
        for i in range(4):
            out.append(f"s_add_u32 s44, s42, {i*(4*9216-1024)}")
            out.append(f"buffer_load_dwordx4 v{20 + (i>>1)}, s[12:15], s44 offen offset:{1024*i} lds")
        out.append(f"s_add_u32 m0, s{wr}, s46")
        out.append(f"s_add_u32 s42, s42, {64*9216}")
        for i in range(3):
            out.append(f"buffer_load_dwordx4 v{22+i}, s[16:19], s47 offen offset:{1024*i} lds")
        out.append(f"s_add_u32 s47, s47, {8*9216}")
        return out
    ring_loader(a, "g1", R, NS, SZ, 7, dma)
    a.label("L_g1_compute")
    VW = [100, 101, 102, 103]; VH = 104
    VWc = [105, 106, 107, 108]; VHc = 109
    a("v_and_b32 v7, 1, v3")
    a("v_lshlrev_b32 v7, 2, v7")
    a("v_or_b32 v7, v7, v5")
    a("v_lshlrev_b32 v8, 3, v3")
    a("v_add_u32 v8, v8, v5")
    a("v_lshlrev_b32 v8, 8, v8")
    a("v_lshlrev_b32 v9, 3, v6")
    a("v_add_u32 v8, v8, v9")
    a("s_lshl_b32 s38, s36, 2")
    for fbk in range(4):
        a(f"s_add_u32 s39, s38, {fbk}")
        a(f"v_xor_b32 v9, s39, v7")
        a(f"v_lshlrev_b32 v9, 5, v9")
        a(f"v_add_u32 v{VW[fbk]}, v8, v9")
    a("v_mul_u32_u24 v9, 96, v3")
    a("s_mul_i32 s38, s37, 48")
    a("v_add_u32 v9, s38, v9")
    a("v_add_u32 v9, v9, v4")
    a("v_lshlrev_b32 v9, 4, v9")
    a(f"v_add_u32 v{VH}, 16384, v9")
    ACC = 16
    for i in range(48):
        a(f"v_mov_b32 v{ACC+i}, 0")
    FR = [112, 140]
    def acc(fbk, dbk):
        b = ACC + (fbk * 3 + dbk) * 4
        return f"v[{b}:{b+3}]"
    def mfmas(st):
        out = []
        for dbk in range(3):
            for fbk in range(4):
                w = FR[st] + 4 * fbk; h = FR[st] + 16 + 4 * dbk
                out.append(f"v_mfma_f32_16x16x32_bf16 {acc(fbk,dbk)}, v[{w}:{w+3}], v[{h}:{h+3}], {acc(fbk,dbk)}")
        return out
    def reads(st, sub):
        out = []
        for fbk in range(4):
            w = FR[st] + 4 * fbk
            out.append(f"ds_read_b64_tr_b16 v[{w}:{w+1}], v{VWc[fbk]} offset:{sub*8192}")
            out.append(f"ds_read_b64_tr_b16 v[{w+2}:{w+3}], v{VWc[fbk]} offset:{sub*8192+1024}")
        for dbk in range(3):
            h = FR[st] + 16 + 4 * dbk
            out.append(f"ds_read_b128 v[{h}:{h+3}], v{VHc} offset:{sub*6144+256*dbk}")
        return out
    def addr_upd(sreg):
        out = [f"v_add_u32 v{VWc[k]}, s{sreg}, v{VW[k]}" for k in range(4)]
        out.append(f"v_add_u32 v{VHc}, s{sreg}, v{VH}")
        return out
    ring_compute(a, "g1", R, NS, SZ, mfmas, reads, addr_upd)
    a("s_lshl_b32 s38, s36, 7")
    a("s_add_u32 s38, s38, s31")
    a("v_lshlrev_b32 v12, 3, v3")
    for k in range(4):
        a(f"buffer_load_dwordx2 v[{64+2*k}:{65+2*k}], v12, s[24:27], s38 offen offset:{32*k}")
    k0 = -2.0 * math.log2(math.e) * math.sqrt(2.0 / math.pi)
    k1 = k0 * 0.044715
    a(f"s_mov_b32 s46, {fl(k0)}")
    a(f"s_mov_b32 s47, {fl(k1)}")
    a("v_mov_b32 v102, s46")
    a("s_lshl_b32 s38, s29, 4")
    a("s_lshl_b32 s39, s36, 3")
    a("s_add_u32 s38, s38, s39")
    a("v_lshrrev_b32 v12, 1, v3")
    a("v_add_u32 v12, s38, v12")
    a("v_mul_u32_u24 v12, 576, v12")
    a("s_mul_i32 s38, s37, 48")
    a("v_add_u32 v12, s38, v12")
    a("v_add_u32 v12, v12, v4")
    a("v_lshlrev_b32 v12, 4, v12")
    a("v_add_u32 v12, s32, v12")
    a("v_and_b32 v13, 1, v3")
    a("v_lshlrev_b32 v13, 3, v13")
    a("v_add_u32 v12, v12, v13")
    a("s_waitcnt vmcnt(0)")
    for k in range(4):
        a(f"v_lshlrev_b32 v{80+4*k}, 16, v{64+2*k}")
        a(f"v_and_b32 v{81+4*k}, 0xffff0000, v{64+2*k}")
        a(f"v_lshlrev_b32 v{82+4*k}, 16, v{65+2*k}")
        a(f"v_and_b32 v{83+4*k}, 0xffff0000, v{65+2*k}")
    cnt = 0
    for k in range(4):
        for dbk in range(3):
            b = ACC + (k * 3 + dbk) * 4
            for r in (0, 2):
                round_bf16_pair(a, b + r, b + r + 1, 64)
                a(f"v_add_f32 v{b+r}, v{b+r}, v{80+4*k+r}")
                a(f"v_add_f32 v{b+r+1}, v{b+r+1}, v{80+4*k+r+1}")
                round_bf16_pair(a, b + r, b + r + 1, 65)
            for r in range(4):
                t = 66 + r
                a(f"v_mul_f32 v{t}, v{b+r}, v{b+r}")
                a(f"v_fma_f32 v{t}, v{t}, s47, v102")
                a(f"v_mul_f32 v{t}, v{t}, v{b+r}")
                a(f"v_exp_f32 v{t}, v{t}")
            for r in range(4):
                t = 66 + r
                a(f"v_add_f32 v{t}, 1.0, v{t}")
                a(f"v_rcp_f32 v{t}, v{t}")
            a("s_nop 0")
            for r in range(4):
                t = 66 + r
                a(f"v_mul_f32 v{t}, v{t}, v{b+r}")
            o = 70 + 2 * (cnt % 4); cnt += 1
            a(f"v_cvt_pk_bf16_f32 v{o}, v66, v67")
            a(f"v_cvt_pk_bf16_f32 v{o+1}, v68, v69")
            a(f"s_mov_b32 s38, {k*18432}")
            a(f"buffer_store_dwordx2 v[{o}:{o+1}], v12, s[20:23], s38 offen offset:{256*dbk}")
    a("s_waitcnt vmcnt(0)")
    stamp(a, 4)
    if "stamp" in DBG:
        a("s_memrealtime s[72:73]")
        a("s_cmp_lg_u32 s33, 0")
        a("s_cbranch_scc1 L_g1_nostamp")
        a("s_mov_b64 exec, 1")
        stamp_flush(a, 7, 8, 0)
        a("s_waitcnt vmcnt(0)")
        a.label("L_g1_nostamp")
    a("s_endpgm")

class P2(Pool):
    def release(self, r):
        if r < self.lo or r >= self.hi: return
        Pool.release(self, r)

TB1 = 139264; TB2 = TB1 + 16384
def gen_colfft(a):
    srd(a, 12, 8, PT_OFF, PT_SZ)
    srd(a, 16, 8, WT_OFF, WT_SZ)
    a("v_lshrrev_b32 v1, 6, v0")
    a("v_and_b32 v2, 63, v0")
    a("s_nop 0")
    a("v_readfirstlane_b32 s33, v1")
    a("s_sub_u32 s28, s2, 216")
    a("s_lshl_b32 s28, s28, 3")
    a("s_add_u32 s28, s28, s33")
    a("s_lshl_b32 s29, s28, 14")
    a("s_lshl_b32 s30, s28, 13")
    a("v_lshlrev_b32 v3, 4, v2")
    a("v_lshlrev_b32 v4, 2, v2")
    DQ = [16 + 4*i for i in range(16)]
    for aa in range(16):
        a(f"s_add_u32 s31, s29, {1024*aa}")
        a(f"buffer_load_dwordx4 v[{DQ[aa]}:{DQ[aa]+3}], v3, s[12:15], s31 offen")
    WR = 80
    for m in range(4):
        for kc in range(8):
            a(f"buffer_load_dword v{WR + 8*m + kc}, v4, s[16:19], s30 offen offset:{256*m + 1024*kc}") if 256*m + 1024*kc < 4096 else None
            if 256*m + 1024*kc >= 4096:
                a(f"s_add_u32 s31, s30, {1024*kc}")
                a(f"buffer_load_dword v{WR + 8*m + kc}, v4, s[16:19], s31 offen offset:{256*m}")
    for i in range(4):
        a(f"v_add_u32 v5, {512*i}, v0")
        a("v_lshrrev_b32 v6, 7, v5")
        a("v_and_b32 v7, 127, v5")
        a("v_mul_u32_u24 v6, v6, v7")
        a("v_cvt_f32_u32 v6, v6")
        a(f"v_mul_f32 v6, {fl(-1.0/2048)}, v6")
        a("v_cos_f32 v8, v6")
        a("v_sin_f32 v9, v6")
        a("v_lshlrev_b32 v5, 3, v5")
        a(f"v_add_u32 v5, {TB1}, v5")
        a("ds_write_b64 v5, v[8:9]")
    a("v_cmp_gt_u32 vcc, 128, v0")
    a("s_and_saveexec_b64 s[34:35], vcc")
    a("v_lshrrev_b32 v6, 3, v0")
    a("v_and_b32 v7, 7, v0")
    a("v_mul_u32_u24 v6, v6, v7")
    a("v_cvt_f32_u32 v6, v6")
    a(f"v_mul_f32 v6, {fl(-1.0/128)}, v6")
    a("v_cos_f32 v8, v6")
    a("v_sin_f32 v9, v6")
    a("v_lshlrev_b32 v5, 3, v0")
    a(f"v_add_u32 v5, {TB2}, v5")
    a("ds_write_b64 v5, v[8:9]")
    a("s_mov_b64 exec, s[34:35]")
    a("s_waitcnt lgkmcnt(0)")
    a("s_barrier")
    a("s_cmp_ge_u32 s28, 289")
    a("s_cbranch_scc1 L_k2_end")
    a("s_mul_i32 s32, s33, 17408")
    a("v_add_u32 v5, s32, v3")
    a("v_lshrrev_b32 v10, 2, v2")
    a("v_and_b32 v11, 3, v2")
    a("v_mul_u32_u24 v6, 1088, v10")
    a("v_lshlrev_b32 v12, 4, v11")
    a("v_add_u32 v6, v6, v12")
    a("v_add_u32 v6, s32, v6")
    a("v_mul_u32_u24 v7, 4128, v11")
    a("v_lshlrev_b32 v13, 4, v10")
    a("v_add_u32 v7, v7, v13")
    a("v_add_u32 v7, s32, v7")
    a(f"v_add_u32 v8, {TB1}, v3")
    a(f"v_add_u32 v9, {TB2}, v12")
    TW = 112
    def tw_reads(vaddr, stride):
        for i in range(1, 16):
            a(f"ds_read_b128 v[{TW+4*i}:{TW+4*i+3}], v{vaddr} offset:{stride*i}")
    pool = P2(176, 256)
    g = FG(a, pool)
    def quads_to_c(h):
        return [((DQ[i] + 2*h, 1), (DQ[i] + 2*h + 1, 1)) for i in range(16)]
    tw_reads(8, 1024)
    a("s_waitcnt vmcnt(32)")
    def dft16_both(sgn):
        return [g.dft(quads_to_c(h), sgn) for h in range(2)]
    outs = dft16_both(-1)
    a("s_waitcnt lgkmcnt(0)")
    for k in range(16):
        for h in range(2):
            d = DQ[k] + 2*h
            if k == 0:
                g.mov(outs[h][0][0], d); g.mov(outs[h][0][1], d + 1); g.frc(outs[h][0])
            else:
                g.cmul(outs[h][k], TW + 4*k + 2*h, TW + 4*k + 2*h + 1, dst=d)
        a(f"ds_write_b128 v5, v[{DQ[k]}:{DQ[k]+3}] offset:{1088*k}")
    for b in range(16):
        a(f"ds_read_b128 v[{DQ[b]}:{DQ[b]+3}], v6 offset:{64*b}")
    tw_reads(9, 64)
    a("s_waitcnt lgkmcnt(15)")
    outs = dft16_both(-1)
    a("s_waitcnt lgkmcnt(0)")
    for k in range(16):
        for h in range(2):
            d = DQ[k] + 2*h
            if k == 0:
                g.mov(outs[h][0][0], d); g.mov(outs[h][0][1], d + 1); g.frc(outs[h][0])
            else:
                g.cmul(outs[h][k], TW + 4*k + 2*h, TW + 4*k + 2*h + 1, dst=d)
        a(f"ds_write_b128 v7, v[{DQ[k]}:{DQ[k]+3}] offset:{256*k}")
    for m in range(4):
        for cp in range(4):
            q = DQ[4*m + cp]
            a(f"ds_read_b128 v[{q}:{q+3}], v5 offset:{4128*cp + 1024*m}")
    a("s_waitcnt vmcnt(0) lgkmcnt(0)")
    for m in range(4):
        xs = []
        for c in range(8):
            q = DQ[4*m + (c >> 1)] + 2*(c & 1)
            xs.append(((q, 1), (q + 1, 1)))
        X = g.dft(xs, -1)
        Y = []
        for kc in range(8):
            w = WR + 8*m + kc
            wr = pool.alloc(); wi = pool.alloc()
            a(f"v_lshlrev_b32 v{wr}, 16, v{w}")
            a(f"v_and_b32 v{wi}, 0xffff0000, v{w}")
            Y.append(g.cmul(X[kc], wr, wi))
            pool.release(wr); pool.release(wi)
        dsts = [DQ[4*m + (c >> 1)] + 2*(c & 1) for c in range(8)]
        g.dft(Y, 1, dsts)
        for cp in range(4):
            q = DQ[4*m + cp]
            a(f"ds_write_b128 v5, v[{q}:{q+3}] offset:{4128*cp + 1024*m}")
    for kb in range(16):
        a(f"ds_read_b128 v[{DQ[kb]}:{DQ[kb]+3}], v7 offset:{256*kb}")
    a("s_waitcnt lgkmcnt(0)")
    def twiddle_in(conj):
        res = [[], []]
        for k in range(16):
            for h in range(2):
                q = DQ[k] + 2*h
                x = ((q, 1), (q + 1, 1))
                if k == 0: res[h].append(x)
                else: res[h].append(g.cmul(x, TW + 4*k + 2*h, TW + 4*k + 2*h + 1, conj=conj))
        return res
    xin = twiddle_in(True)
    tw_reads(8, 1024)
    for h in range(2):
        g.dft(xin[h], 1, [DQ[b] + 2*h for b in range(16)])
    for b in range(16):
        a(f"ds_write_b128 v6, v[{DQ[b]}:{DQ[b]+3}] offset:{64*b}")
    for ka in range(16):
        a(f"ds_read_b128 v[{DQ[ka]}:{DQ[ka]+3}], v5 offset:{1088*ka}")
    a("s_waitcnt lgkmcnt(0)")
    xin = twiddle_in(True)
    for h in range(2):
        g.dft(xin[h], 1, [DQ[aa] + 2*h for aa in range(16)])
    for aa in range(16):
        a(f"s_add_u32 s31, s29, {1024*aa}")
        a(f"buffer_store_dwordx4 v[{DQ[aa]}:{DQ[aa]+3}], v3, s[12:15], s31 offen")
    a("s_waitcnt vmcnt(0)")
    a("s_endpgm")

def gen_k2(a):
    name = "k2_kernel"
    kernel_begin(a, name)
    stamp(a, 0)
    if "stamp" in DBG: a("s_memrealtime s[70:71]")
    a("s_cmp_ge_u32 s2, 253")
    a("s_cbranch_scc1 L_k2_end")
    a("s_load_dwordx2 s[4:5], s[0:1], 32")
    a("s_load_dwordx2 s[6:7], s[0:1], 40")
    a("s_load_dwordx2 s[8:9], s[0:1], 80")
    a("s_waitcnt lgkmcnt(0)")
    a("s_cmp_ge_u32 s2, 216")
    a("s_cbranch_scc1 L_k2_fft")
    gen_gemm1(a)
    a.label("L_k2_fft")
    gen_colfft(a)
    a.label("L_k2_end")
    a("s_endpgm")
    return name, 256

def gen_k3(a):
    name = "k3_kernel"
    kernel_begin(a, name)
    R = 4; NS = 18; SZ = 34816
    a("s_cmp_ge_u32 s2, 256")
    a("s_cbranch_scc1 L_k3_end")
    a("s_load_dwordx2 s[4:5], s[0:1], 48")
    a("s_load_dwordx2 s[8:9], s[0:1], 80")
    a("s_waitcnt lgkmcnt(0)")
    srd(a, 12, 4, 0, S * F * 2)
    srd(a, 16, 8, U_OFF, U_SZ)
    srd(a, 20, 8, PART_OFF, PART_SZ)
    a("s_and_b32 s28, s2, 7")
    a("s_lshr_b32 s29, s2, 3")
    a("s_lshr_b32 s30, s28, 1")
    a("s_and_b32 s31, s28, 1")
    a("s_lshl_b32 s31, s31, 3")
    a("s_lshr_b32 s32, s29, 2")
    a("s_add_u32 s31, s31, s32")
    a("s_and_b32 s32, s29, 3")
    a("v_lshrrev_b32 v1, 6, v0")
    a("v_and_b32 v2, 63, v0")
    a("s_nop 0")
    a("v_readfirstlane_b32 s33, v1")
    a("s_and_b32 s34, s33, 3")
    a("s_lshr_b32 s35, s33, 2")
    a("v_lshrrev_b32 v3, 4, v2")
    a("v_and_b32 v4, 15, v2")
    a("v_lshrrev_b32 v5, 2, v4")
    a("v_and_b32 v6, 3, v4")
    a("s_cmp_eq_u32 s35, 0")
    a("s_cbranch_scc1 L_g2_compute")
    a("s_mul_i32 s38, s30, 1152")
    a("s_lshl_b32 s39, s34, 4")
    a("s_add_u32 s38, s38, s39")
    a("v_add_u32 v9, s38, v3")
    a("v_lshlrev_b32 v9, 12, v9")
    a("s_lshl_b32 s39, s31, 8")
    a("v_add_u32 v9, s39, v9")
    a("v_lshlrev_b32 v10, 1, v3")
    a("v_xor_b32 v11, v10, v4")
    a("v_lshlrev_b32 v11, 4, v11")
    a("v_add_u32 v20, v9, v11")
    a("v_xor_b32 v11, 8, v10")
    a("v_xor_b32 v11, v11, v4")
    a("v_lshlrev_b32 v11, 4, v11")
    a("v_add_u32 v21, v9, v11")
    a("s_lshl_b32 s43, s34, 12")
    a("s_mov_b32 s47, 0")
    a("s_cmp_lt_u32 s34, 2")
    a("s_cbranch_scc1 L_g2_v1")
    a("s_branch L_g2_v2")
    for var in (1, 2):
        a.label(f"L_g2_v{var}")
        n = 5 if var == 1 else 4
        for i in range(n):
            if var == 1:
                a("s_mul_i32 s38, s34, 320")
                a(f"s_add_u32 s38, s38, {64*i}")
            else:
                a("s_lshl_b32 s38, s34, 8")
                a(f"s_add_u32 s38, s38, {640 - 512 + 64*i}")
            a("v_add_u32 v9, s38, v2")
            a("v_mul_u32_u24 v10, 3641, v9")
            a("v_lshrrev_b32 v10, 19, v10")
            a("v_mul_u32_u24 v11, 144, v10")
            a("v_sub_u32 v11, v9, v11")
            a("v_mul_u32_u24 v10, 9216, v10")
            a("v_lshlrev_b32 v11, 4, v11")
            a("v_add_u32 v10, v10, v11")
            a(f"s_mul_i32 s38, s30, {144*9216}")
            a("s_mul_i32 s39, s32, 2304")
            a("s_add_u32 s38, s38, s39")
            if i & 3:
                a(f"s_sub_u32 s38, s38, {1024*(i&3)}")
            a(f"v_add_u32 v{22+i}, s38, v10")
        if var == 1:
            a("s_mul_i32 s46, s34, 5120")
            a("s_add_u32 s46, s46, 16384")
        else:
            a("s_lshl_b32 s46, s34, 12")
            a(f"s_add_u32 s46, s46, {16384 + 10240 - 8192}")
        def dma(wr, n=n):
            out = [f"s_add_u32 m0, s{wr}, s43"]
            for i in range(4):
                out.append(f"s_add_u32 s44, s42, {i*(4*4096-1024)}")
                out.append(f"buffer_load_dwordx4 v{20 + (i>>1)}, s[12:15], s44 offen offset:{1024*i} lds")
            out.append(f"s_add_u32 m0, s{wr}, s46")
            out.append(f"s_add_u32 s42, s42, {64*4096}")
            for i in range(n):
                if i == 4:
                    out.append("s_add_u32 m0, m0, 4096")
                    out.append("s_nop 0")
                out.append(f"buffer_load_dwordx4 v{22+i}, s[16:19], s47 offen offset:{1024*(i&3)} lds")
            out.append(f"s_add_u32 s47, s47, {8*9216}")
            return out
        ring_loader(a, f"g2v{var}", R, NS, SZ, 4 + n, dma)
    a.label("L_g2_compute")
    VW = [100, 101]; VU = 102; VWc = [103, 104]; VUc = 105
    a("v_and_b32 v7, 1, v3")
    a("v_lshlrev_b32 v7, 2, v7")
    a("v_or_b32 v7, v7, v5")
    a("v_lshlrev_b32 v8, 3, v3")
    a("v_add_u32 v8, v8, v5")
    a("v_lshlrev_b32 v8, 8, v8")
    a("v_lshlrev_b32 v9, 3, v6")
    a("v_add_u32 v8, v8, v9")
    a("s_lshl_b32 s38, s34, 1")
    for sbk in range(2):
        a(f"s_add_u32 s39, s38, {sbk}")
        a(f"v_xor_b32 v9, s39, v7")
        a(f"v_lshlrev_b32 v9, 5, v9")
        a(f"v_add_u32 v{VW[sbk]}, v8, v9")
    a("v_mul_u32_u24 v9, 144, v3")
    a("v_add_u32 v9, v9, v4")
    a("v_lshlrev_b32 v9, 4, v9")
    a(f"v_add_u32 v{VU}, 16384, v9")
    ACC = 16
    for i in range(72):
        a(f"v_mov_b32 v{ACC+i}, 0")
    FR = [112, 156]
    def acc(dbk, sbk):
        b = ACC + (dbk * 2 + sbk) * 4
        return f"v[{b}:{b+3}]"
    def mfmas(st):
        out = []
        for dbk in range(9):
            for sbk in range(2):
                w = FR[st] + 4 * sbk; u = FR[st] + 8 + 4 * dbk
                out.append(f"v_mfma_f32_16x16x32_bf16 {acc(dbk,sbk)}, v[{u}:{u+3}], v[{w}:{w+3}], {acc(dbk,sbk)}")
        return out
    def reads(st, sub):
        out = []
        for sbk in range(2):
            w = FR[st] + 4 * sbk
            out.append(f"ds_read_b64_tr_b16 v[{w}:{w+1}], v{VWc[sbk]} offset:{sub*8192}")
            out.append(f"ds_read_b64_tr_b16 v[{w+2}:{w+3}], v{VWc[sbk]} offset:{sub*8192+1024}")
        for dbk in range(9):
            u = FR[st] + 8 + 4 * dbk
            out.append(f"ds_read_b128 v[{u}:{u+3}], v{VUc} offset:{sub*9216+256*dbk}")
        return out
    def addr_upd(sreg):
        out = [f"v_add_u32 v{VWc[k]}, s{sreg}, v{VW[k]}" for k in range(2)]
        out.append(f"v_add_u32 v{VUc}, s{sreg}, v{VU}")
        return out
    ring_compute(a, "g2", R, NS, SZ, mfmas, reads, addr_upd)
    a("s_lshl_b32 s38, s30, 11")
    a("s_lshl_b32 s39, s31, 7")
    a("s_add_u32 s38, s38, s39")
    a("s_lshl_b32 s39, s34, 5")
    a("s_add_u32 s38, s38, s39")
    a("v_add_u32 v12, s38, v4")
    a("s_mov_b32 s39, 2304")
    a("v_mul_lo_u32 v12, v12, s39")
    a("s_mul_i32 s38, s32, 576")
    a("v_add_u32 v12, s38, v12")
    a("v_lshlrev_b32 v13, 4, v3")
    a("v_add_u32 v12, v12, v13")
    a(f"s_mov_b32 s39, {16*2304}")
    a("s_nop 3")
    for dbk in range(9):
        for sbk in range(2):
            b = ACC + (dbk * 2 + sbk) * 4
            so = "s39" if sbk else "0"
            a(f"buffer_store_dwordx4 v[{b}:{b+3}], v12, s[20:23], {so} offen offset:{64*dbk}")
    a("s_waitcnt vmcnt(0)")
    a.label("L_k3_end")
    a("s_endpgm")
    return name, 200

def gen_k4(a):
    name = "k4_kernel"
    kernel_begin(a, name)
    a("s_cmp_ge_u32 s2, 256")
    a("s_cbranch_scc1 L_k4_end")
    a("s_load_dwordx2 s[4:5], s[0:1], 0")
    a("s_load_dwordx2 s[6:7], s[0:1], 56")
    a("s_load_dwordx2 s[8:9], s[0:1], 80")
    a("s_load_dwordx2 s[10:11], s[0:1], 64")
    a("v_lshrrev_b32 v1, 6, v0")
    a("v_and_b32 v2, 63, v0")
    a("s_nop 0")
    a("v_readfirstlane_b32 s40, v1")
    RA = 0; RB = 20736; QS = 5184; QS3 = 4672
    a("v_mul_u32_u24 v3, 911, v0")
    a("v_lshrrev_b32 v3, 16, v3")
    a("v_mul_u32_u24 v4, 72, v3")
    a("v_sub_u32 v4, v0, v4")
    a("v_lshrrev_b32 v5, 3, v4")
    a("v_and_b32 v6, 7, v4")
    a(f"v_mul_u32_u24 v7, {QS}, v3")
    a("v_mul_u32_u24 v8, 576, v5")
    a("v_add_u32 v7, v7, v8")
    a("s_waitcnt lgkmcnt(0)")
    srd(a, 12, 4, 0, S * D * 2)
    srd(a, 16, 6, 0, S * 2)
    srd(a, 20, 8, PART_OFF, PART_SZ)
    srd(a, 24, 10, 0, S * D * 2)
    srd(a, 36, 8, PT_OFF, PT_SZ)
    a("s_lshl_b32 s42, s2, 6")
    for rnd in range(4):
        a(f"v_add_u32 v10, {320*rnd}, v0")
        a("v_lshrrev_b32 v11, 2, v10")
        a("v_and_b32 v12, 3, v10")
        a("v_lshlrev_b32 v13, 14, v11")
        a("v_lshlrev_b32 v14, 4, v12")
        a("v_add_u32 v13, v13, v14")
        a(f"buffer_load_dwordx4 v[{100+4*rnd}:{103+4*rnd}], v13, s[36:39], s42 offen")
    a("v_cmp_gt_u32 vcc, 288, v0")
    a("s_and_saveexec_b64 s[30:31], vcc")
    a(f"s_mul_i32 s32, s2, {4608*4}")
    a(f"s_mul_i32 s33, s2, {4608*2}")
    a("v_lshlrev_b32 v15, 4, v0")
    a("v_lshlrev_b32 v9, 3, v0")
    PB = 120
    for m in range(4):
        for ks in range(4):
            a(f"s_add_u32 s34, s32, {ks*2048*2304 + m*4608}")
            a(f"buffer_load_dwordx4 v[{PB+16*m+4*ks}:{PB+3+16*m+4*ks}], v15, s[20:23], s34 offen")
        a(f"s_add_u32 s34, s33, {m*2304}")
        a(f"buffer_load_dwordx2 v[{184+2*m}:{185+2*m}], v9, s[12:15], s34 offen")
    a("v_cmp_le_u32 vcc, 144, v0")
    a("s_nop 1")
    a("v_cndmask_b32 v16, 0, 2, vcc")
    a("s_lshl_b32 s35, s2, 4")
    for m in range(4):
        a(f"buffer_load_ushort v{192+m}, v16, s[16:19], s35 offen offset:{4*m}")
    a("s_mov_b64 exec, s[30:31]")
    a("v_cvt_f32_u32 v60, v6")
    for c in range(1, 8):
        a(f"v_mul_f32 v61, {fl(c/64.0)}, v60")
        a(f"v_cos_f32 v{80+2*c}, v61")
        a(f"v_sin_f32 v{81+2*c}, v61")
    a("s_waitcnt vmcnt(24)")
    for rnd in range(4):
        b = 100 + 4 * rnd
        a(f"v_add_u32 v10, {320*rnd}, v0")
        if rnd == 3:
            a("v_cmp_gt_u32 vcc, 1156, v10")
            a("s_and_saveexec_b64 s[30:31], vcc")
        a("v_lshrrev_b32 v11, 2, v10")
        a("v_and_b32 v12, 3, v10")
        a(f"v_mul_u32_u24 v13, {QS3}, v12")
        a("v_cmp_eq_u32 vcc, 0, v11")
        a("v_cmp_eq_u32 s[28:29], 288, v11") if False else None
        a("v_mov_b32 v17, 288")
        a("v_cmp_eq_u32 s[28:29], v17, v11")
        a("s_or_b64 vcc, vcc, s[28:29]")
        a("v_sub_u32 v14, 576, v11")
        a("v_lshlrev_b32 v18, 3, v11")
        a("v_cndmask_b32_e64 v%d, v%d, 0, vcc" % (b+1, b+1))
        a("v_cndmask_b32_e64 v%d, v%d, 0, vcc" % (b+3, b+3))
        a("v_add_u32 v18, v18, v13")
        a("v_lshlrev_b32 v14, 3, v14")
        a("v_add_u32 v14, v14, v13")
        a(f"v_sub_f32 v20, v{b}, v{b+3}")
        a(f"v_add_f32 v21, v{b+1}, v{b+2}")
        a(f"v_add_f32 v22, v{b}, v{b+3}")
        a(f"v_sub_f32 v23, v{b+2}, v{b+1}")
        a(f"ds_write_b64 v18, v[20:21] offset:{RA}")
        a(f"ds_write_b64 v14, v[22:23] offset:{RA}")
    a("s_mov_b64 exec, s[30:31]")
    a("s_waitcnt lgkmcnt(0)")
    a("s_barrier")
    a("v_cmp_gt_u32 vcc, 288, v0")
    a("s_and_saveexec_b64 s[30:31], vcc")
    a(f"v_mul_u32_u24 v22, {QS3}, v3")
    a("v_mul_u32_u24 v23, 9, v6")
    a("v_add_u32 v23, v23, v5")
    a("v_lshlrev_b32 v23, 3, v23")
    a("v_add_u32 v22, v22, v23")
    for e in range(8):
        a(f"ds_read_b64 v[{30+2*e}:{31+2*e}], v22 offset:{RA + 576*e}")
    a("v_lshlrev_b32 v20, 3, v6")
    a("v_add_u32 v20, v7, v20")
    a("v_mul_u32_u24 v21, 72, v6")
    a("v_add_u32 v21, v7, v21")
    a("s_waitcnt lgkmcnt(0)")
    pool = P2(200, 250); g = FG(a, pool)
    ys = g.dft([((30+2*b, 1), (31+2*b, 1)) for b in range(8)], 1)
    for aa in range(8):
        d = 60 + 2 * aa
        if aa == 0:
            g.mov(ys[0][0], d); g.mov(ys[0][1], d + 1); g.frc(ys[0])
        else:
            g.cmul(ys[aa], 80 + 2*aa, 81 + 2*aa, dst=d)
    for aa in range(8):
        d = 60 + 2 * aa
        a(f"ds_write_b64 v20, v[{d}:{d+1}] offset:{RB + 72*aa}")
    a("s_waitcnt lgkmcnt(0)")
    a("s_barrier")
    for c in range(8):
        a(f"ds_read_b64 v[{30+2*c}:{31+2*c}], v21 offset:{RB + 8*c}")
    a("s_waitcnt lgkmcnt(0)")
    pool = P2(200, 250); g = FG(a, pool)
    g.dft([((30+2*b, 1), (31+2*b, 1)) for b in range(8)], 1, [60 + 2*b for b in range(8)])
    for b in range(8):
        d = 60 + 2 * b
        a(f"ds_write_b64 v20, v[{d}:{d+1}] offset:{RA + 64*b}")
    a("s_mov_b64 exec, s[30:31]")
    a("v_cvt_f32_u32 v60, v2")
    for k1 in range(1, 9):
        a(f"v_mul_f32 v61, {fl(k1/576.0)}, v60")
        a(f"v_cos_f32 v{80+2*k1}, v61")
        a(f"v_sin_f32 v{81+2*k1}, v61")
    a("s_waitcnt lgkmcnt(0)")
    a("s_barrier")
    a("s_cmp_ge_u32 s40, 4")
    a("s_cbranch_scc1 L_k4_skip1")
    a(f"s_mul_i32 s43, s40, {QS}")
    a("v_lshlrev_b32 v10, 3, v2")
    a("v_add_u32 v10, s43, v10")
    for k1 in range(9):
        a(f"ds_read_b64 v[{30+2*k1}:{31+2*k1}], v10 offset:{RA + 576*k1}")
    a("s_waitcnt lgkmcnt(0)")
    pool = P2(200, 250); g = FG(a, pool)
    xs = []
    for k1 in range(9):
        x = ((30+2*k1, 1), (31+2*k1, 1))
        xs.append(x if k1 == 0 else g.cmul(x, 80 + 2*k1, 81 + 2*k1))
    g.dft(xs, 1, [60 + 2*n for n in range(9)])
    sc = fl(1.0 / (2.0 * 2048 * 576))
    for n in range(9):
        a(f"v_mul_f32 v{60+2*n}, {sc}, v{60+2*n}")
        a(f"v_mul_f32 v{61+2*n}, {sc}, v{61+2*n}")
        round_bf16_pair(a, 60 + 2*n, 61 + 2*n, 17 + (n & 1))
    a("s_mul_i32 s43, s40, 4608")
    a("v_lshlrev_b32 v10, 2, v2")
    a("v_add_u32 v10, s43, v10")
    for n in range(9):
        a(f"ds_write_b32 v10, v{60+2*n} offset:{RB + 256*n}")
        a(f"ds_write_b32 v10, v{61+2*n} offset:{RB + 2304 + 256*n}")
    a.label("L_k4_skip1")
    a("s_waitcnt lgkmcnt(0)")
    a("s_barrier")
    a("v_cmp_gt_u32 vcc, 288, v0")
    a("s_and_saveexec_b64 s[30:31], vcc")
    a("s_cbranch_execz L_k4_end")
    for m in range(4):
        a(f"ds_read_b128 v[{30+4*m}:{33+4*m}], v15 offset:{RB + 4608*m}")
    a("s_waitcnt vmcnt(0) lgkmcnt(0)")
    for m in range(4):
        b = PB + 16 * m
        for r in range(4):
            a(f"v_add_f32 v{b+r}, v{b+r}, v{b+4+r}")
            a(f"v_add_f32 v{b+8+r}, v{b+8+r}, v{b+12+r}")
            a(f"v_add_f32 v{b+r}, v{b+r}, v{b+8+r}")
        a(f"v_lshlrev_b32 v{192+m}, 16, v{192+m}")
        round_bf16_pair(a, b, b + 1, 4)
        round_bf16_pair(a, b + 2, b + 3, 5)
        for r in range(4):
            a(f"v_add_f32 v{b+r}, v{b+r}, v{192+m}")
        round_bf16_pair(a, b, b + 1, 4)
        round_bf16_pair(a, b + 2, b + 3, 5)
        a(f"v_lshlrev_b32 v{b+4}, 16, v{184+2*m}")
        a(f"v_and_b32 v{b+5}, 0xffff0000, v{184+2*m}")
        a(f"v_lshlrev_b32 v{b+6}, 16, v{185+2*m}")
        a(f"v_and_b32 v{b+7}, 0xffff0000, v{185+2*m}")
        for r in range(4):
            a(f"v_add_f32 v{b+4+r}, v{b+4+r}, v{30+4*m+r}")
        round_bf16_pair(a, b + 4, b + 5, 4)
        round_bf16_pair(a, b + 6, b + 7, 5)
        for r in range(4):
            a(f"v_add_f32 v{b+r}, v{b+r}, v{b+4+r}")
        a(f"v_cvt_pk_bf16_f32 v{b+8}, v{b}, v{b+1}")
        a(f"v_cvt_pk_bf16_f32 v{b+9}, v{b+2}, v{b+3}")
        a(f"s_add_u32 s34, s33, {m*2304}")
        a(f"buffer_store_dwordx2 v[{b+8}:{b+9}], v9, s[24:27], s34 offen")
    a("s_waitcnt vmcnt(0)")
    a.label("L_k4_end")
    a("s_endpgm")
    return name, 256

def main(out):
    a = Asm()
    hdr = open("parallel_sum__spectral_gfnet__mixer_token_mlp__prompt.s.ref").read().split("\n")
    for l in hdr:
        if l.startswith("; @launch"):
            break
        a.raw(l)
    a.raw(f"; @launch kernel=k1_kernel grid=({256+K1_NWT},1,1) block=(320,1,1) lds=51200")
    a.raw("; @launch kernel=k2_kernel grid=(253,1,1) block=(512,1,1) lds=156672")
    a.raw("; @launch kernel=k3_kernel grid=(256,1,1) block=(512,1,1) lds=139264")
    a.raw("; @launch kernel=k4_kernel grid=(256,1,1) block=(320,1,1) lds=41472")
    a.raw('.amdgcn_target "amdgcn-amd-amdhsa--gfx950"')
    a.raw(".text")
    ks = []
    for g in (gen_k1, gen_k2, gen_k3, gen_k4):
        ks.append(g(a))
    a.raw('.section .rodata,"a"')
    for n, v in ks:
        kd(a, n, v)
    open(out, "w").write(a.text())

if __name__ == "__main__":
    for x in sys.argv[2:]: DBG.add(x)
    main(sys.argv[1] if len(sys.argv) > 1 else "parallel_sum__spectral_gfnet__mixer_token_mlp__prompt.s")
```

```python
import math, sys
from fftlib import Pool, FG

S, D, F = 2048, 576, 4608
DF = 289
HT_OFF = 0;                 HT_SZ = 256 * 576 * 16
U_OFF = 0x400000;           U_SZ = 576 * 576 * 16
PART_OFF = 0x1000000;       PART_SZ = 4 * 2048 * 576 * 4
PT_OFF = 0x3000000;         PBLK = 290 * 64; PT_SZ = 256 * PBLK
WT_OFF = 0x3800000;         WT_SZ = 289 * 2048 * 4
ZT_OFF = 0x4000000
YA_OFF = 0x4800000;         YA_SZ = 2048 * 576 * 2
FL_OFF = 0x5000000;         FL_SZ = 2 * 256 * 128

class Asm:
    def __init__(self):
        self.lines = []
        self.lab = 0
    def __call__(self, s):
        for l in s.strip("\n").split("\n"):
            self.lines.append("    " + l.strip())
    def label(self, name):
        self.lines.append(name + ":")
    def newlabel(self, p="L"):
        self.lab += 1
        return f"{p}_{self.lab}"
    def raw(self, s):
        self.lines.append(s)
    def text(self):
        return "\n".join(self.lines) + "\n"

def f32bits(x):
    import struct
    return struct.unpack("<I", struct.pack("<f", x))[0]
def fl(x):
    return "0x%08x" % f32bits(x)

def srd(a, sd, sbase, off, size):
    if off:
        a(f"s_add_u32 s{sd}, s{sbase}, {off}")
        a(f"s_addc_u32 s{sd+1}, s{sbase+1}, 0")
    else:
        a(f"s_mov_b32 s{sd}, s{sbase}")
        a(f"s_mov_b32 s{sd+1}, s{sbase+1}")
    a(f"s_mov_b32 s{sd+2}, {size}")
    a(f"s_mov_b32 s{sd+3}, 0x00020000")

def kernel_begin(a, name):
    a.raw(f".globl {name}")
    a.raw(".p2align 8")
    a.raw(f".type {name},@function")
    a.label(name)

def kd(a, name, vgpr, sgpr=102):
    acc = (vgpr + 3) // 4 * 4
    a.raw(".p2align 6")
    a.raw(f".amdhsa_kernel {name}")
    a.raw(f"  .amdhsa_next_free_vgpr {vgpr}")
    a.raw(f"  .amdhsa_next_free_sgpr {sgpr}")
    a.raw(f"  .amdhsa_accum_offset {acc}")
    a.raw("  .amdhsa_group_segment_fixed_size 0")
    a.raw("  .amdhsa_kernarg_size 88")
    a.raw("  .amdhsa_user_sgpr_count 2")
    a.raw("  .amdhsa_user_sgpr_kernarg_segment_ptr 1")
    a.raw("  .amdhsa_system_sgpr_workgroup_id_x 1")
    a.raw(".end_amdhsa_kernel")

def wave_reduce(a, vregs, sregs):
    for ctrl in ["row_shr:1", "row_shr:2", "row_shr:4", "row_shr:8"]:
        for v in vregs:
            a(f"v_add_f32_dpp v{v}, v{v}, v{v} {ctrl} row_mask:0xf bank_mask:0xf bound_ctrl:0")
        if len(vregs) < 3:
            a("s_nop 1")
    for v in vregs:
        a(f"v_add_f32_dpp v{v}, v{v}, v{v} row_bcast:15 row_mask:0xa bank_mask:0xf")
    if len(vregs) < 3:
        a("s_nop 1")
    for v in vregs:
        a(f"v_add_f32_dpp v{v}, v{v}, v{v} row_bcast:31 row_mask:0xc bank_mask:0xf")
    a("s_nop 1")
    for v, s in zip(vregs, sregs):
        a(f"v_readlane_b32 s{s}, v{v}, 63")

def round_bf16_pair(a, va, vb, vt):
    a(f"v_cvt_pk_bf16_f32 v{vt}, v{va}, v{vb}")
    a(f"v_lshlrev_b32 v{va}, 16, v{vt}")
    a(f"v_and_b32 v{vb}, 0xffff0000, v{vt}")

def layernorm_pair(a, xa, xb, oa, ob, t0, sbase):
    T = [t0 + i for i in range(12)]
    s0, s1, s2, s3 = sbase, sbase + 1, sbase + 2, sbase + 3
    a(f"v_add_f32 v{T[0]}, v{xa[0]}, v{xa[1]}")
    a(f"v_add_f32 v{T[1]}, v{xb[0]}, v{xb[1]}")
    for i in range(2, 9):
        a(f"v_add_f32 v{T[0]}, v{T[0]}, v{xa[i]}")
        a(f"v_add_f32 v{T[1]}, v{T[1]}, v{xb[i]}")
    a("s_nop 1")
    wave_reduce(a, [T[0], T[1]], [s0, s1])
    a("s_nop 1")
    c576 = fl(1.0 / 576.0)
    a(f"v_mov_b32 v{T[10]}, {c576}")
    a(f"v_mul_f32 v{T[2]}, s{s0}, v{T[10]}")
    a(f"v_mul_f32 v{T[3]}, s{s1}, v{T[10]}")
    a(f"v_sub_f32 v{T[4]}, v{xa[0]}, v{T[2]}")
    a(f"v_sub_f32 v{T[5]}, v{xb[0]}, v{T[3]}")
    a(f"v_mul_f32 v{T[0]}, v{T[4]}, v{T[4]}")
    a(f"v_mul_f32 v{T[1]}, v{T[5]}, v{T[5]}")
    for i in range(1, 9):
        a(f"v_sub_f32 v{T[4]}, v{xa[i]}, v{T[2]}")
        a(f"v_sub_f32 v{T[5]}, v{xb[i]}, v{T[3]}")
        a(f"v_fmac_f32 v{T[0]}, v{T[4]}, v{T[4]}")
        a(f"v_fmac_f32 v{T[1]}, v{T[5]}, v{T[5]}")
    a("s_nop 1")
    wave_reduce(a, [T[0], T[1]], [s2, s3])
    a("s_nop 1")
    a(f"v_mul_f32 v{T[6]}, s{s2}, v{T[10]}")
    a(f"v_mul_f32 v{T[7]}, s{s3}, v{T[10]}")
    round_bf16_pair(a, T[6], T[7], T[8])
    round_bf16_pair(a, T[2], T[3], T[9])
    eps = fl(1e-5)
    a(f"v_add_f32 v{T[6]}, {eps}, v{T[6]}")
    a(f"v_add_f32 v{T[7]}, {eps}, v{T[7]}")
    round_bf16_pair(a, T[6], T[7], T[8])
    a(f"v_sqrt_f32 v{T[6]}, v{T[6]}")
    a(f"v_sqrt_f32 v{T[7]}, v{T[7]}")
    a("s_nop 0")
    round_bf16_pair(a, T[6], T[7], T[8])
    a(f"v_rcp_f32 v{T[6]}, v{T[6]}")
    a(f"v_rcp_f32 v{T[7]}, v{T[7]}")
    for i in range(9):
        a(f"v_sub_f32 v{oa[i]}, v{xa[i]}, v{T[2]}")
        a(f"v_sub_f32 v{ob[i]}, v{xb[i]}, v{T[3]}")
        round_bf16_pair(a, oa[i], ob[i], T[8] if i % 2 == 0 else T[9])
        a(f"v_mul_f32 v{oa[i]}, v{oa[i]}, v{T[6]}")
        a(f"v_mul_f32 v{ob[i]}, v{ob[i]}, v{T[7]}")
        round_bf16_pair(a, oa[i], ob[i], T[4] if i % 2 == 0 else T[5])

K1_NWT = 64
K1_NPF = 64
PFROWS = 2048
W2PF_FFT = False
W2PF_GEMM = False
K1PF = False
KROT = True
KROT3 = True
PF_LEAD1 = 12
PF_LEAD2 = 10
def gen_k1(a):
    name = "k1_kernel"
    kernel_begin(a, name)
    stamp(a, 0)
    if "stamp" in DBG: a("s_memrealtime s[76:77]")
    a(f"s_cmp_ge_u32 s2, {256 + K1_NWT}")
    a("s_cbranch_scc1 L_k1_end")
    a("s_sub_u32 s3, s2, 256")
    a("s_load_dwordx2 s[40:41], s[0:1], 32")
    a("s_load_dwordx2 s[4:5], s[0:1], 0")
    a("s_load_dwordx2 s[6:7], s[0:1], 80")
    a("s_load_dwordx4 s[36:39], s[0:1], 8")
    a("v_lshrrev_b32 v1, 6, v0")
    a("v_and_b32 v2, 63, v0")
    a("s_nop 0")
    a("v_readfirstlane_b32 s20, v1")
    a("s_cmp_ge_u32 s2, 256")
    a("s_cbranch_scc1 L_k1_wt")
    a("s_waitcnt lgkmcnt(0)")
    srd(a, 8, 4, 0, S * D * 2)
    srd(a, 12, 6, HT_OFF, HT_SZ)
    srd(a, 16, 6, PT_OFF, PT_SZ)
    E1 = 9216; E2 = E1 + 20736; QS = 5184; E3 = E1; QS3 = 4672
    a("v_mul_u32_u24 v3, 911, v0")
    a("v_lshrrev_b32 v3, 16, v3")
    a("v_mul_u32_u24 v4, 72, v3")
    a("v_sub_u32 v4, v0, v4")
    a("v_lshrrev_b32 v5, 3, v4")
    a("v_and_b32 v6, 7, v4")
    a(f"v_mul_u32_u24 v7, {QS}, v3")
    a("v_mul_u32_u24 v8, 576, v5")
    a("v_add_u32 v7, v7, v8")
    a("s_cmp_ge_u32 s20, 4")
    a("s_cbranch_scc1 L_k1_pf")
    a("s_lshl_b32 s21, s2, 3")
    a("s_lshl_b32 s22, s20, 1")
    a("s_add_u32 s21, s21, s22")
    a("s_mul_i32 s21, s21, 1152")
    a("v_lshlrev_b32 v9, 1, v2")
    XA = list(range(10, 19)); XB = list(range(20, 29))
    for i in range(9):
        a(f"buffer_load_ushort v{XA[i]}, v9, s[8:11], s21 offen offset:{128*i}")
        a(f"buffer_load_ushort v{XB[i]}, v9, s[8:11], s21 offen offset:{1152+128*i}")
    a("v_cvt_f32_u32 v60, v2")
    for k1 in range(1, 9):
        a(f"v_mul_f32 v61, {fl(-k1/576.0)}, v60")
        a(f"v_cos_f32 v{80+2*k1}, v61")
        a(f"v_sin_f32 v{81+2*k1}, v61")
    a("s_waitcnt vmcnt(0)")
    stamp(a, 1)
    for i in range(9):
        a(f"v_lshlrev_b32 v{XA[i]}, 16, v{XA[i]}")
        a(f"v_lshlrev_b32 v{XB[i]}, 16, v{XB[i]}")
    NA = [30 + 2*i for i in range(9)]; NB = [31 + 2*i for i in range(9)]
    layernorm_pair(a, XA, XB, NA, NB, 60, 24)
    HA = list(range(10, 19)); HB = list(range(20, 29))
    layernorm_pair(a, NA, NB, HA, HB, 60, 24)
    a("v_lshlrev_b32 v9, 4, v2")
    a("s_lshl_b32 s22, s20, 2")
    a("v_add_u32 v9, s22, v9")
    for i in range(9):
        a(f"v_cvt_pk_bf16_f32 v{50+i}, v{HA[i]}, v{HB[i]}")
    for i in range(9):
        a(f"ds_write_b32 v9, v{50+i} offset:{1024*i}")
    stamp(a, 2)
    pool = Pool(98, 128)
    g = FG(a, pool)
    class P2(Pool):
        def release(self, r):
            if r < self.lo or r >= self.hi: return
            Pool.release(self, r)
    pool = P2(98, 128); g = FG(a, pool)
    xs = [((NA[i], 1), (NB[i], 1)) for i in range(9)]
    ys = g.dft(xs, -1)
    a(f"s_mul_i32 s22, s20, {QS}")
    a("v_lshlrev_b32 v9, 3, v2")
    a("v_add_u32 v9, s22, v9")
    for k1 in range(9):
        d = 60 + 2 * k1
        if k1 == 0:
            g.mov(ys[0][0], d); g.mov(ys[0][1], d + 1); g.frc(ys[0])
        else:
            g.cmul(ys[k1], 80 + 2*k1, 81 + 2*k1, dst=d)
    for k1 in range(9):
        d = 60 + 2 * k1
        a(f"ds_write_b64 v9, v[{d}:{d+1}] offset:{E1 + 576*k1}")
    a.label("L_k1_skipln")
    a("v_cvt_f32_u32 v60, v6")
    for c in range(1, 8):
        a(f"v_mul_f32 v61, {fl(-c/64.0)}, v60")
        a(f"v_cos_f32 v{80+2*c}, v61")
        a(f"v_sin_f32 v{81+2*c}, v61")
    a("s_waitcnt lgkmcnt(0)")
    a("s_barrier")
    stamp(a, 3)
    a("v_cmp_gt_u32 vcc, 288, v0")
    a("s_and_saveexec_b64 s[30:31], vcc")
    a("v_lshlrev_b32 v9, 4, v0")
    a("ds_read_b128 v[10:13], v9")
    a("ds_read_b128 v[14:17], v9 offset:4608")
    a("v_lshlrev_b32 v20, 3, v6")
    a("v_add_u32 v20, v7, v20")
    for b in range(8):
        a(f"ds_read_b64 v[{30+2*b}:{31+2*b}], v20 offset:{E1 + 64*b}")
    a(f"s_mul_i32 s23, s2, {576*16}")
    a("s_waitcnt lgkmcnt(8)")
    a("buffer_store_dwordx4 v[10:13], v9, s[12:15], s23 offen")
    a("v_add_u32 v21, 4608, v9")
    a("buffer_store_dwordx4 v[14:17], v21, s[12:15], s23 offen")
    a("s_waitcnt lgkmcnt(0)")
    pool = P2(98, 128); g = FG(a, pool)
    xs = [((30+2*b, 1), (31+2*b, 1)) for b in range(8)]
    ys = g.dft(xs, -1)
    a("v_mul_u32_u24 v22, 72, v6")
    a("v_add_u32 v22, v7, v22")
    for c in range(8):
        d = 60 + 2 * c
        if c == 0:
            g.mov(ys[0][0], d); g.mov(ys[0][1], d + 1); g.frc(ys[0])
        else:
            g.cmul(ys[c], 80 + 2*c, 81 + 2*c, dst=d)
    for c in range(8):
        d = 60 + 2 * c
        a(f"ds_write_b64 v22, v[{d}:{d+1}] offset:{E2 + 8*c}")
    a("s_waitcnt lgkmcnt(0)")
    a("s_barrier")
    stamp(a, 4)
    for aa in range(8):
        a(f"ds_read_b64 v[{30+2*aa}:{31+2*aa}], v20 offset:{E2 + 72*aa}")
    a("s_waitcnt lgkmcnt(0)")
    pool = P2(98, 128); g = FG(a, pool)
    xs = [((30+2*b, 1), (31+2*b, 1)) for b in range(8)]
    ys = g.dft(xs, -1, [60 + 2*e for e in range(8)])
    a(f"v_mul_u32_u24 v22, {QS3}, v3")
    a("v_mul_u32_u24 v23, 9, v6")
    a("v_add_u32 v23, v23, v5")
    a("v_lshlrev_b32 v23, 3, v23")
    a("v_add_u32 v22, v22, v23")
    for e in range(8):
        d = 60 + 2 * e
        a(f"ds_write_b64 v22, v[{d}:{d+1}] offset:{E3 + 576*e}")
    a("s_mov_b64 exec, s[30:31]")
    a("s_waitcnt lgkmcnt(0)")
    a("s_barrier")
    stamp(a, 5)
    a(f"s_mul_i32 s23, s2, {PBLK}")
    for rnd in range(4):
        a(f"v_add_u32 v10, {320*rnd}, v0")
        if rnd == 3:
            a("v_cmp_gt_u32 vcc, 1156, v10")
            a("s_and_saveexec_b64 s[30:31], vcc")
            a("s_cbranch_execz L_k1_end")
        a("v_lshrrev_b32 v11, 2, v10")
        a("v_and_b32 v12, 3, v10")
        a(f"v_mul_u32_u24 v13, {QS3}, v12")
        a("v_sub_u32 v14, 576, v11")
        a("v_cmp_eq_u32 vcc, 0, v11")
        a("v_lshlrev_b32 v15, 3, v11")
        a("v_add_u32 v15, v15, v13")
        a("v_cndmask_b32 v14, v14, v11, vcc")
        a("v_lshlrev_b32 v14, 3, v14")
        a("v_add_u32 v14, v14, v13")
        b = 30 + 8 * rnd
        a(f"ds_read_b64 v[{b}:{b+1}], v15 offset:{E3}")
        a(f"ds_read_b64 v[{b+2}:{b+3}], v14 offset:{E3}")
        a(f"v_lshlrev_b32 v{70+rnd}, 4, v10")
        a("s_waitcnt lgkmcnt(0)")
        a(f"v_add_f32 v{b+4}, v{b}, v{b+2}")
        a(f"v_sub_f32 v{b+5}, v{b+1}, v{b+3}")
        a(f"v_add_f32 v{b+6}, v{b+1}, v{b+3}")
        a(f"v_sub_f32 v{b+7}, v{b+2}, v{b}")
        a(f"buffer_store_dwordx4 v[{b+4}:{b+7}], v{70+rnd}, s[16:19], s23 offen")
    stamp(a, 6)
    if "stamp" in DBG: a("s_waitcnt vmcnt(0)")
    stamp(a, 7)
    if "stamp" in DBG:
        a("s_memrealtime s[78:79]")
        a("s_cmp_lg_u32 s20, 0")
        a("s_cbranch_scc1 L_k1_nostamp")
        a("s_mov_b64 exec, 1")
        stamp_flush(a, 10, 6, 1)
        a("s_waitcnt vmcnt(0)")
        a.label("L_k1_nostamp")
    a("s_endpgm")
    a.label("L_k1_wt")
    if "nowt" in DBG: a("s_endpgm")
    a("s_waitcnt lgkmcnt(0)")
    srd(a, 8, 36, 0, S * DF * 2)
    srd(a, 12, 38, 0, S * DF * 2)
    srd(a, 16, 6, WT_OFF, WT_SZ)
    a("s_mov_b32 s21, s3")
    a("s_mul_i32 s22, s21, 18496")
    a("v_lshlrev_b32 v9, 4, v0")
    for rnd in range(4):
        a(f"v_add_u32 v10, {320*16*rnd}, v9")
        if rnd == 3:
            a("v_cmp_gt_u32 vcc, 18496, v10")
            a("s_and_saveexec_b64 s[30:31], vcc")
        a(f"buffer_load_dwordx4 v[{20+8*rnd}:{23+8*rnd}], v10, s[8:11], s22 offen")
        a(f"buffer_load_dwordx4 v[{24+8*rnd}:{27+8*rnd}], v10, s[12:15], s22 offen")
    a("s_mov_b64 exec, s[30:31]")
    a("s_waitcnt vmcnt(0)")
    for rnd in range(4):
        a(f"v_add_u32 v10, {320*16*rnd}, v9")
        if rnd == 3:
            a("v_cmp_gt_u32 vcc, 18496, v10")
            a("s_and_saveexec_b64 s[30:31], vcc")
        a(f"ds_write_b128 v10, v[{20+8*rnd}:{23+8*rnd}]")
        a(f"ds_write_b128 v10, v[{24+8*rnd}:{27+8*rnd}] offset:18496")
    a("s_mov_b64 exec, s[30:31]")
    a("s_waitcnt lgkmcnt(0)")
    a("s_barrier")
    a("s_lshl_b32 s23, s21, 7")
    a("v_and_b32 v11, 31, v0")
    a("v_mul_u32_u24 v12, 578, v11")
    a("v_lshrrev_b32 v13, 5, v0")
    a("v_lshlrev_b32 v14, 1, v13")
    a("v_add_u32 v12, v12, v14")
    a("v_lshlrev_b32 v14, 13, v13")
    a("v_lshlrev_b32 v15, 2, v11")
    a("v_add_u32 v14, v14, v15")
    for base in range(0, 29, 7):
        rr = list(range(base, min(base + 7, 28)))
        if base == 28:
            rr = [28]
            a("v_cmp_gt_u32 vcc, 288, v0")
            a("s_and_saveexec_b64 s[30:31], vcc")
        for i, rnd in enumerate(rr):
            r0 = 20 + 2 * i
            a(f"ds_read_u16 v{r0}, v12 offset:{20*rnd}")
            a(f"ds_read_u16 v{r0+1}, v12 offset:{18496 + 20*rnd}")
        a("s_waitcnt lgkmcnt(0)")
        for i, rnd in enumerate(rr):
            r0 = 20 + 2 * i
            a(f"v_lshl_or_b32 v{40+i}, v{r0+1}, 16, v{r0}")
            a(f"s_add_u32 s24, s23, {rnd*10*8192}")
            a(f"buffer_store_dword v{40+i}, v14, s[16:19], s24 offen")
    a("s_waitcnt vmcnt(0)")
    a("s_endpgm")
    a.label("L_k1_pf")
    srd(a, 48, 6, FL_OFF, FL_SZ)
    a("s_lshl_b32 s21, s2, 7")
    a("v_mov_b32 v9, 0")
    a("v_lshlrev_b32 v10, 15, v2")
    a("buffer_store_dword v9, v10, s[48:51], s21 offen")
    if not K1PF: a("s_branch L_k1_skipln")
    srd(a, 44, 40, 0, S * F * 2)
    a("s_mul_i32 s21, s2, 9216")
    a("v_lshlrev_b32 v9, 7, v2")
    a("buffer_load_dword v76, v9, s[8:11], s21 offen")
    a("s_waitcnt vmcnt(0)")
    a("s_and_b32 s22, s2, 7")
    a("s_lshr_b32 s23, s2, 3")
    a(f"s_mul_i32 s23, s23, {PFROWS//32}")
    a("s_mul_i32 s22, s22, 1152")
    a("s_mov_b32 s24, 9216")
    nitems = PFROWS // 32 * 9
    for i in range((nitems + 63) // 64):
        a(f"v_add_u32 v10, {64*i}, v2")
        a("v_mul_u32_u24 v11, 7282, v10")
        a("v_lshrrev_b32 v11, 16, v11")
        a("v_mul_u32_u24 v12, 9, v11")
        a("v_sub_u32 v12, v10, v12")
        a("v_add_u32 v11, s23, v11")
        a("v_mul_lo_u32 v11, v11, s24")
        a("v_lshlrev_b32 v12, 7, v12")
        a("v_add_u32 v11, v11, v12")
        if (i + 1) * 64 > nitems:
            a(f"v_cmp_gt_u32 vcc, {nitems}, v10")
            a("s_and_saveexec_b64 s[30:31], vcc")
        a(f"buffer_load_dword v76, v11, s[44:47], s22 offen")
        if (i + 1) * 64 > nitems:
            a("s_mov_b64 exec, s[30:31]")
    a("s_branch L_k1_skipln")
    a.label("L_k1_end")
    a("s_endpgm")
    return name, 128

DBG = set()
STAMP_OFF = 0x8000000
def stamp(a, idx):
    if "stamp" in DBG:
        a(f"s_memtime s[{60+2*idx}:{61+2*idx}]")
def stamp_flush(a, n, wsbase, slot):
    if "stamp" not in DBG: return
    a("s_waitcnt lgkmcnt(0)")
    srd(a, 56, wsbase, STAMP_OFF + slot * 0x10000, 0x10000)
    a("s_lshl_b32 s55, s2, 6")
    for i in range(n):
        a(f"v_mov_b32 v121, s{60+2*i}")
        a(f"v_mov_b32 v120, {4*i}")
        a(f"buffer_store_dword v121, v120, s[56:59], s55 offen")
def interleave(a, mf, other, per=2):
    if "nomfma" in DBG: mf = []
    if "noread" in DBG: other = []
    j = 0
    for i, m in enumerate(mf):
        a(m)
        k = min(len(other), (i + 1) * per)
        while j < k:
            a(other[j]); j += 1
    while j < len(other):
        a(other[j]); j += 1

def ring_loader(a, tag, R, NS, SZ, n, dma, pf=None, done=None):
    if "nodma" in DBG:
        dma = lambda wr: []
    if not KROT: a("s_mov_b32 s42, 0")
    for st in range(R):
        a(f"s_mov_b32 s40, {st*SZ}")
        for x in dma(40): a(x)
    a(f"s_waitcnt vmcnt({(R-1)*n})")
    a("s_barrier")
    a("s_mov_b32 s40, 0")
    nst = NS - R
    a(f"s_mov_b32 s45, {nst}")
    lab = f"L_{tag}_ld"
    a.label(lab)
    a(f"s_waitcnt vmcnt({(R-2)*n})")
    a("s_barrier")
    for x in dma(40): a(x)
    a(f"s_add_u32 s40, s40, {SZ}")
    a(f"s_cmp_eq_u32 s40, {R*SZ}")
    a("s_cselect_b32 s40, 0, s40")
    a("s_sub_u32 s45, s45, 1")
    a("s_cmp_lg_u32 s45, 0")
    a(f"s_cbranch_scc1 {lab}")
    npf = 0
    if pf is not None:
        npf = pf()
    for i in range(nst, NS):
        last_issued = NS - 1
        vm = max(0, last_issued - (i + 1)) * n + npf
        a(f"s_waitcnt vmcnt({vm})")
        a("s_barrier")
    if done is None: a("s_endpgm")
    else: a(f"s_branch {done}")

def ring_compute(a, tag, R, NS, SZ, mfmas, reads, addr_upd, hook=None):
    a("s_barrier")
    a("s_mov_b32 s41, 0")
    for x in addr_upd(41): a(x)
    for x in reads(0, 0): a(x)
    a(f"s_mov_b32 s45, {NS-1}")
    lab = f"L_{tag}_cp"
    a.label(lab)
    for h in (hook or []):
        if h.endswith(":"): a.label(h[:-1])
        else: a(h)
    a("s_waitcnt lgkmcnt(0)")
    interleave(a, mfmas(0), reads(1, 1))
    a(f"s_add_u32 s41, s41, {SZ}")
    a(f"s_cmp_eq_u32 s41, {R*SZ}")
    a("s_cselect_b32 s41, 0, s41")
    for x in addr_upd(41): a(x)
    a("s_waitcnt lgkmcnt(0)")
    a("s_barrier")
    interleave(a, mfmas(1), reads(0, 0))
    a("s_sub_u32 s45, s45, 1")
    a("s_cmp_lg_u32 s45, 0")
    a(f"s_cbranch_scc1 {lab}")
    a("s_waitcnt lgkmcnt(0)")
    interleave(a, mfmas(0), reads(1, 1))
    a("s_waitcnt lgkmcnt(0)")
    a("s_barrier")
    interleave(a, mfmas(1), [])

def poll_flags(a, tag, sfl, phase_off, vmask_gen, nld=4, vtmp=244, maxspin=400000):
    a(f"v_lshlrev_b32 v{vtmp+4}, 7, v2")
    a(f"s_mov_b32 s50, {maxspin}")
    a.label(f"L_poll_{tag}")
    for i in nld:
        a(f"s_mov_b32 s51, {phase_off + i*64*128}")
        a(f"buffer_load_dword v{vtmp+i}, v{vtmp+4}, s[{sfl}:{sfl+3}], s51 offen sc0 sc1")
    a("s_waitcnt vmcnt(0)")
    first = True
    for i in nld:
        a(f"v_or_b32 v{vtmp+i}, v{vtmp+i}, v{vtmp+8+i}")
        if not first: a(f"v_min_u32 v{vtmp+nld[0]}, v{vtmp+nld[0]}, v{vtmp+i}")
        first = False
    a(f"v_cmp_eq_u32 vcc, 0, v{vtmp+nld[0]}")
    a("s_sub_u32 s50, s50, 1")
    a("s_cmp_eq_u32 s50, 0")
    a(f"s_cbranch_scc1 L_pollx_{tag}")
    a("s_cmp_eq_u64 vcc, 0")
    a(f"s_cbranch_scc1 L_pollx_{tag}")
    a("s_sleep 2")
    a(f"s_branch L_poll_{tag}")
    a.label(f"L_pollx_{tag}")

def set_flag(a, sfl, phase_off):
    a("s_waitcnt vmcnt(0) lgkmcnt(0)")
    a("s_barrier")
    lab = a.newlabel("L_nf")
    a("s_cmp_lg_u32 s33, 0")
    a(f"s_cbranch_scc1 {lab}")
    a("s_lshl_b32 s51, s2, 7")
    a(f"s_add_u32 s51, s51, {phase_off}")
    a("v_mov_b32 v244, 1")
    a("v_mov_b32 v245, 0")
    a("s_mov_b64 s[30:31], exec")
    a("s_mov_b64 exec, 1")
    a(f"buffer_store_dword v244, v245, s[{sfl}:{sfl+3}], s51 offen sc0 sc1")
    a("s_mov_b64 exec, s[30:31]")
    a.label(lab)

def gen_gemm1(a):
    R = 5; NS = 32; SZ = 28672
    srd(a, 12, 4, 0, S * F * 2)
    srd(a, 16, 8, HT_OFF, HT_SZ)
    srd(a, 20, 8, U_OFF, U_SZ)
    srd(a, 24, 6, 0, F * 2)
    a("s_and_b32 s28, s2, 7")
    a("s_lshr_b32 s29, s2, 3")
    a("s_mul_i32 s28, s28, 27")
    a("s_add_u32 s28, s28, s29")
    a("s_mul_i32 s29, s28, 171")
    a("s_lshr_b32 s29, s29, 10")
    a("s_mul_i32 s30, s29, 6")
    a("s_sub_u32 s30, s28, s30")
    a("s_lshl_b32 s31, s29, 8")
    a("s_mul_i32 s32, s30, 1536")
    a("s_and_b32 s34, s33, 3")
    a("s_lshr_b32 s35, s33, 2")
    a("s_and_b32 s36, s34, 1")
    a("s_lshr_b32 s37, s34, 1")
    a("v_lshrrev_b32 v3, 4, v2")
    a("v_and_b32 v4, 15, v2")
    a("v_lshrrev_b32 v5, 2, v4")
    a("v_and_b32 v6, 3, v4")
    a("s_cmp_eq_u32 s35, 0")
    a("s_cbranch_scc1 L_g1_compute")
    a("s_lshl_b32 s38, s34, 4")
    a("v_add_u32 v9, s38, v3")
    a("s_mov_b32 s39, 9216")
    a("v_mul_lo_u32 v9, v9, s39")
    a("v_add_u32 v9, s31, v9")
    a("v_lshlrev_b32 v10, 1, v3")
    a("v_xor_b32 v11, v10, v4")
    a("v_lshlrev_b32 v11, 4, v11")
    a("v_add_u32 v20, v9, v11")
    a("v_xor_b32 v11, 8, v10")
    a("v_xor_b32 v11, v11, v4")
    a("v_lshlrev_b32 v11, 4, v11")
    a("v_add_u32 v21, v9, v11")
    for i in range(3):
        a("s_mul_i32 s38, s34, 192")
        a(f"s_add_u32 s38, s38, {64*i}")
        a("v_add_u32 v9, s38, v2")
        a("v_mul_u32_u24 v10, 683, v9")
        a("v_lshrrev_b32 v10, 16, v10")
        a("v_mul_u32_u24 v11, 96, v10")
        a("v_sub_u32 v11, v9, v11")
        a("v_mul_u32_u24 v10, 9216, v10")
        a("v_lshlrev_b32 v11, 4, v11")
        a("v_add_u32 v10, v10, v11")
        a(f"s_sub_u32 s38, s32, {1024*i}") if i else a("s_mov_b32 s38, s32")
        a(f"v_add_u32 v{22+i}, s38, v10")
    a("s_lshl_b32 s43, s34, 12")
    a("s_mul_i32 s46, s34, 3072")
    a("s_add_u32 s46, s46, 16384")
    a("s_mov_b32 s47, 0")
    if KROT:
        a("s_lshl_b32 s38, s30, 5")
        a("s_mul_i32 s38, s38, 171")
        a("s_lshr_b32 s38, s38, 10")
        a(f"s_mul_i32 s42, s38, {64*9216}")
        a(f"s_mul_i32 s47, s38, {8*9216}")
    def dma(wr):
        out = [f"s_add_u32 m0, s{wr}, s43"]
        for i in range(4):
            out.append(f"s_add_u32 s44, s42, {i*(4*9216-1024)}")
            out.append(f"buffer_load_dwordx4 v{20 + (i>>1)}, s[12:15], s44 offen offset:{1024*i} lds")
        out.append(f"s_add_u32 m0, s{wr}, s46")
        out.append(f"s_add_u32 s42, s42, {64*9216}")
        for i in range(3):
            out.append(f"buffer_load_dwordx4 v{22+i}, s[16:19], s47 offen offset:{1024*i} lds")
        out.append(f"s_add_u32 s47, s47, {8*9216}")
        if KROT:
            out += [f"s_cmp_eq_u32 s42, {NS*64*9216}", "s_cselect_b32 s42, 0, s42", "s_cselect_b32 s47, 0, s47"]
        return out
    ring_loader(a, "g1", R, NS, SZ, 7, dma, done="L_phB_done")
    a.label("L_g1_compute")
    LEAD = PF_LEAD1
    a("s_lshr_b32 s48, s2, 3")
    a("s_mul_i32 s48, s48, 22")
    a("v_add_u32 v30, s48, v2")
    a("v_cmp_gt_u32 vcc, 22, v2")
    a("s_mov_b64 s[84:85], vcc")
    a("v_cmp_gt_u32 vcc, 576, v30")
    a("s_and_b64 s[84:85], s[84:85], vcc")
    a("s_cmp_eq_u32 s34, 1")
    a("s_cbranch_scc1 L_g1_pfw")
    a("v_lshlrev_b32 v111, 7, v30")
    a(f"s_mov_b32 s81, {8*9216}")
    a("s_mov_b32 s80, s16"); a("s_mov_b32 s82, s17"); a("s_mov_b32 s83, s18")
    a("s_branch L_g1_pfj")
    a.label("L_g1_pfw")
    a("v_mul_u32_u24 v31, 7282, v30")
    a("v_lshrrev_b32 v31, 16, v31")
    a("v_mul_u32_u24 v32, 9, v31")
    a("v_sub_u32 v32, v30, v32")
    a("v_mul_u32_u24 v31, 9216, v31")
    a("v_lshlrev_b32 v32, 7, v32")
    a("v_add_u32 v111, v31, v32")
    a("s_and_b32 s48, s2, 7")
    a("s_mul_i32 s48, s48, 1152")
    a("v_add_u32 v111, s48, v111")
    a(f"s_mov_b32 s81, {64*9216}")
    a("s_mov_b32 s80, s12"); a("s_mov_b32 s82, s13"); a("s_mov_b32 s83, s14")
    a.label("L_g1_pfj")
    a("v_mov_b32 v31, -1")
    a("v_cndmask_b32 v111, v31, v111, s[84:85]")
    a("s_mov_b32 s92, s80"); a("s_mov_b32 s93, s82"); a("s_mov_b32 s94, s83"); a("s_mov_b32 s95, 0x00020000")
    a(f"s_mul_i32 s86, s81, {R}")
    a("s_cmp_ge_u32 s34, 2")
    a("s_cbranch_scc1 L_g1_pf0")
    for t in range(R, LEAD if not KROT else R):
        a("buffer_load_dword v110, v111, s[92:95], s86 offen")
        a("s_add_u32 s86, s86, s81")
    a.label("L_g1_pf0")
    hook = None if KROT else [
        "s_cmp_ge_u32 s34, 2", "s_cbranch_scc1 L_g1_h1",
        "buffer_load_dword v110, v111, s[92:95], s86 offen",
        "s_add_u32 s86, s86, s81",
        "L_g1_h1:",
    ]
    VW = [100, 101, 102, 103]; VH = 104
    VWc = [105, 106, 107, 108]; VHc = 109
    a("v_and_b32 v7, 1, v3")
    a("v_lshlrev_b32 v7, 2, v7")
    a("v_or_b32 v7, v7, v5")
    a("v_lshlrev_b32 v8, 3, v3")
    a("v_add_u32 v8, v8, v5")
    a("v_lshlrev_b32 v8, 8, v8")
    a("v_lshlrev_b32 v9, 3, v6")
    a("v_add_u32 v8, v8, v9")
    a("s_lshl_b32 s38, s36, 2")
    for fbk in range(4):
        a(f"s_add_u32 s39, s38, {fbk}")
        a(f"v_xor_b32 v9, s39, v7")
        a(f"v_lshlrev_b32 v9, 5, v9")
        a(f"v_add_u32 v{VW[fbk]}, v8, v9")
    a("v_mul_u32_u24 v9, 96, v3")
    a("s_mul_i32 s38, s37, 48")
    a("v_add_u32 v9, s38, v9")
    a("v_add_u32 v9, v9, v4")
    a("v_lshlrev_b32 v9, 4, v9")
    a(f"v_add_u32 v{VH}, 16384, v9")
    ACC = 16
    for i in range(48):
        a(f"v_mov_b32 v{ACC+i}, 0")
    FR = [112, 140]
    def acc(fbk, dbk):
        b = ACC + (fbk * 3 + dbk) * 4
        return f"v[{b}:{b+3}]"
    def mfmas(st):
        out = []
        for dbk in range(3):
            for fbk in range(4):
                w = FR[st] + 4 * fbk; h = FR[st] + 16 + 4 * dbk
                out.append(f"v_mfma_f32_16x16x32_bf16 {acc(fbk,dbk)}, v[{w}:{w+3}], v[{h}:{h+3}], {acc(fbk,dbk)}")
        return out
    def reads(st, sub):
        out = []
        for fbk in range(4):
            w = FR[st] + 4 * fbk
            out.append(f"ds_read_b64_tr_b16 v[{w}:{w+1}], v{VWc[fbk]} offset:{sub*8192}")
            out.append(f"ds_read_b64_tr_b16 v[{w+2}:{w+3}], v{VWc[fbk]} offset:{sub*8192+1024}")
        for dbk in range(3):
            h = FR[st] + 16 + 4 * dbk
            out.append(f"ds_read_b128 v[{h}:{h+3}], v{VHc} offset:{sub*6144+256*dbk}")
        return out
    def addr_upd(sreg):
        out = [f"v_add_u32 v{VWc[k]}, s{sreg}, v{VW[k]}" for k in range(4)]
        out.append(f"v_add_u32 v{VHc}, s{sreg}, v{VH}")
        return out
    ring_compute(a, "g1", R, NS, SZ, mfmas, reads, addr_upd, hook)
    a("s_lshl_b32 s38, s36, 7")
    a("s_add_u32 s38, s38, s31")
    a("v_lshlrev_b32 v12, 3, v3")
    for k in range(4):
        a(f"buffer_load_dwordx2 v[{64+2*k}:{65+2*k}], v12, s[24:27], s38 offen offset:{32*k}")
    k0 = -2.0 * math.log2(math.e) * math.sqrt(2.0 / math.pi)
    k1 = k0 * 0.044715
    a(f"s_mov_b32 s46, {fl(k0)}")
    a(f"s_mov_b32 s47, {fl(k1)}")
    a("v_mov_b32 v102, s46")
    a("s_lshl_b32 s38, s29, 4")
    a("s_lshl_b32 s39, s36, 3")
    a("s_add_u32 s38, s38, s39")
    a("v_lshrrev_b32 v12, 1, v3")
    a("v_add_u32 v12, s38, v12")
    a("v_mul_u32_u24 v12, 576, v12")
    a("s_mul_i32 s38, s37, 48")
    a("v_add_u32 v12, s38, v12")
    a("v_add_u32 v12, v12, v4")
    a("v_lshlrev_b32 v12, 4, v12")
    a("v_add_u32 v12, s32, v12")
    a("v_and_b32 v13, 1, v3")
    a("v_lshlrev_b32 v13, 3, v13")
    a("v_add_u32 v12, v12, v13")
    a("s_waitcnt vmcnt(0)")
    for k in range(4):
        a(f"v_lshlrev_b32 v{80+4*k}, 16, v{64+2*k}")
        a(f"v_and_b32 v{81+4*k}, 0xffff0000, v{64+2*k}")
        a(f"v_lshlrev_b32 v{82+4*k}, 16, v{65+2*k}")
        a(f"v_and_b32 v{83+4*k}, 0xffff0000, v{65+2*k}")
    cnt = 0
    for k in range(4):
        for dbk in range(3):
            b = ACC + (k * 3 + dbk) * 4
            for r in (0, 2):
                round_bf16_pair(a, b + r, b + r + 1, 64)
                a(f"v_add_f32 v{b+r}, v{b+r}, v{80+4*k+r}")
                a(f"v_add_f32 v{b+r+1}, v{b+r+1}, v{80+4*k+r+1}")
                round_bf16_pair(a, b + r, b + r + 1, 65)
            for r in range(4):
                t = 66 + r
                a(f"v_mul_f32 v{t}, v{b+r}, v{b+r}")
                a(f"v_fma_f32 v{t}, v{t}, s47, v102")
                a(f"v_mul_f32 v{t}, v{t}, v{b+r}")
                a(f"v_exp_f32 v{t}, v{t}")
            for r in range(4):
                t = 66 + r
                a(f"v_add_f32 v{t}, 1.0, v{t}")
                a(f"v_rcp_f32 v{t}, v{t}")
            a("s_nop 0")
            for r in range(4):
                t = 66 + r
                a(f"v_mul_f32 v{t}, v{t}, v{b+r}")
            o = 70 + 2 * (cnt % 4); cnt += 1
            a(f"v_cvt_pk_bf16_f32 v{o}, v66, v67")
            a(f"v_cvt_pk_bf16_f32 v{o+1}, v68, v69")
            a(f"s_mov_b32 s38, {k*18432}")
            a(f"buffer_store_dwordx2 v[{o}:{o+1}], v12, s[20:23], s38 offen offset:{256*dbk} sc0 sc1")
    a("s_branch L_phB_done")

class P2(Pool):
    def release(self, r):
        if r < self.lo or r >= self.hi: return
        Pool.release(self, r)

TB1 = 139264; TB2 = TB1 + 16384
def gen_colfft(a):
    srd(a, 12, 8, PT_OFF, PT_SZ)
    srd(a, 16, 8, WT_OFF, WT_SZ)
    srd(a, 20, 8, ZT_OFF, PT_SZ)
    a("s_sub_u32 s28, s2, 216")
    a("s_lshl_b32 s28, s28, 3")
    a("s_add_u32 s28, s28, s33")
    a("s_lshl_b32 s29, s28, 6")
    a("v_lshrrev_b32 v14, 2, v2")
    a(f"v_mul_u32_u24 v14, {PBLK}, v14")
    a("v_and_b32 v15, 3, v2")
    a("v_lshlrev_b32 v15, 4, v15")
    a("v_add_u32 v14, v14, v15")
    a("s_lshl_b32 s30, s28, 13")
    a("v_lshlrev_b32 v3, 4, v2")
    a("v_lshlrev_b32 v4, 2, v2")
    DQ = [16 + 4*i for i in range(16)]
    for aa in range(16):
        a(f"s_add_u32 s31, s29, {16*PBLK*aa}")
        a(f"buffer_load_dwordx4 v[{DQ[aa]}:{DQ[aa]+3}], v14, s[12:15], s31 offen")
    WR = 80
    for m in range(4):
        for kc in range(8):
            a(f"buffer_load_dword v{WR + 8*m + kc}, v4, s[16:19], s30 offen offset:{256*m + 1024*kc}") if 256*m + 1024*kc < 4096 else None
            if 256*m + 1024*kc >= 4096:
                a(f"s_add_u32 s31, s30, {1024*kc}")
                a(f"buffer_load_dword v{WR + 8*m + kc}, v4, s[16:19], s31 offen offset:{256*m}")
    for i in range(4):
        a(f"v_add_u32 v5, {512*i}, v0")
        a("v_lshrrev_b32 v6, 7, v5")
        a("v_and_b32 v7, 127, v5")
        a("v_mul_u32_u24 v6, v6, v7")
        a("v_cvt_f32_u32 v6, v6")
        a(f"v_mul_f32 v6, {fl(-1.0/2048)}, v6")
        a("v_cos_f32 v8, v6")
        a("v_sin_f32 v9, v6")
        a("v_lshlrev_b32 v5, 3, v5")
        a(f"v_add_u32 v5, {TB1}, v5")
        a("ds_write_b64 v5, v[8:9]")
    a("v_cmp_gt_u32 vcc, 128, v0")
    a("s_and_saveexec_b64 s[34:35], vcc")
    a("v_lshrrev_b32 v6, 3, v0")
    a("v_and_b32 v7, 7, v0")
    a("v_mul_u32_u24 v6, v6, v7")
    a("v_cvt_f32_u32 v6, v6")
    a(f"v_mul_f32 v6, {fl(-1.0/128)}, v6")
    a("v_cos_f32 v8, v6")
    a("v_sin_f32 v9, v6")
    a("v_lshlrev_b32 v5, 3, v0")
    a(f"v_add_u32 v5, {TB2}, v5")
    a("ds_write_b64 v5, v[8:9]")
    a("s_mov_b64 exec, s[34:35]")
    a("s_waitcnt lgkmcnt(0)")
    a("s_barrier")
    a("s_cmp_ge_u32 s28, 289")
    a("s_cbranch_scc1 L_phB_done")
    a("s_mul_i32 s32, s33, 17408")
    a("v_add_u32 v5, s32, v3")
    a("v_lshrrev_b32 v10, 2, v2")
    a("v_and_b32 v11, 3, v2")
    a("v_mul_u32_u24 v6, 1088, v10")
    a("v_lshlrev_b32 v12, 4, v11")
    a("v_add_u32 v6, v6, v12")
    a("v_add_u32 v6, s32, v6")
    a("v_mul_u32_u24 v7, 4128, v11")
    a("v_lshlrev_b32 v13, 4, v10")
    a("v_add_u32 v7, v7, v13")
    a("v_add_u32 v7, s32, v7")
    a(f"v_add_u32 v8, {TB1}, v3")
    a(f"v_add_u32 v9, {TB2}, v12")
    TW = 112
    def tw_reads(vaddr, stride):
        for i in range(1, 16):
            a(f"ds_read_b128 v[{TW+4*i}:{TW+4*i+3}], v{vaddr} offset:{stride*i}")
    pool = P2(176, 256)
    g = FG(a, pool)
    def quads_to_c(h):
        return [((DQ[i] + 2*h, 1), (DQ[i] + 2*h + 1, 1)) for i in range(16)]
    tw_reads(8, 1024)
    a("s_waitcnt vmcnt(32)")
    def dft16_both(sgn):
        return [g.dft(quads_to_c(h), sgn) for h in range(2)]
    outs = dft16_both(-1)
    a("s_waitcnt lgkmcnt(0)")
    for k in range(16):
        for h in range(2):
            d = DQ[k] + 2*h
            if k == 0:
                g.mov(outs[h][0][0], d); g.mov(outs[h][0][1], d + 1); g.frc(outs[h][0])
            else:
                g.cmul(outs[h][k], TW + 4*k + 2*h, TW + 4*k + 2*h + 1, dst=d)
        a(f"ds_write_b128 v5, v[{DQ[k]}:{DQ[k]+3}] offset:{1088*k}")
    for b in range(16):
        a(f"ds_read_b128 v[{DQ[b]}:{DQ[b]+3}], v6 offset:{64*b}")
    tw_reads(9, 64)
    a("s_waitcnt lgkmcnt(15)")
    outs = dft16_both(-1)
    a("s_waitcnt lgkmcnt(0)")
    for k in range(16):
        for h in range(2):
            d = DQ[k] + 2*h
            if k == 0:
                g.mov(outs[h][0][0], d); g.mov(outs[h][0][1], d + 1); g.frc(outs[h][0])
            else:
                g.cmul(outs[h][k], TW + 4*k + 2*h, TW + 4*k + 2*h + 1, dst=d)
        a(f"ds_write_b128 v7, v[{DQ[k]}:{DQ[k]+3}] offset:{256*k}")
    for m in range(4):
        for cp in range(4):
            q = DQ[4*m + cp]
            a(f"ds_read_b128 v[{q}:{q+3}], v5 offset:{4128*cp + 1024*m}")
    a("s_waitcnt vmcnt(0) lgkmcnt(0)")
    if W2PF_FFT:
        a("s_load_dwordx2 s[88:89], s[0:1], 48")
        a("s_and_b32 s48, s2, 7")
        a("s_lshr_b32 s49, s48, 1")
        a("s_mul_i32 s49, s49, 1152")
        a("s_and_b32 s48, s48, 1")
        a("s_lshl_b32 s48, s48, 11")
        a("s_sub_u32 s50, s2, 216")
        a("s_lshr_b32 s50, s50, 3")
        a("s_lshl_b32 s50, s50, 3")
        a("s_add_u32 s50, s50, s33")
        a("s_lshl_b32 s50, s50, 5")
        a("s_add_u32 s49, s49, s50")
        a("v_lshrrev_b32 v10, 4, v2")
        a("v_add_u32 v10, s49, v10")
        a("v_lshlrev_b32 v10, 12, v10")
        a("v_and_b32 v11, 15, v2")
        a("v_lshlrev_b32 v11, 7, v11")
        a("v_add_u32 v10, v10, v11")
        a("v_add_u32 v10, s48, v10")
        a("s_waitcnt lgkmcnt(0)")
        srd(a, 92, 88, 0, S * F * 2)
        a("s_cmp_ge_u32 s50, 1152")
        a("s_cbranch_scc1 L_cf_nopf")
        for i in range(8):
            a(f"s_mov_b32 s51, {i*4*4096}")
            a(f"buffer_load_dword v13, v10, s[92:95], s51 offen")
        a.label("L_cf_nopf")
    for m in range(4):
        xs = []
        for c in range(8):
            q = DQ[4*m + (c >> 1)] + 2*(c & 1)
            xs.append(((q, 1), (q + 1, 1)))
        X = g.dft(xs, -1)
        Y = []
        for kc in range(8):
            w = WR + 8*m + kc
            wr = pool.alloc(); wi = pool.alloc()
            a(f"v_lshlrev_b32 v{wr}, 16, v{w}")
            a(f"v_and_b32 v{wi}, 0xffff0000, v{w}")
            Y.append(g.cmul(X[kc], wr, wi))
            pool.release(wr); pool.release(wi)
        dsts = [DQ[4*m + (c >> 1)] + 2*(c & 1) for c in range(8)]
        g.dft(Y, 1, dsts)
        for cp in range(4):
            q = DQ[4*m + cp]
            a(f"ds_write_b128 v5, v[{q}:{q+3}] offset:{4128*cp + 1024*m}")
    for kb in range(16):
        a(f"ds_read_b128 v[{DQ[kb]}:{DQ[kb]+3}], v7 offset:{256*kb}")
    a("s_waitcnt lgkmcnt(0)")
    def twiddle_in(conj):
        res = [[], []]
        for k in range(16):
            for h in range(2):
                q = DQ[k] + 2*h
                x = ((q, 1), (q + 1, 1))
                if k == 0: res[h].append(x)
                else: res[h].append(g.cmul(x, TW + 4*k + 2*h, TW + 4*k + 2*h + 1, conj=conj))
        return res
    xin = twiddle_in(True)
    tw_reads(8, 1024)
    for h in range(2):
        g.dft(xin[h], 1, [DQ[b] + 2*h for b in range(16)])
    for b in range(16):
        a(f"ds_write_b128 v6, v[{DQ[b]}:{DQ[b]+3}] offset:{64*b}")
    for ka in range(16):
        a(f"ds_read_b128 v[{DQ[ka]}:{DQ[ka]+3}], v5 offset:{1088*ka}")
    a("s_waitcnt lgkmcnt(0)")
    xin = twiddle_in(True)
    for h in range(2):
        g.dft(xin[h], 1, [DQ[aa] + 2*h for aa in range(16)])
    for aa in range(16):
        a(f"s_add_u32 s31, s29, {16*PBLK*aa}")
        a(f"buffer_store_dwordx4 v[{DQ[aa]}:{DQ[aa]+3}], v14, s[20:23], s31 offen sc0 sc1")
    a("s_branch L_phB_done")

def rstamp(a, i):
    if "stamp" in DBG:
        a(f"s_memrealtime s[{60+2*i}:{61+2*i}]")

def phase_c2(a):
    R = 4; NS = 18; SZ = 34816
    a("s_and_b32 s28, s2, 7")
    a("s_lshr_b32 s29, s2, 3")
    a("s_lshr_b32 s30, s28, 1")
    a("s_and_b32 s31, s28, 1")
    a("s_lshl_b32 s31, s31, 3")
    a("s_lshr_b32 s32, s29, 2")
    a("s_add_u32 s31, s31, s32")
    a("s_and_b32 s32, s29, 3")
    a("s_and_b32 s34, s33, 3")
    a("s_lshr_b32 s35, s33, 2")
    a("v_lshrrev_b32 v3, 4, v2")
    a("v_and_b32 v4, 15, v2")
    a("v_lshrrev_b32 v5, 2, v4")
    a("v_and_b32 v6, 3, v4")
    srd(a, 12, 4, 0, S * F * 2)
    srd(a, 16, 8, U_OFF, U_SZ)
    srd(a, 20, 8, PART_OFF, PART_SZ)
    a("s_cmp_eq_u32 s35, 0")
    a("s_cbranch_scc1 L_g2_compute")
    a("s_mul_i32 s38, s30, 1152")
    a("s_lshl_b32 s39, s34, 4")
    a("s_add_u32 s38, s38, s39")
    a("v_add_u32 v9, s38, v3")
    a("v_lshlrev_b32 v9, 12, v9")
    a("s_lshl_b32 s39, s31, 8")
    a("v_add_u32 v9, s39, v9")
    a("v_lshlrev_b32 v10, 1, v3")
    a("v_xor_b32 v11, v10, v4")
    a("v_lshlrev_b32 v11, 4, v11")
    a("v_add_u32 v20, v9, v11")
    a("v_xor_b32 v11, 8, v10")
    a("v_xor_b32 v11, v11, v4")
    a("v_lshlrev_b32 v11, 4, v11")
    a("v_add_u32 v21, v9, v11")
    a("s_lshl_b32 s43, s34, 12")
    a("s_mov_b32 s42, 0")
    a("s_mov_b32 s47, 0")
    if KROT3:
        a("s_mul_i32 s38, s32, 9")
        a("s_lshr_b32 s38, s38, 1")
        a(f"s_mul_i32 s42, s38, {64*4096}")
        a(f"s_mul_i32 s47, s38, {8*9216}")
    a("s_cmp_lt_u32 s34, 2")
    a("s_cbranch_scc1 L_g2_v1")
    a("s_branch L_g2_v2")
    for var in (1, 2):
        a.label(f"L_g2_v{var}")
        n = 5 if var == 1 else 4
        for i in range(n):
            if var == 1:
                a("s_mul_i32 s38, s34, 320")
                a(f"s_add_u32 s38, s38, {64*i}")
            else:
                a("s_lshl_b32 s38, s34, 8")
                a(f"s_add_u32 s38, s38, {640 - 512 + 64*i}")
            a("v_add_u32 v9, s38, v2")
            a("v_mul_u32_u24 v10, 3641, v9")
            a("v_lshrrev_b32 v10, 19, v10")
            a("v_mul_u32_u24 v11, 144, v10")
            a("v_sub_u32 v11, v9, v11")
            a("v_mul_u32_u24 v10, 9216, v10")
            a("v_lshlrev_b32 v11, 4, v11")
            a("v_add_u32 v10, v10, v11")
            a(f"s_mul_i32 s38, s30, {144*9216}")
            a("s_mul_i32 s39, s32, 2304")
            a("s_add_u32 s38, s38, s39")
            if i & 3:
                a(f"s_sub_u32 s38, s38, {1024*(i&3)}")
            a(f"v_add_u32 v{22+i}, s38, v10")
        if var == 1:
            a("s_mul_i32 s46, s34, 5120")
            a("s_add_u32 s46, s46, 16384")
        else:
            a("s_lshl_b32 s46, s34, 12")
            a(f"s_add_u32 s46, s46, {16384 + 10240 - 8192}")
        def dma(wr, n=n):
            out = [f"s_add_u32 m0, s{wr}, s43"]
            for i in range(4):
                out.append(f"s_add_u32 s44, s42, {i*(4*4096-1024)}")
                out.append(f"buffer_load_dwordx4 v{20 + (i>>1)}, s[12:15], s44 offen offset:{1024*i} lds")
            out.append(f"s_add_u32 m0, s{wr}, s46")
            out.append(f"s_add_u32 s42, s42, {64*4096}")
            for i in range(n):
                if i == 4:
                    out.append("s_add_u32 m0, m0, 4096")
                    out.append("s_nop 0")
                out.append(f"buffer_load_dwordx4 v{22+i}, s[16:19], s47 offen offset:{1024*(i&3)} lds")
            out.append(f"s_add_u32 s47, s47, {8*9216}")
            if KROT3:
                out += [f"s_cmp_eq_u32 s42, {NS*64*4096}", "s_cselect_b32 s42, 0, s42", "s_cselect_b32 s47, 0, s47"]
            return out
        ring_loader(a, f"g2v{var}", R, NS, SZ, 4 + n, dma, done="L_phC_done")
    a.label("L_g2_compute")
    VW = [100, 101]; VU = 102; VWc = [103, 104]; VUc = 105
    a("v_and_b32 v7, 1, v3")
    a("v_lshlrev_b32 v7, 2, v7")
    a("v_or_b32 v7, v7, v5")
    a("v_lshlrev_b32 v8, 3, v3")
    a("v_add_u32 v8, v8, v5")
    a("v_lshlrev_b32 v8, 8, v8")
    a("v_lshlrev_b32 v9, 3, v6")
    a("v_add_u32 v8, v8, v9")
    a("s_lshl_b32 s38, s34, 1")
    for sbk in range(2):
        a(f"s_add_u32 s39, s38, {sbk}")
        a(f"v_xor_b32 v9, s39, v7")
        a(f"v_lshlrev_b32 v9, 5, v9")
        a(f"v_add_u32 v{VW[sbk]}, v8, v9")
    a("v_mul_u32_u24 v9, 144, v3")
    a("v_add_u32 v9, v9, v4")
    a("v_lshlrev_b32 v9, 4, v9")
    a(f"v_add_u32 v{VU}, 16384, v9")
    ACC = 16
    for i in range(72):
        a(f"v_mov_b32 v{ACC+i}, 0")
    FR = [112, 156]
    def acc(dbk, sbk):
        b = ACC + (dbk * 2 + sbk) * 4
        return f"v[{b}:{b+3}]"
    def mfmas(st):
        out = []
        for dbk in range(9):
            for sbk in range(2):
                w = FR[st] + 4 * sbk; u = FR[st] + 8 + 4 * dbk
                out.append(f"v_mfma_f32_16x16x32_bf16 {acc(dbk,sbk)}, v[{u}:{u+3}], v[{w}:{w+3}], {acc(dbk,sbk)}")
        return out
    def reads(st, sub):
        out = []
        for sbk in range(2):
            w = FR[st] + 4 * sbk
            out.append(f"ds_read_b64_tr_b16 v[{w}:{w+1}], v{VWc[sbk]} offset:{sub*8192}")
            out.append(f"ds_read_b64_tr_b16 v[{w+2}:{w+3}], v{VWc[sbk]} offset:{sub*8192+1024}")
        for dbk in range(9):
            u = FR[st] + 8 + 4 * dbk
            out.append(f"ds_read_b128 v[{u}:{u+3}], v{VUc} offset:{sub*9216+256*dbk}")
        return out
    def addr_upd(sreg):
        out = [f"v_add_u32 v{VWc[k]}, s{sreg}, v{VW[k]}" for k in range(2)]
        out.append(f"v_add_u32 v{VUc}, s{sreg}, v{VU}")
        return out
    ring_compute(a, "g2", R, NS, SZ, mfmas, reads, addr_upd)
    a("s_lshl_b32 s38, s30, 11")
    a("s_lshl_b32 s39, s31, 7")
    a("s_add_u32 s38, s38, s39")
    a("s_lshl_b32 s39, s34, 5")
    a("s_add_u32 s38, s38, s39")
    a("v_add_u32 v12, s38, v4")
    a("s_mov_b32 s39, 2304")
    a("v_mul_lo_u32 v12, v12, s39")
    a("s_mul_i32 s38, s32, 576")
    a("v_add_u32 v12, s38, v12")
    a("v_lshlrev_b32 v13, 4, v3")
    a("v_add_u32 v12, v12, v13")
    a(f"s_mov_b32 s39, {16*2304}")
    a("s_nop 3")
    for dbk in range(9):
        for sbk in range(2):
            b = ACC + (dbk * 2 + sbk) * 4
            so = "s39" if sbk else "0"
            a(f"buffer_store_dwordx4 v[{b}:{b+3}], v12, s[20:23], {so} offen offset:{64*dbk} sc0 sc1")

def phase_d(a):
    RA = 0; RB = 20736; QS = 5184; QS3 = 4672
    a("s_mov_b32 s40, s33")
    a("s_load_dwordx2 s[4:5], s[0:1], 0")
    a("s_load_dwordx2 s[6:7], s[0:1], 56")
    a("s_load_dwordx2 s[10:11], s[0:1], 64")
    srd(a, 36, 8, ZT_OFF, PT_SZ)
    srd(a, 20, 8, PART_OFF, PART_SZ)
    a("v_mul_u32_u24 v3, 911, v0")
    a("v_lshrrev_b32 v3, 16, v3")
    a("v_mul_u32_u24 v4, 72, v3")
    a("v_sub_u32 v4, v0, v4")
    a("v_lshrrev_b32 v5, 3, v4")
    a("v_and_b32 v6, 7, v4")
    a(f"v_mul_u32_u24 v7, {QS}, v3")
    a("v_mul_u32_u24 v8, 576, v5")
    a("v_add_u32 v7, v7, v8")
    a(f"s_mul_i32 s42, s2, {PBLK}")
    for rnd in range(3):
        a(f"v_add_u32 v10, {512*rnd}, v0")
        a("v_lshlrev_b32 v13, 4, v10")
        a(f"buffer_load_dwordx4 v[{100+4*rnd}:{103+4*rnd}], v13, s[36:39], s42 offen")
    a("v_cvt_f32_u32 v60, v6")
    for c in range(1, 8):
        a(f"v_mul_f32 v61, {fl(c/64.0)}, v60")
        a(f"v_cos_f32 v{80+2*c}, v61")
        a(f"v_sin_f32 v{81+2*c}, v61")
    a("s_cmp_lg_u32 s33, 7")
    a("s_cbranch_scc1 L_d_nopoll")
    a("s_lshr_b32 s52, s2, 4")
    a("v_lshrrev_b32 v240, 2, v2")
    a("v_lshlrev_b32 v240, 1, v240")
    a("s_lshr_b32 s53, s52, 3")
    a("v_add_u32 v240, s53, v240")
    a("s_and_b32 s53, s52, 7")
    a("s_lshl_b32 s53, s53, 2")
    a("v_and_b32 v241, 3, v2")
    a("v_add_u32 v241, s53, v241")
    a("v_lshlrev_b32 v241, 3, v241")
    a("v_add_u32 v240, v240, v241")
    a("v_lshlrev_b32 v240, 7, v240")
    a("v_cmp_le_u32 vcc, 16, v2")
    a("s_nop 1")
    a("v_cndmask_b32 v242, 0, 1, vcc")
    a("s_mov_b32 s50, 400000")
    a("s_mov_b32 s51, 32768")
    a.label("L_poll_d")
    a("buffer_load_dword v243, v240, s[56:59], s51 offen sc0 sc1")
    a("s_waitcnt vmcnt(0)")
    a("v_or_b32 v243, v243, v242")
    a("v_cmp_eq_u32 vcc, 0, v243")
    a("s_sub_u32 s50, s50, 1")
    a("s_cmp_eq_u32 s50, 0")
    a("s_cbranch_scc1 L_d_nopoll")
    a("s_cmp_eq_u64 vcc, 0")
    a("s_cbranch_scc1 L_d_nopoll")
    a("s_sleep 2")
    a("s_branch L_poll_d")
    a.label("L_d_nopoll")
    a("s_waitcnt vmcnt(0) lgkmcnt(0)")
    srd(a, 12, 4, 0, S * D * 2)
    srd(a, 16, 6, 0, S * 2)
    srd(a, 24, 10, 0, S * D * 2)
    for rnd in range(3):
        b = 100 + 4 * rnd
        a(f"v_add_u32 v10, {512*rnd}, v0")
        if rnd == 2:
            a("v_cmp_gt_u32 vcc, 1156, v10")
            a("s_and_saveexec_b64 s[30:31], vcc")
        a("v_lshrrev_b32 v11, 2, v10")
        a("v_and_b32 v12, 3, v10")
        a(f"v_mul_u32_u24 v13, {QS3}, v12")
        a("v_cmp_eq_u32 vcc, 0, v11")
        a("v_mov_b32 v17, 288")
        a("v_cmp_eq_u32 s[28:29], v17, v11")
        a("s_or_b64 vcc, vcc, s[28:29]")
        a("v_sub_u32 v14, 576, v11")
        a("v_lshlrev_b32 v18, 3, v11")
        a("v_cndmask_b32_e64 v%d, v%d, 0, vcc" % (b+1, b+1))
        a("v_cndmask_b32_e64 v%d, v%d, 0, vcc" % (b+3, b+3))
        a("v_add_u32 v18, v18, v13")
        a("v_lshlrev_b32 v14, 3, v14")
        a("v_add_u32 v14, v14, v13")
        a(f"v_sub_f32 v20, v{b}, v{b+3}")
        a(f"v_add_f32 v21, v{b+1}, v{b+2}")
        a(f"v_add_f32 v22, v{b}, v{b+3}")
        a(f"v_sub_f32 v23, v{b+2}, v{b+1}")
        a(f"ds_write_b64 v18, v[20:21] offset:{RA}")
        a(f"ds_write_b64 v14, v[22:23] offset:{RA}")
    a("s_mov_b64 exec, s[30:31]")
    a("s_waitcnt lgkmcnt(0)")
    a("s_barrier")
    a("s_cmp_ge_u32 s33, 5")
    a("s_cbranch_scc1 L_k2_end")
    a("v_cmp_gt_u32 vcc, 288, v0")
    a("s_and_saveexec_b64 s[30:31], vcc")
    a(f"s_mul_i32 s32, s2, {4608*4}")
    a(f"s_mul_i32 s33, s2, {4608*2}")
    PB = 120
    return PB

def phase_d2(a, PB):
    RA = 0; RB = 20736; QS = 5184; QS3 = 4672
    a("v_lshlrev_b32 v15, 4, v0")
    a("v_lshlrev_b32 v9, 3, v0")
    for m in range(4):
        for ks in range(4):
            a(f"s_add_u32 s34, s32, {ks*2048*2304 + m*4608}")
            a(f"buffer_load_dwordx4 v[{PB+16*m+4*ks}:{PB+3+16*m+4*ks}], v15, s[20:23], s34 offen")
        a(f"s_add_u32 s34, s33, {m*2304}")
        a(f"buffer_load_dwordx2 v[{184+2*m}:{185+2*m}], v9, s[12:15], s34 offen")
    a("v_cmp_le_u32 vcc, 144, v0")
    a("s_nop 1")
    a("v_cndmask_b32 v16, 0, 2, vcc")
    a("s_lshl_b32 s35, s2, 4")
    for m in range(4):
        a(f"buffer_load_ushort v{192+m}, v16, s[16:19], s35 offen offset:{4*m}")
    a(f"v_mul_u32_u24 v22, {QS3}, v3")
    a("v_mul_u32_u24 v23, 9, v6")
    a("v_add_u32 v23, v23, v5")
    a("v_lshlrev_b32 v23, 3, v23")
    a("v_add_u32 v22, v22, v23")
    for e in range(8):
        a(f"ds_read_b64 v[{30+2*e}:{31+2*e}], v22 offset:{RA + 576*e}")
    a("v_lshlrev_b32 v20, 3, v6")
    a("v_add_u32 v20, v7, v20")
    a("v_mul_u32_u24 v21, 72, v6")
    a("v_add_u32 v21, v7, v21")
    a("s_waitcnt lgkmcnt(0)")
    pool = P2(200, 244); g = FG(a, pool)
    ys = g.dft([((30+2*b, 1), (31+2*b, 1)) for b in range(8)], 1)
    for aa in range(8):
        d = 60 + 2 * aa
        if aa == 0:
            g.mov(ys[0][0], d); g.mov(ys[0][1], d + 1); g.frc(ys[0])
        else:
            g.cmul(ys[aa], 80 + 2*aa, 81 + 2*aa, dst=d)
    for aa in range(8):
        d = 60 + 2 * aa
        a(f"ds_write_b64 v20, v[{d}:{d+1}] offset:{RB + 72*aa}")
    a("s_waitcnt lgkmcnt(0)")
    a("s_barrier")
    for c in range(8):
        a(f"ds_read_b64 v[{30+2*c}:{31+2*c}], v21 offset:{RB + 8*c}")
    a("s_waitcnt lgkmcnt(0)")
    pool = P2(200, 244); g = FG(a, pool)
    g.dft([((30+2*b, 1), (31+2*b, 1)) for b in range(8)], 1, [60 + 2*b for b in range(8)])
    for b in range(8):
        d = 60 + 2 * b
        a(f"ds_write_b64 v20, v[{d}:{d+1}] offset:{RA + 64*b}")
    a("s_mov_b64 exec, s[30:31]")
    a("v_cvt_f32_u32 v60, v2")
    for k1 in range(1, 9):
        a(f"v_mul_f32 v61, {fl(k1/576.0)}, v60")
        a(f"v_cos_f32 v{80+2*k1}, v61")
        a(f"v_sin_f32 v{81+2*k1}, v61")
    a("s_waitcnt lgkmcnt(0)")
    a("s_barrier")
    a("s_cmp_ge_u32 s40, 4")
    a("s_cbranch_scc1 L_d_skip1")
    a(f"s_mul_i32 s43, s40, {QS}")
    a("v_lshlrev_b32 v10, 3, v2")
    a("v_add_u32 v10, s43, v10")
    for k1 in range(9):
        a(f"ds_read_b64 v[{30+2*k1}:{31+2*k1}], v10 offset:{RA + 576*k1}")
    a("s_waitcnt lgkmcnt(0)")
    pool = P2(200, 244); g = FG(a, pool)
    xs = []
    for k1 in range(9):
        x = ((30+2*k1, 1), (31+2*k1, 1))
        xs.append(x if k1 == 0 else g.cmul(x, 80 + 2*k1, 81 + 2*k1))
    g.dft(xs, 1, [60 + 2*n for n in range(9)])
    sc = fl(1.0 / (2.0 * 2048 * 576))
    for n in range(9):
        a(f"v_mul_f32 v{60+2*n}, {sc}, v{60+2*n}")
        a(f"v_mul_f32 v{61+2*n}, {sc}, v{61+2*n}")
        round_bf16_pair(a, 60 + 2*n, 61 + 2*n, 17 + (n & 1))
    a("s_mul_i32 s43, s40, 4608")
    a("v_lshlrev_b32 v10, 2, v2")
    a("v_add_u32 v10, s43, v10")
    for n in range(9):
        a(f"ds_write_b32 v10, v{60+2*n} offset:{RB + 256*n}")
        a(f"ds_write_b32 v10, v{61+2*n} offset:{RB + 2304 + 256*n}")
    a.label("L_d_skip1")
    a("s_waitcnt lgkmcnt(0)")
    a("s_barrier")
    a("v_cmp_gt_u32 vcc, 288, v0")
    a("s_and_saveexec_b64 s[30:31], vcc")
    for m in range(4):
        a(f"ds_read_b128 v[{30+4*m}:{33+4*m}], v15 offset:{RB + 4608*m}")
    a("s_waitcnt vmcnt(0) lgkmcnt(0)")
    for m in range(4):
        b = PB + 16 * m
        for r in range(4):
            a(f"v_add_f32 v{b+r}, v{b+r}, v{b+4+r}")
            a(f"v_add_f32 v{b+8+r}, v{b+8+r}, v{b+12+r}")
            a(f"v_add_f32 v{b+r}, v{b+r}, v{b+8+r}")
        a(f"v_lshlrev_b32 v{192+m}, 16, v{192+m}")
        round_bf16_pair(a, b, b + 1, 4)
        round_bf16_pair(a, b + 2, b + 3, 5)
        for r in range(4):
            a(f"v_add_f32 v{b+r}, v{b+r}, v{192+m}")
        round_bf16_pair(a, b, b + 1, 4)
        round_bf16_pair(a, b + 2, b + 3, 5)
        a(f"v_lshlrev_b32 v{b+4}, 16, v{184+2*m}")
        a(f"v_and_b32 v{b+5}, 0xffff0000, v{184+2*m}")
        a(f"v_lshlrev_b32 v{b+6}, 16, v{185+2*m}")
        a(f"v_and_b32 v{b+7}, 0xffff0000, v{185+2*m}")
        for r in range(4):
            a(f"v_add_f32 v{b+4+r}, v{b+4+r}, v{30+4*m+r}")
        round_bf16_pair(a, b + 4, b + 5, 4)
        round_bf16_pair(a, b + 6, b + 7, 5)
        for r in range(4):
            a(f"v_add_f32 v{b+r}, v{b+r}, v{b+4+r}")
        a(f"v_cvt_pk_bf16_f32 v{b+8}, v{b}, v{b+1}")
        a(f"v_cvt_pk_bf16_f32 v{b+9}, v{b+2}, v{b+3}")
        a(f"s_add_u32 s34, s33, {m*2304}")
        a(f"buffer_store_dwordx2 v[{b+8}:{b+9}], v9, s[24:27], s34 offen")

def gen_k2(a):
    name = "k2_kernel"
    kernel_begin(a, name)
    rstamp(a, 0)
    a("s_cmp_ge_u32 s2, 256")
    a("s_cbranch_scc1 L_k2_end")
    a("s_load_dwordx2 s[4:5], s[0:1], 32")
    a("s_load_dwordx2 s[6:7], s[0:1], 40")
    a("s_load_dwordx2 s[8:9], s[0:1], 80")
    a("v_lshrrev_b32 v1, 6, v0")
    a("v_and_b32 v2, 63, v0")
    a("s_nop 0")
    a("v_readfirstlane_b32 s33, v1")
    a("s_waitcnt lgkmcnt(0)")
    srd(a, 56, 8, FL_OFF, FL_SZ)
    a("s_mov_b32 s40, s33")
    a("s_cmp_ge_u32 s2, 253")
    a("s_cbranch_scc1 L_phB_done")
    a("s_cmp_ge_u32 s2, 216")
    a("s_cbranch_scc1 L_k2_fft")
    gen_gemm1(a)
    a.label("L_k2_fft")
    gen_colfft(a)
    a.label("L_phB_done")
    rstamp(a, 1)
    set_flag(a, 56, 0)
    rstamp(a, 2)
    a("s_load_dwordx2 s[4:5], s[0:1], 48")
    a("s_cmp_lg_u32 s33, 7")
    a("s_cbranch_scc1 L_c2_go")
    for i in range(3): a(f"v_mov_b32 v{252+i}, 0")
    a("v_cmp_le_u32 vcc, 24, v2")
    a("s_nop 1")
    a("v_cndmask_b32 v255, 0, 1, vcc")
    poll_flags(a, "u", 56, 0, None, nld=[0, 1, 2, 3])
    a.label("L_c2_go")
    a("s_waitcnt lgkmcnt(0)")
    a("s_barrier")
    rstamp(a, 3)
    phase_c2(a)
    a.label("L_phC_done")
    rstamp(a, 4)
    set_flag(a, 56, 256 * 128)
    rstamp(a, 5)
    a("s_cmp_lg_u32 s33, 7")
    a("s_cbranch_scc1 L_d_go")
    a("v_add_u32 v255, 192, v2")
    a("v_subrev_u32 v255, 216, v255")
    a("v_cmp_lt_u32 vcc, 36, v255")
    a("s_nop 1")
    a("v_cndmask_b32 v255, 0, 1, vcc")
    poll_flags(a, "z", 56, 0, None, nld=[3])
    a.label("L_d_go")
    a("s_barrier")
    PB = phase_d(a)
    rstamp(a, 6)
    phase_d2(a, PB)
    rstamp(a, 7)
    if "stamp" in DBG:
        a("s_mov_b64 exec, -1")
        a("s_waitcnt vmcnt(0) lgkmcnt(0)")
        a("s_cmp_lg_u32 s40, 0")
        a("s_cbranch_scc1 L_k2_end")
        a("s_mov_b64 exec, 1")
        stamp_flush(a, 8, 8, 0)
    a.label("L_k2_end")
    a("s_endpgm")
    return name, 256

def main(out):
    a = Asm()
    hdr = open("parallel_sum__spectral_gfnet__mixer_token_mlp__prompt.s.ref").read().split("\n")
    for l in hdr:
        if l.startswith("; @launch"):
            break
        a.raw(l)
    a.raw(f"; @launch kernel=k1_kernel grid=({256+K1_NWT},1,1) block=(320,1,1) lds=51200")
    a.raw("; @launch kernel=k2_kernel grid=(256,1,1) block=(512,1,1) lds=156672")
    a.raw('.amdgcn_target "amdgcn-amd-amdhsa--gfx950"')
    a.raw(".text")
    ks = []
    for g in (gen_k1, gen_k2):
        ks.append(g(a))
    a.raw('.section .rodata,"a"')
    for n, v in ks:
        kd(a, n, v)
    open(out, "w").write(a.text())

if __name__ == "__main__":
    for x in sys.argv[2:]: DBG.add(x)
    main(sys.argv[1] if len(sys.argv) > 1 else "parallel_sum__spectral_gfnet__mixer_token_mlp__prompt.s")
```

```python
import math, sys
from fftlib import Pool, FG

S, D, F = 2048, 576, 4608
DF = 289
HT_OFF = 0;                 HT_SZ = 256 * 576 * 16
U_OFF = 0x400000;           U_SZ = 576 * 576 * 16
PART_OFF = 0x1000000;       PART_SZ = 4 * 2048 * 576 * 4
PT_OFF = 0x3000000;         PBLK = 290 * 64; PT_SZ = 256 * PBLK
WT_OFF = 0x3800000;         WT_SZ = 289 * 2048 * 4
ZT_OFF = 0x4000000;         ZBLK = 290 * 128; ZT_SZ = 128 * ZBLK
YA_OFF = 0x4800000;         YA_SZ = 2048 * 576 * 2
FL_OFF = 0x5000000;         FL_SZ = 2 * 256 * 128

class Asm:
    def __init__(self):
        self.lines = []
        self.lab = 0
    def __call__(self, s):
        for l in s.strip("\n").split("\n"):
            self.lines.append("    " + l.strip())
    def label(self, name):
        self.lines.append(name + ":")
    def newlabel(self, p="L"):
        self.lab += 1
        return f"{p}_{self.lab}"
    def raw(self, s):
        self.lines.append(s)
    def text(self):
        return "\n".join(self.lines) + "\n"

def f32bits(x):
    import struct
    return struct.unpack("<I", struct.pack("<f", x))[0]
def fl(x):
    return "0x%08x" % f32bits(x)

def srd(a, sd, sbase, off, size):
    if off:
        a(f"s_add_u32 s{sd}, s{sbase}, {off}")
        a(f"s_addc_u32 s{sd+1}, s{sbase+1}, 0")
    else:
        a(f"s_mov_b32 s{sd}, s{sbase}")
        a(f"s_mov_b32 s{sd+1}, s{sbase+1}")
    a(f"s_mov_b32 s{sd+2}, {size}")
    a(f"s_mov_b32 s{sd+3}, 0x00020000")

def kernel_begin(a, name):
    a.raw(f".globl {name}")
    a.raw(".p2align 8")
    a.raw(f".type {name},@function")
    a.label(name)

def kd(a, name, vgpr, sgpr=102):
    acc = (vgpr + 3) // 4 * 4
    a.raw(".p2align 6")
    a.raw(f".amdhsa_kernel {name}")
    a.raw(f"  .amdhsa_next_free_vgpr {vgpr}")
    a.raw(f"  .amdhsa_next_free_sgpr {sgpr}")
    a.raw(f"  .amdhsa_accum_offset {acc}")
    a.raw("  .amdhsa_group_segment_fixed_size 0")
    a.raw("  .amdhsa_kernarg_size 88")
    a.raw("  .amdhsa_user_sgpr_count 2")
    a.raw("  .amdhsa_user_sgpr_kernarg_segment_ptr 1")
    a.raw("  .amdhsa_system_sgpr_workgroup_id_x 1")
    a.raw(".end_amdhsa_kernel")

def wave_reduce(a, vregs, sregs):
    for ctrl in ["row_shr:1", "row_shr:2", "row_shr:4", "row_shr:8"]:
        for v in vregs:
            a(f"v_add_f32_dpp v{v}, v{v}, v{v} {ctrl} row_mask:0xf bank_mask:0xf bound_ctrl:0")
        if len(vregs) < 3:
            a("s_nop 1")
    for v in vregs:
        a(f"v_add_f32_dpp v{v}, v{v}, v{v} row_bcast:15 row_mask:0xa bank_mask:0xf")
    if len(vregs) < 3:
        a("s_nop 1")
    for v in vregs:
        a(f"v_add_f32_dpp v{v}, v{v}, v{v} row_bcast:31 row_mask:0xc bank_mask:0xf")
    a("s_nop 1")
    for v, s in zip(vregs, sregs):
        a(f"v_readlane_b32 s{s}, v{v}, 63")

def round_bf16_pair(a, va, vb, vt):
    a(f"v_cvt_pk_bf16_f32 v{vt}, v{va}, v{vb}")
    a(f"v_lshlrev_b32 v{va}, 16, v{vt}")
    a(f"v_and_b32 v{vb}, 0xffff0000, v{vt}")

def layernorm_pair(a, xa, xb, oa, ob, t0, sbase):
    T = [t0 + i for i in range(12)]
    s0, s1, s2, s3 = sbase, sbase + 1, sbase + 2, sbase + 3
    a(f"v_add_f32 v{T[0]}, v{xa[0]}, v{xa[1]}")
    a(f"v_add_f32 v{T[1]}, v{xb[0]}, v{xb[1]}")
    for i in range(2, 9):
        a(f"v_add_f32 v{T[0]}, v{T[0]}, v{xa[i]}")
        a(f"v_add_f32 v{T[1]}, v{T[1]}, v{xb[i]}")
    a("s_nop 1")
    wave_reduce(a, [T[0], T[1]], [s0, s1])
    a("s_nop 1")
    c576 = fl(1.0 / 576.0)
    a(f"v_mov_b32 v{T[10]}, {c576}")
    a(f"v_mul_f32 v{T[2]}, s{s0}, v{T[10]}")
    a(f"v_mul_f32 v{T[3]}, s{s1}, v{T[10]}")
    a(f"v_sub_f32 v{T[4]}, v{xa[0]}, v{T[2]}")
    a(f"v_sub_f32 v{T[5]}, v{xb[0]}, v{T[3]}")
    a(f"v_mul_f32 v{T[0]}, v{T[4]}, v{T[4]}")
    a(f"v_mul_f32 v{T[1]}, v{T[5]}, v{T[5]}")
    for i in range(1, 9):
        a(f"v_sub_f32 v{T[4]}, v{xa[i]}, v{T[2]}")
        a(f"v_sub_f32 v{T[5]}, v{xb[i]}, v{T[3]}")
        a(f"v_fmac_f32 v{T[0]}, v{T[4]}, v{T[4]}")
        a(f"v_fmac_f32 v{T[1]}, v{T[5]}, v{T[5]}")
    a("s_nop 1")
    wave_reduce(a, [T[0], T[1]], [s2, s3])
    a("s_nop 1")
    a(f"v_mul_f32 v{T[6]}, s{s2}, v{T[10]}")
    a(f"v_mul_f32 v{T[7]}, s{s3}, v{T[10]}")
    round_bf16_pair(a, T[6], T[7], T[8])
    round_bf16_pair(a, T[2], T[3], T[9])
    eps = fl(1e-5)
    a(f"v_add_f32 v{T[6]}, {eps}, v{T[6]}")
    a(f"v_add_f32 v{T[7]}, {eps}, v{T[7]}")
    round_bf16_pair(a, T[6], T[7], T[8])
    a(f"v_sqrt_f32 v{T[6]}, v{T[6]}")
    a(f"v_sqrt_f32 v{T[7]}, v{T[7]}")
    a("s_nop 0")
    round_bf16_pair(a, T[6], T[7], T[8])
    a(f"v_rcp_f32 v{T[6]}, v{T[6]}")
    a(f"v_rcp_f32 v{T[7]}, v{T[7]}")
    for i in range(9):
        a(f"v_sub_f32 v{oa[i]}, v{xa[i]}, v{T[2]}")
        a(f"v_sub_f32 v{ob[i]}, v{xb[i]}, v{T[3]}")
        round_bf16_pair(a, oa[i], ob[i], T[8] if i % 2 == 0 else T[9])
        a(f"v_mul_f32 v{oa[i]}, v{oa[i]}, v{T[6]}")
        a(f"v_mul_f32 v{ob[i]}, v{ob[i]}, v{T[7]}")
        round_bf16_pair(a, oa[i], ob[i], T[4] if i % 2 == 0 else T[5])

K1_NWT = 64
K1_NPF = 64
PFROWS = 2048
W2PF_FFT = False
W2PF_GEMM = False
K1PF = True
KROT = True
KROT3 = True
PF_LEAD1 = 12
PF_LEAD2 = 10
def gen_k1(a):
    name = "k1_kernel"
    kernel_begin(a, name)
    stamp(a, 0)
    if "stamp" in DBG: a("s_memrealtime s[76:77]")
    a(f"s_cmp_ge_u32 s2, {256 + K1_NWT}")
    a("s_cbranch_scc1 L_k1_end")
    a("s_sub_u32 s3, s2, 256")
    a("s_load_dwordx2 s[40:41], s[0:1], 32")
    a("s_load_dwordx2 s[4:5], s[0:1], 0")
    a("s_load_dwordx2 s[6:7], s[0:1], 80")
    a("s_load_dwordx4 s[36:39], s[0:1], 8")
    a("v_lshrrev_b32 v1, 6, v0")
    a("v_and_b32 v2, 63, v0")
    a("s_nop 0")
    a("v_readfirstlane_b32 s20, v1")
    a("s_cmp_ge_u32 s2, 256")
    a("s_cbranch_scc1 L_k1_wt")
    a("s_waitcnt lgkmcnt(0)")
    srd(a, 8, 4, 0, S * D * 2)
    srd(a, 12, 6, HT_OFF, HT_SZ)
    srd(a, 16, 6, PT_OFF, PT_SZ)
    E1 = 9216; E2 = E1 + 20736; QS = 5184; E3 = E1; QS3 = 4672
    a("v_mul_u32_u24 v3, 911, v0")
    a("v_lshrrev_b32 v3, 16, v3")
    a("v_mul_u32_u24 v4, 72, v3")
    a("v_sub_u32 v4, v0, v4")
    a("v_lshrrev_b32 v5, 3, v4")
    a("v_and_b32 v6, 7, v4")
    a(f"v_mul_u32_u24 v7, {QS}, v3")
    a("v_mul_u32_u24 v8, 576, v5")
    a("v_add_u32 v7, v7, v8")
    a("s_cmp_ge_u32 s20, 4")
    a("s_cbranch_scc1 L_k1_pf")
    a("s_lshl_b32 s21, s2, 3")
    a("s_lshl_b32 s22, s20, 1")
    a("s_add_u32 s21, s21, s22")
    a("s_mul_i32 s21, s21, 1152")
    a("v_lshlrev_b32 v9, 1, v2")
    XA = list(range(10, 19)); XB = list(range(20, 29))
    for i in range(9):
        a(f"buffer_load_ushort v{XA[i]}, v9, s[8:11], s21 offen offset:{128*i}")
        a(f"buffer_load_ushort v{XB[i]}, v9, s[8:11], s21 offen offset:{1152+128*i}")
    a("v_cvt_f32_u32 v60, v2")
    for k1 in range(1, 9):
        a(f"v_mul_f32 v61, {fl(-k1/576.0)}, v60")
        a(f"v_cos_f32 v{80+2*k1}, v61")
        a(f"v_sin_f32 v{81+2*k1}, v61")
    a("s_waitcnt vmcnt(0)")
    stamp(a, 1)
    for i in range(9):
        a(f"v_lshlrev_b32 v{XA[i]}, 16, v{XA[i]}")
        a(f"v_lshlrev_b32 v{XB[i]}, 16, v{XB[i]}")
    NA = [30 + 2*i for i in range(9)]; NB = [31 + 2*i for i in range(9)]
    layernorm_pair(a, XA, XB, NA, NB, 60, 24)
    HA = list(range(10, 19)); HB = list(range(20, 29))
    layernorm_pair(a, NA, NB, HA, HB, 60, 24)
    a("v_lshlrev_b32 v9, 4, v2")
    a("s_lshl_b32 s22, s20, 2")
    a("v_add_u32 v9, s22, v9")
    for i in range(9):
        a(f"v_cvt_pk_bf16_f32 v{50+i}, v{HA[i]}, v{HB[i]}")
    for i in range(9):
        a(f"ds_write_b32 v9, v{50+i} offset:{1024*i}")
    stamp(a, 2)
    pool = Pool(98, 128)
    g = FG(a, pool)
    class P2(Pool):
        def release(self, r):
            if r < self.lo or r >= self.hi: return
            Pool.release(self, r)
    pool = P2(98, 128); g = FG(a, pool)
    xs = [((NA[i], 1), (NB[i], 1)) for i in range(9)]
    ys = g.dft(xs, -1)
    a(f"s_mul_i32 s22, s20, {QS}")
    a("v_lshlrev_b32 v9, 3, v2")
    a("v_add_u32 v9, s22, v9")
    for k1 in range(9):
        d = 60 + 2 * k1
        if k1 == 0:
            g.mov(ys[0][0], d); g.mov(ys[0][1], d + 1); g.frc(ys[0])
        else:
            g.cmul(ys[k1], 80 + 2*k1, 81 + 2*k1, dst=d)
    for k1 in range(9):
        d = 60 + 2 * k1
        a(f"ds_write_b64 v9, v[{d}:{d+1}] offset:{E1 + 576*k1}")
    a.label("L_k1_skipln")
    a("v_cvt_f32_u32 v60, v6")
    for c in range(1, 8):
        a(f"v_mul_f32 v61, {fl(-c/64.0)}, v60")
        a(f"v_cos_f32 v{80+2*c}, v61")
        a(f"v_sin_f32 v{81+2*c}, v61")
    a("s_waitcnt lgkmcnt(0)")
    a("s_barrier")
    stamp(a, 3)
    a("v_cmp_gt_u32 vcc, 288, v0")
    a("s_and_saveexec_b64 s[30:31], vcc")
    a("v_lshlrev_b32 v9, 4, v0")
    a("ds_read_b128 v[10:13], v9")
    a("ds_read_b128 v[14:17], v9 offset:4608")
    a("v_lshlrev_b32 v20, 3, v6")
    a("v_add_u32 v20, v7, v20")
    for b in range(8):
        a(f"ds_read_b64 v[{30+2*b}:{31+2*b}], v20 offset:{E1 + 64*b}")
    a(f"s_mul_i32 s23, s2, {576*16}")
    a("s_waitcnt lgkmcnt(8)")
    a("buffer_store_dwordx4 v[10:13], v9, s[12:15], s23 offen")
    a("v_add_u32 v21, 4608, v9")
    a("buffer_store_dwordx4 v[14:17], v21, s[12:15], s23 offen")
    a("s_waitcnt lgkmcnt(0)")
    pool = P2(98, 128); g = FG(a, pool)
    xs = [((30+2*b, 1), (31+2*b, 1)) for b in range(8)]
    ys = g.dft(xs, -1)
    a("v_mul_u32_u24 v22, 72, v6")
    a("v_add_u32 v22, v7, v22")
    for c in range(8):
        d = 60 + 2 * c
        if c == 0:
            g.mov(ys[0][0], d); g.mov(ys[0][1], d + 1); g.frc(ys[0])
        else:
            g.cmul(ys[c], 80 + 2*c, 81 + 2*c, dst=d)
    for c in range(8):
        d = 60 + 2 * c
        a(f"ds_write_b64 v22, v[{d}:{d+1}] offset:{E2 + 8*c}")
    a("s_waitcnt lgkmcnt(0)")
    a("s_barrier")
    stamp(a, 4)
    for aa in range(8):
        a(f"ds_read_b64 v[{30+2*aa}:{31+2*aa}], v20 offset:{E2 + 72*aa}")
    a("s_waitcnt lgkmcnt(0)")
    pool = P2(98, 128); g = FG(a, pool)
    xs = [((30+2*b, 1), (31+2*b, 1)) for b in range(8)]
    ys = g.dft(xs, -1, [60 + 2*e for e in range(8)])
    a(f"v_mul_u32_u24 v22, {QS3}, v3")
    a("v_mul_u32_u24 v23, 9, v6")
    a("v_add_u32 v23, v23, v5")
    a("v_lshlrev_b32 v23, 3, v23")
    a("v_add_u32 v22, v22, v23")
    for e in range(8):
        d = 60 + 2 * e
        a(f"ds_write_b64 v22, v[{d}:{d+1}] offset:{E3 + 576*e}")
    a("s_mov_b64 exec, s[30:31]")
    a("s_waitcnt lgkmcnt(0)")
    a("s_barrier")
    stamp(a, 5)
    a(f"s_mul_i32 s23, s2, {PBLK}")
    for rnd in range(4):
        a(f"v_add_u32 v10, {320*rnd}, v0")
        if rnd == 3:
            a("v_cmp_gt_u32 vcc, 1156, v10")
            a("s_and_saveexec_b64 s[30:31], vcc")
            a("s_cbranch_execz L_k1_end")
        a("v_lshrrev_b32 v11, 2, v10")
        a("v_and_b32 v12, 3, v10")
        a(f"v_mul_u32_u24 v13, {QS3}, v12")
        a("v_sub_u32 v14, 576, v11")
        a("v_cmp_eq_u32 vcc, 0, v11")
        a("v_lshlrev_b32 v15, 3, v11")
        a("v_add_u32 v15, v15, v13")
        a("v_cndmask_b32 v14, v14, v11, vcc")
        a("v_lshlrev_b32 v14, 3, v14")
        a("v_add_u32 v14, v14, v13")
        b = 30 + 8 * rnd
        a(f"ds_read_b64 v[{b}:{b+1}], v15 offset:{E3}")
        a(f"ds_read_b64 v[{b+2}:{b+3}], v14 offset:{E3}")
        a(f"v_lshlrev_b32 v{70+rnd}, 4, v10")
        a("s_waitcnt lgkmcnt(0)")
        a(f"v_add_f32 v{b+4}, v{b}, v{b+2}")
        a(f"v_sub_f32 v{b+5}, v{b+1}, v{b+3}")
        a(f"v_add_f32 v{b+6}, v{b+1}, v{b+3}")
        a(f"v_sub_f32 v{b+7}, v{b+2}, v{b}")
        a(f"buffer_store_dwordx4 v[{b+4}:{b+7}], v{70+rnd}, s[16:19], s23 offen")
    stamp(a, 6)
    if "stamp" in DBG: a("s_waitcnt vmcnt(0)")
    stamp(a, 7)
    if "stamp" in DBG:
        a("s_memrealtime s[78:79]")
        a("s_cmp_lg_u32 s20, 0")
        a("s_cbranch_scc1 L_k1_nostamp")
        a("s_mov_b64 exec, 1")
        stamp_flush(a, 10, 6, 1)
        a("s_waitcnt vmcnt(0)")
        a.label("L_k1_nostamp")
    a("s_endpgm")
    a.label("L_k1_wt")
    if "nowt" in DBG: a("s_endpgm")
    a("s_waitcnt lgkmcnt(0)")
    srd(a, 8, 36, 0, S * DF * 2)
    srd(a, 12, 38, 0, S * DF * 2)
    srd(a, 16, 6, WT_OFF, WT_SZ)
    a("s_mov_b32 s21, s3")
    a("s_mul_i32 s22, s21, 18496")
    a("v_lshlrev_b32 v9, 4, v0")
    for rnd in range(4):
        a(f"v_add_u32 v10, {320*16*rnd}, v9")
        if rnd == 3:
            a("v_cmp_gt_u32 vcc, 18496, v10")
            a("s_and_saveexec_b64 s[30:31], vcc")
        a(f"buffer_load_dwordx4 v[{20+8*rnd}:{23+8*rnd}], v10, s[8:11], s22 offen")
        a(f"buffer_load_dwordx4 v[{24+8*rnd}:{27+8*rnd}], v10, s[12:15], s22 offen")
    a("s_mov_b64 exec, s[30:31]")
    a("s_waitcnt vmcnt(0)")
    for rnd in range(4):
        a(f"v_add_u32 v10, {320*16*rnd}, v9")
        if rnd == 3:
            a("v_cmp_gt_u32 vcc, 18496, v10")
            a("s_and_saveexec_b64 s[30:31], vcc")
        a(f"ds_write_b128 v10, v[{20+8*rnd}:{23+8*rnd}]")
        a(f"ds_write_b128 v10, v[{24+8*rnd}:{27+8*rnd}] offset:18496")
    a("s_mov_b64 exec, s[30:31]")
    a("s_waitcnt lgkmcnt(0)")
    a("s_barrier")
    a("s_lshl_b32 s23, s21, 7")
    a("v_and_b32 v11, 31, v0")
    a("v_mul_u32_u24 v12, 578, v11")
    a("v_lshrrev_b32 v13, 5, v0")
    a("v_lshlrev_b32 v14, 1, v13")
    a("v_add_u32 v12, v12, v14")
    a("v_lshlrev_b32 v14, 13, v13")
    a("v_lshlrev_b32 v15, 2, v11")
    a("v_add_u32 v14, v14, v15")
    for base in range(0, 29, 7):
        rr = list(range(base, min(base + 7, 28)))
        if base == 28:
            rr = [28]
            a("v_cmp_gt_u32 vcc, 288, v0")
            a("s_and_saveexec_b64 s[30:31], vcc")
        for i, rnd in enumerate(rr):
            r0 = 20 + 2 * i
            a(f"ds_read_u16 v{r0}, v12 offset:{20*rnd}")
            a(f"ds_read_u16 v{r0+1}, v12 offset:{18496 + 20*rnd}")
        a("s_waitcnt lgkmcnt(0)")
        for i, rnd in enumerate(rr):
            r0 = 20 + 2 * i
            a(f"v_lshl_or_b32 v{40+i}, v{r0+1}, 16, v{r0}")
            a(f"s_add_u32 s24, s23, {rnd*10*8192}")
            a(f"buffer_store_dword v{40+i}, v14, s[16:19], s24 offen")
    a("s_waitcnt vmcnt(0)")
    a("s_endpgm")
    a.label("L_k1_pf")
    srd(a, 48, 6, FL_OFF, FL_SZ)
    a("s_lshl_b32 s21, s2, 7")
    a("v_mov_b32 v9, 0")
    a("v_lshlrev_b32 v10, 15, v2")
    a("buffer_store_dword v9, v10, s[48:51], s21 offen")
    if not K1PF: a("s_branch L_k1_skipln")
    srd(a, 44, 40, 0, S * F * 2)
    a("s_mul_i32 s21, s2, 9216")
    a("v_lshlrev_b32 v9, 7, v2")
    a("buffer_load_dword v76, v9, s[8:11], s21 offen")
    a("s_waitcnt vmcnt(0)")
    a("s_and_b32 s22, s2, 7")
    a("s_lshr_b32 s23, s2, 3")
    a(f"s_mul_i32 s23, s23, {PFROWS//32}")
    a("s_mul_i32 s22, s22, 1152")
    a("s_mov_b32 s24, 9216")
    nitems = PFROWS // 32 * 9
    for i in range((nitems + 63) // 64):
        a(f"v_add_u32 v10, {64*i}, v2")
        a("v_mul_u32_u24 v11, 7282, v10")
        a("v_lshrrev_b32 v11, 16, v11")
        a("v_mul_u32_u24 v12, 9, v11")
        a("v_sub_u32 v12, v10, v12")
        a("v_add_u32 v11, s23, v11")
        a("v_mul_lo_u32 v11, v11, s24")
        a("v_lshlrev_b32 v12, 7, v12")
        a("v_add_u32 v11, v11, v12")
        if (i + 1) * 64 > nitems:
            a(f"v_cmp_gt_u32 vcc, {nitems}, v10")
            a("s_and_saveexec_b64 s[30:31], vcc")
        a(f"buffer_load_dword v76, v11, s[44:47], s22 offen")
        if (i + 1) * 64 > nitems:
            a("s_mov_b64 exec, s[30:31]")
    a("s_branch L_k1_skipln")
    a.label("L_k1_end")
    a("s_endpgm")
    return name, 128

DBG = set()
STAMP_OFF = 0x8000000
def stamp(a, idx):
    if "stamp" in DBG:
        a(f"s_memtime s[{60+2*idx}:{61+2*idx}]")
def stamp_flush(a, n, wsbase, slot):
    if "stamp" not in DBG: return
    a("s_waitcnt lgkmcnt(0)")
    srd(a, 56, wsbase, STAMP_OFF + slot * 0x10000, 0x10000)
    a("s_lshl_b32 s55, s2, 6")
    for i in range(n):
        a(f"v_mov_b32 v121, s{60+2*i}")
        a(f"v_mov_b32 v120, {4*i}")
        a(f"buffer_store_dword v121, v120, s[56:59], s55 offen")
def interleave(a, mf, other, per=2):
    if "nomfma" in DBG: mf = []
    if "noread" in DBG: other = []
    j = 0
    for i, m in enumerate(mf):
        a(m)
        k = min(len(other), (i + 1) * per)
        while j < k:
            a(other[j]); j += 1
    while j < len(other):
        a(other[j]); j += 1

def ring_loader(a, tag, R, NS, SZ, n, dma, pf=None, done=None, split=None):
    nst = NS - R
    lab = f"L_{tag}_ld"
    peel = 0
    if split is None:
        for st in range(R):
            a(f"s_mov_b32 s40, {st*SZ}")
            for x in dma(40): a(x)
        a(f"s_waitcnt vmcnt({(R-1)*n})")
    else:
        dma_w, dma_u, nW, nU, mid = split
        for st in range(R):
            a(f"s_mov_b32 s40, {st*SZ}")
            for x in dma_w(40): a(x)
        mid()
        for st in range(R):
            a(f"s_mov_b32 s40, {st*SZ}")
            for x in dma_u(40): a(x)
        a(f"s_waitcnt vmcnt({(R-1)*nU})")
        peel = R - 2
    a("s_barrier")
    a("s_mov_b32 s40, 0")
    def adv():
        a(f"s_add_u32 s40, s40, {SZ}")
        a(f"s_cmp_eq_u32 s40, {R*SZ}")
        a("s_cselect_b32 s40, 0, s40")
    for i in range(peel):
        a(f"s_waitcnt vmcnt({(R-2-i)*nU + i*n})")
        a("s_barrier")
        for x in dma(40): a(x)
        adv()
    a(f"s_mov_b32 s45, {nst - peel}")
    a.label(lab)
    a(f"s_waitcnt vmcnt({(R-2)*n})")
    a("s_barrier")
    for x in dma(40): a(x)
    adv()
    a("s_sub_u32 s45, s45, 1")
    a("s_cmp_lg_u32 s45, 0")
    a(f"s_cbranch_scc1 {lab}")
    for i in range(nst, NS):
        vm = max(0, NS - 1 - (i + 1)) * n
        a(f"s_waitcnt vmcnt({vm})")
        a("s_barrier")
    if done is None: a("s_endpgm")
    else: a(f"s_branch {done}")

def ring_compute(a, tag, R, NS, SZ, mfmas, reads, addr_upd, hook=None, mid=False):
    if mid: a("s_barrier")
    a("s_barrier")
    a("s_mov_b32 s41, 0")
    for x in addr_upd(41): a(x)
    for x in reads(0, 0): a(x)
    a(f"s_mov_b32 s45, {NS-1}")
    lab = f"L_{tag}_cp"
    a.label(lab)
    for h in (hook or []):
        if h.endswith(":"): a.label(h[:-1])
        else: a(h)
    a("s_waitcnt lgkmcnt(0)")
    interleave(a, mfmas(0), reads(1, 1))
    a(f"s_add_u32 s41, s41, {SZ}")
    a(f"s_cmp_eq_u32 s41, {R*SZ}")
    a("s_cselect_b32 s41, 0, s41")
    for x in addr_upd(41): a(x)
    a("s_waitcnt lgkmcnt(0)")
    a("s_barrier")
    interleave(a, mfmas(1), reads(0, 0))
    a("s_sub_u32 s45, s45, 1")
    a("s_cmp_lg_u32 s45, 0")
    a(f"s_cbranch_scc1 {lab}")
    a("s_waitcnt lgkmcnt(0)")
    interleave(a, mfmas(0), reads(1, 1))
    a("s_waitcnt lgkmcnt(0)")
    a("s_barrier")
    interleave(a, mfmas(1), [])

def poll_flags(a, tag, sfl, phase_off, vmask_gen, nld=4, vtmp=244, maxspin=400000):
    a(f"v_lshlrev_b32 v{vtmp+4}, 7, v2")
    a(f"s_mov_b32 s50, {maxspin}")
    a.label(f"L_poll_{tag}")
    for i in nld:
        a(f"s_mov_b32 s51, {phase_off + i*64*128}")
        a(f"buffer_load_dword v{vtmp+i}, v{vtmp+4}, s[{sfl}:{sfl+3}], s51 offen sc0 sc1")
    a("s_waitcnt vmcnt(0)")
    first = True
    for i in nld:
        a(f"v_or_b32 v{vtmp+i}, v{vtmp+i}, v{vtmp+8+i}")
        if not first: a(f"v_min_u32 v{vtmp+nld[0]}, v{vtmp+nld[0]}, v{vtmp+i}")
        first = False
    a(f"v_cmp_eq_u32 vcc, 0, v{vtmp+nld[0]}")
    a("s_sub_u32 s50, s50, 1")
    a("s_cmp_eq_u32 s50, 0")
    a(f"s_cbranch_scc1 L_pollx_{tag}")
    a("s_cmp_eq_u64 vcc, 0")
    a(f"s_cbranch_scc1 L_pollx_{tag}")
    a("s_sleep 2")
    a(f"s_branch L_poll_{tag}")
    a.label(f"L_pollx_{tag}")

def set_flag(a, sfl, phase_off):
    a("s_waitcnt vmcnt(0) lgkmcnt(0)")
    a("s_barrier")
    lab = a.newlabel("L_nf")
    a("s_cmp_lg_u32 s33, 0")
    a(f"s_cbranch_scc1 {lab}")
    a("s_lshl_b32 s51, s2, 7")
    a(f"s_add_u32 s51, s51, {phase_off}")
    a("v_mov_b32 v244, 1")
    a("v_mov_b32 v245, 0")
    a("s_mov_b64 s[30:31], exec")
    a("s_mov_b64 exec, 1")
    a(f"buffer_store_dword v244, v245, s[{sfl}:{sfl+3}], s51 offen sc0 sc1")
    a("s_mov_b64 exec, s[30:31]")
    a.label(lab)

def gen_gemm1(a):
    R = 5; NS = 32; SZ = 28672
    srd(a, 12, 4, 0, S * F * 2)
    srd(a, 16, 8, HT_OFF, HT_SZ)
    srd(a, 20, 8, U_OFF, U_SZ)
    srd(a, 24, 6, 0, F * 2)
    a("s_and_b32 s28, s2, 7")
    a("s_lshr_b32 s29, s2, 3")
    a("s_mul_i32 s28, s28, 27")
    a("s_add_u32 s28, s28, s29")
    a("s_mul_i32 s29, s28, 171")
    a("s_lshr_b32 s29, s29, 10")
    a("s_mul_i32 s30, s29, 6")
    a("s_sub_u32 s30, s28, s30")
    a("s_lshl_b32 s31, s29, 8")
    a("s_mul_i32 s32, s30, 1536")
    a("s_and_b32 s34, s33, 3")
    a("s_lshr_b32 s35, s33, 2")
    a("s_and_b32 s36, s34, 1")
    a("s_lshr_b32 s37, s34, 1")
    a("v_lshrrev_b32 v3, 4, v2")
    a("v_and_b32 v4, 15, v2")
    a("v_lshrrev_b32 v5, 2, v4")
    a("v_and_b32 v6, 3, v4")
    a("s_cmp_eq_u32 s35, 0")
    a("s_cbranch_scc1 L_g1_compute")
    a("s_lshl_b32 s38, s34, 4")
    a("v_add_u32 v9, s38, v3")
    a("s_mov_b32 s39, 9216")
    a("v_mul_lo_u32 v9, v9, s39")
    a("v_add_u32 v9, s31, v9")
    a("v_lshlrev_b32 v10, 1, v3")
    a("v_xor_b32 v11, v10, v4")
    a("v_lshlrev_b32 v11, 4, v11")
    a("v_add_u32 v20, v9, v11")
    a("v_xor_b32 v11, 8, v10")
    a("v_xor_b32 v11, v11, v4")
    a("v_lshlrev_b32 v11, 4, v11")
    a("v_add_u32 v21, v9, v11")
    for i in range(3):
        a("s_mul_i32 s38, s34, 192")
        a(f"s_add_u32 s38, s38, {64*i}")
        a("v_add_u32 v9, s38, v2")
        a("v_mul_u32_u24 v10, 683, v9")
        a("v_lshrrev_b32 v10, 16, v10")
        a("v_mul_u32_u24 v11, 96, v10")
        a("v_sub_u32 v11, v9, v11")
        a("v_mul_u32_u24 v10, 9216, v10")
        a("v_lshlrev_b32 v11, 4, v11")
        a("v_add_u32 v10, v10, v11")
        a(f"s_sub_u32 s38, s32, {1024*i}") if i else a("s_mov_b32 s38, s32")
        a(f"v_add_u32 v{22+i}, s38, v10")
    a("s_lshl_b32 s43, s34, 12")
    a("s_mul_i32 s46, s34, 3072")
    a("s_add_u32 s46, s46, 16384")
    a("s_mov_b32 s47, 0")
    a("s_mov_b32 s42, 0")
    if KROT:
        a("s_lshl_b32 s38, s30, 5")
        a("s_mul_i32 s38, s38, 171")
        a("s_lshr_b32 s38, s38, 10")
        a(f"s_mul_i32 s42, s38, {64*9216}")
        a(f"s_mul_i32 s47, s38, {8*9216}")
    def dma(wr):
        out = [f"s_add_u32 m0, s{wr}, s43"]
        for i in range(4):
            out.append(f"s_add_u32 s44, s42, {i*(4*9216-1024)}")
            out.append(f"buffer_load_dwordx4 v{20 + (i>>1)}, s[12:15], s44 offen offset:{1024*i} lds")
        out.append(f"s_add_u32 m0, s{wr}, s46")
        out.append(f"s_add_u32 s42, s42, {64*9216}")
        for i in range(3):
            out.append(f"buffer_load_dwordx4 v{22+i}, s[16:19], s47 offen offset:{1024*i} lds")
        out.append(f"s_add_u32 s47, s47, {8*9216}")
        if KROT:
            out += [f"s_cmp_eq_u32 s42, {NS*64*9216}", "s_cselect_b32 s42, 0, s42", "s_cselect_b32 s47, 0, s47"]
        return out
    ring_loader(a, "g1", R, NS, SZ, 7, dma, done="L_g1_epi_ld")
    a.label("L_g1_compute")
    hook = None
    VW = [100, 101, 102, 103]; VH = 104
    VWc = [105, 106, 107, 108]; VHc = 109
    a("v_and_b32 v7, 1, v3")
    a("v_lshlrev_b32 v7, 2, v7")
    a("v_or_b32 v7, v7, v5")
    a("v_lshlrev_b32 v8, 3, v3")
    a("v_add_u32 v8, v8, v5")
    a("v_lshlrev_b32 v8, 8, v8")
    a("v_lshlrev_b32 v9, 3, v6")
    a("v_add_u32 v8, v8, v9")
    a("s_lshl_b32 s38, s36, 2")
    for fbk in range(4):
        a(f"s_add_u32 s39, s38, {fbk}")
        a(f"v_xor_b32 v9, s39, v7")
        a(f"v_lshlrev_b32 v9, 5, v9")
        a(f"v_add_u32 v{VW[fbk]}, v8, v9")
    a("v_mul_u32_u24 v9, 96, v3")
    a("s_mul_i32 s38, s37, 48")
    a("v_add_u32 v9, s38, v9")
    a("v_add_u32 v9, v9, v4")
    a("v_lshlrev_b32 v9, 4, v9")
    a(f"v_add_u32 v{VH}, 16384, v9")
    ACC = 16
    for i in range(48):
        a(f"v_mov_b32 v{ACC+i}, 0")
    FR = [112, 140]
    def acc(fbk, dbk):
        b = ACC + (fbk * 3 + dbk) * 4
        return f"v[{b}:{b+3}]"
    def mfmas(st):
        out = []
        for dbk in range(3):
            for fbk in range(4):
                w = FR[st] + 4 * fbk; h = FR[st] + 16 + 4 * dbk
                out.append(f"v_mfma_f32_16x16x32_bf16 {acc(fbk,dbk)}, v[{w}:{w+3}], v[{h}:{h+3}], {acc(fbk,dbk)}")
        return out
    def reads(st, sub):
        out = []
        for fbk in range(4):
            w = FR[st] + 4 * fbk
            out.append(f"ds_read_b64_tr_b16 v[{w}:{w+1}], v{VWc[fbk]} offset:{sub*8192}")
            out.append(f"ds_read_b64_tr_b16 v[{w+2}:{w+3}], v{VWc[fbk]} offset:{sub*8192+1024}")
        for dbk in range(3):
            h = FR[st] + 16 + 4 * dbk
            out.append(f"ds_read_b128 v[{h}:{h+3}], v{VHc} offset:{sub*6144+256*dbk}")
        return out
    def addr_upd(sreg):
        out = [f"v_add_u32 v{VWc[k]}, s{sreg}, v{VW[k]}" for k in range(4)]
        out.append(f"v_add_u32 v{VHc}, s{sreg}, v{VH}")
        return out
    ring_compute(a, "g1", R, NS, SZ, mfmas, reads, addr_upd, hook)
    a("v_lshlrev_b32 v9, 4, v2")
    a("s_mul_i32 s38, s34, 6144")
    a("v_add_u32 v10, s38, v9")
    a("s_nop 4")
    for j in range(6):
        b = ACC + (6 + j) * 4
        a(f"ds_write_b128 v10, v[{b}:{b+3}] offset:{1024*j}")
    a("s_branch L_g1_epi")
    a.label("L_g1_epi_ld")
    a("v_lshlrev_b32 v9, 4, v2")
    a("s_mul_i32 s38, s34, 6144")
    a("v_add_u32 v10, s38, v9")
    a.label("L_g1_epi")
    a("s_lshl_b32 s38, s36, 7")
    a("s_add_u32 s38, s38, s31")
    a("s_lshl_b32 s39, s35, 6")
    a("s_add_u32 s38, s38, s39")
    a("v_lshlrev_b32 v12, 3, v3")
    for k in range(2):
        a(f"buffer_load_dwordx2 v[{64+2*k}:{65+2*k}], v12, s[24:27], s38 offen offset:{32*k}")
    k0 = -2.0 * math.log2(math.e) * math.sqrt(2.0 / math.pi)
    k1 = k0 * 0.044715
    a(f"s_mov_b32 s46, {fl(k0)}")
    a(f"s_mov_b32 s47, {fl(k1)}")
    a("v_mov_b32 v102, s46")
    a("s_lshl_b32 s38, s29, 4")
    a("s_lshl_b32 s39, s36, 3")
    a("s_add_u32 s38, s38, s39")
    a("s_lshl_b32 s39, s35, 2")
    a("s_add_u32 s38, s38, s39")
    a("v_lshrrev_b32 v12, 1, v3")
    a("v_add_u32 v12, s38, v12")
    a("v_mul_u32_u24 v12, 576, v12")
    a("s_mul_i32 s38, s37, 48")
    a("v_add_u32 v12, s38, v12")
    a("v_add_u32 v12, v12, v4")
    a("v_lshlrev_b32 v12, 4, v12")
    a("v_add_u32 v12, s32, v12")
    a("v_and_b32 v13, 1, v3")
    a("v_lshlrev_b32 v13, 3, v13")
    a("v_add_u32 v12, v12, v13")
    a("s_waitcnt lgkmcnt(0)")
    a("s_barrier")
    a("s_cmp_eq_u32 s35, 0")
    a("s_cbranch_scc1 L_g1_epi2")
    for j in range(6):
        b = ACC + j * 4
        a(f"ds_read_b128 v[{b}:{b+3}], v10 offset:{1024*j}")
    a.label("L_g1_epi2")
    a("s_waitcnt vmcnt(0) lgkmcnt(0)")
    for k in range(2):
        a(f"v_lshlrev_b32 v{80+4*k}, 16, v{64+2*k}")
        a(f"v_and_b32 v{81+4*k}, 0xffff0000, v{64+2*k}")
        a(f"v_lshlrev_b32 v{82+4*k}, 16, v{65+2*k}")
        a(f"v_and_b32 v{83+4*k}, 0xffff0000, v{65+2*k}")
    cnt = 0
    for k in range(2):
        for dbk in range(3):
            b = ACC + (k * 3 + dbk) * 4
            for r in (0, 2):
                round_bf16_pair(a, b + r, b + r + 1, 64)
                a(f"v_add_f32 v{b+r}, v{b+r}, v{80+4*k+r}")
                a(f"v_add_f32 v{b+r+1}, v{b+r+1}, v{80+4*k+r+1}")
                round_bf16_pair(a, b + r, b + r + 1, 65)
            for r in range(4):
                t = 66 + r
                a(f"v_mul_f32 v{t}, v{b+r}, v{b+r}")
                a(f"v_fma_f32 v{t}, v{t}, s47, v102")
                a(f"v_mul_f32 v{t}, v{t}, v{b+r}")
                a(f"v_exp_f32 v{t}, v{t}")
            for r in range(4):
                t = 66 + r
                a(f"v_add_f32 v{t}, 1.0, v{t}")
                a(f"v_rcp_f32 v{t}, v{t}")
            a("s_nop 0")
            for r in range(4):
                t = 66 + r
                a(f"v_mul_f32 v{t}, v{t}, v{b+r}")
            o = 70 + 2 * (cnt % 4); cnt += 1
            a(f"v_cvt_pk_bf16_f32 v{o}, v66, v67")
            a(f"v_cvt_pk_bf16_f32 v{o+1}, v68, v69")
            a(f"s_mov_b32 s38, {k*18432}")
            a(f"buffer_store_dwordx2 v[{o}:{o+1}], v12, s[20:23], s38 offen offset:{256*dbk} sc0 sc1")
    a("s_branch L_phB_done")

class P2(Pool):
    def release(self, r):
        if r < self.lo or r >= self.hi: return
        Pool.release(self, r)

TB1 = 139264; TB2 = TB1 + 16384
def gen_colfft(a):
    srd(a, 12, 8, PT_OFF, PT_SZ)
    srd(a, 16, 8, WT_OFF, WT_SZ)
    srd(a, 20, 8, ZT_OFF, ZT_SZ)
    a("s_sub_u32 s28, s2, 216")
    a("s_lshl_b32 s28, s28, 3")
    a("s_add_u32 s28, s28, s33")
    a("s_lshl_b32 s29, s28, 6")
    a("v_lshrrev_b32 v14, 2, v2")
    a(f"v_mul_u32_u24 v14, {PBLK}, v14")
    a("v_and_b32 v15, 3, v2")
    a("v_lshlrev_b32 v15, 4, v15")
    a("v_add_u32 v14, v14, v15")
    a("s_lshl_b32 s30, s28, 13")
    a("v_lshlrev_b32 v3, 4, v2")
    a("v_lshlrev_b32 v4, 2, v2")
    DQ = [16 + 4*i for i in range(16)]
    for aa in range(16):
        a(f"s_add_u32 s31, s29, {16*PBLK*aa}")
        a(f"buffer_load_dwordx4 v[{DQ[aa]}:{DQ[aa]+3}], v14, s[12:15], s31 offen")
    WR = 80
    for m in range(4):
        for kc in range(8):
            a(f"buffer_load_dword v{WR + 8*m + kc}, v4, s[16:19], s30 offen offset:{256*m + 1024*kc}") if 256*m + 1024*kc < 4096 else None
            if 256*m + 1024*kc >= 4096:
                a(f"s_add_u32 s31, s30, {1024*kc}")
                a(f"buffer_load_dword v{WR + 8*m + kc}, v4, s[16:19], s31 offen offset:{256*m}")
    for i in range(4):
        a(f"v_add_u32 v5, {512*i}, v0")
        a("v_lshrrev_b32 v6, 7, v5")
        a("v_and_b32 v7, 127, v5")
        a("v_mul_u32_u24 v6, v6, v7")
        a("v_cvt_f32_u32 v6, v6")
        a(f"v_mul_f32 v6, {fl(-1.0/2048)}, v6")
        a("v_cos_f32 v8, v6")
        a("v_sin_f32 v9, v6")
        a("v_lshlrev_b32 v5, 3, v5")
        a(f"v_add_u32 v5, {TB1}, v5")
        a("ds_write_b64 v5, v[8:9]")
    a("v_cmp_gt_u32 vcc, 128, v0")
    a("s_and_saveexec_b64 s[34:35], vcc")
    a("v_lshrrev_b32 v6, 3, v0")
    a("v_and_b32 v7, 7, v0")
    a("v_mul_u32_u24 v6, v6, v7")
    a("v_cvt_f32_u32 v6, v6")
    a(f"v_mul_f32 v6, {fl(-1.0/128)}, v6")
    a("v_cos_f32 v8, v6")
    a("v_sin_f32 v9, v6")
    a("v_lshlrev_b32 v5, 3, v0")
    a(f"v_add_u32 v5, {TB2}, v5")
    a("ds_write_b64 v5, v[8:9]")
    a("s_mov_b64 exec, s[34:35]")
    a("s_waitcnt lgkmcnt(0)")
    a("s_barrier")
    a("s_cmp_ge_u32 s28, 289")
    a("s_cbranch_scc1 L_phB_done")
    a("s_mul_i32 s32, s33, 17408")
    a("v_add_u32 v5, s32, v3")
    a("v_lshrrev_b32 v10, 2, v2")
    a("v_and_b32 v11, 3, v2")
    a("v_mul_u32_u24 v6, 1088, v10")
    a("v_lshlrev_b32 v12, 4, v11")
    a("v_add_u32 v6, v6, v12")
    a("v_add_u32 v6, s32, v6")
    a("v_mul_u32_u24 v7, 4128, v11")
    a("v_lshlrev_b32 v13, 4, v10")
    a("v_add_u32 v7, v7, v13")
    a("v_add_u32 v7, s32, v7")
    a(f"v_add_u32 v8, {TB1}, v3")
    a(f"v_add_u32 v9, {TB2}, v12")
    TW = 112
    def tw_reads(vaddr, stride):
        for i in range(1, 16):
            a(f"ds_read_b128 v[{TW+4*i}:{TW+4*i+3}], v{vaddr} offset:{stride*i}")
    pool = P2(176, 256)
    g = FG(a, pool)
    def quads_to_c(h):
        return [((DQ[i] + 2*h, 1), (DQ[i] + 2*h + 1, 1)) for i in range(16)]
    tw_reads(8, 1024)
    a("s_waitcnt vmcnt(32)")
    def dft16_both(sgn):
        return [g.dft(quads_to_c(h), sgn) for h in range(2)]
    outs = dft16_both(-1)
    a("s_waitcnt lgkmcnt(0)")
    for k in range(16):
        for h in range(2):
            d = DQ[k] + 2*h
            if k == 0:
                g.mov(outs[h][0][0], d); g.mov(outs[h][0][1], d + 1); g.frc(outs[h][0])
            else:
                g.cmul(outs[h][k], TW + 4*k + 2*h, TW + 4*k + 2*h + 1, dst=d)
        a(f"ds_write_b128 v5, v[{DQ[k]}:{DQ[k]+3}] offset:{1088*k}")
    for b in range(16):
        a(f"ds_read_b128 v[{DQ[b]}:{DQ[b]+3}], v6 offset:{64*b}")
    tw_reads(9, 64)
    a("s_waitcnt lgkmcnt(15)")
    outs = dft16_both(-1)
    a("s_waitcnt lgkmcnt(0)")
    for k in range(16):
        for h in range(2):
            d = DQ[k] + 2*h
            if k == 0:
                g.mov(outs[h][0][0], d); g.mov(outs[h][0][1], d + 1); g.frc(outs[h][0])
            else:
                g.cmul(outs[h][k], TW + 4*k + 2*h, TW + 4*k + 2*h + 1, dst=d)
        a(f"ds_write_b128 v7, v[{DQ[k]}:{DQ[k]+3}] offset:{256*k}")
    for m in range(4):
        for cp in range(4):
            q = DQ[4*m + cp]
            a(f"ds_read_b128 v[{q}:{q+3}], v5 offset:{4128*cp + 1024*m}")
    a("s_waitcnt vmcnt(0) lgkmcnt(0)")
    if W2PF_FFT:
        a("s_load_dwordx2 s[88:89], s[0:1], 48")
        a("s_and_b32 s48, s2, 7")
        a("s_lshr_b32 s49, s48, 1")
        a("s_mul_i32 s49, s49, 1152")
        a("s_and_b32 s48, s48, 1")
        a("s_lshl_b32 s48, s48, 11")
        a("s_sub_u32 s50, s2, 216")
        a("s_lshr_b32 s50, s50, 3")
        a("s_lshl_b32 s50, s50, 3")
        a("s_add_u32 s50, s50, s33")
        a("s_lshl_b32 s50, s50, 5")
        a("s_add_u32 s49, s49, s50")
        a("v_lshrrev_b32 v10, 4, v2")
        a("v_add_u32 v10, s49, v10")
        a("v_lshlrev_b32 v10, 12, v10")
        a("v_and_b32 v11, 15, v2")
        a("v_lshlrev_b32 v11, 7, v11")
        a("v_add_u32 v10, v10, v11")
        a("v_add_u32 v10, s48, v10")
        a("s_waitcnt lgkmcnt(0)")
        srd(a, 92, 88, 0, S * F * 2)
        a("s_cmp_ge_u32 s50, 1152")
        a("s_cbranch_scc1 L_cf_nopf")
        for i in range(8):
            a(f"s_mov_b32 s51, {i*4*4096}")
            a(f"buffer_load_dword v13, v10, s[92:95], s51 offen")
        a.label("L_cf_nopf")
    for m in range(4):
        xs = []
        for c in range(8):
            q = DQ[4*m + (c >> 1)] + 2*(c & 1)
            xs.append(((q, 1), (q + 1, 1)))
        X = g.dft(xs, -1)
        Y = []
        for kc in range(8):
            w = WR + 8*m + kc
            wr = pool.alloc(); wi = pool.alloc()
            a(f"v_lshlrev_b32 v{wr}, 16, v{w}")
            a(f"v_and_b32 v{wi}, 0xffff0000, v{w}")
            Y.append(g.cmul(X[kc], wr, wi))
            pool.release(wr); pool.release(wi)
        dsts = [DQ[4*m + (c >> 1)] + 2*(c & 1) for c in range(8)]
        g.dft(Y, 1, dsts)
        for cp in range(4):
            q = DQ[4*m + cp]
            a(f"ds_write_b128 v5, v[{q}:{q+3}] offset:{4128*cp + 1024*m}")
    for kb in range(16):
        a(f"ds_read_b128 v[{DQ[kb]}:{DQ[kb]+3}], v7 offset:{256*kb}")
    a("s_waitcnt lgkmcnt(0)")
    def twiddle_in(conj):
        res = [[], []]
        for k in range(16):
            for h in range(2):
                q = DQ[k] + 2*h
                x = ((q, 1), (q + 1, 1))
                if k == 0: res[h].append(x)
                else: res[h].append(g.cmul(x, TW + 4*k + 2*h, TW + 4*k + 2*h + 1, conj=conj))
        return res
    xin = twiddle_in(True)
    tw_reads(8, 1024)
    for h in range(2):
        g.dft(xin[h], 1, [DQ[b] + 2*h for b in range(16)])
    for b in range(16):
        a(f"ds_write_b128 v6, v[{DQ[b]}:{DQ[b]+3}] offset:{64*b}")
    for ka in range(16):
        a(f"ds_read_b128 v[{DQ[ka]}:{DQ[ka]+3}], v5 offset:{1088*ka}")
    a("s_waitcnt lgkmcnt(0)")
    xin = twiddle_in(True)
    for h in range(2):
        g.dft(xin[h], 1, [DQ[aa] + 2*h for aa in range(16)])
    a("v_lshrrev_b32 v15, 3, v2")
    a(f"v_mul_u32_u24 v15, {ZBLK}, v15")
    a("v_and_b32 v13, 7, v2")
    a("v_lshlrev_b32 v13, 4, v13")
    a("v_add_u32 v15, v15, v13")
    a("s_lshl_b32 s38, s28, 7")
    for aa in range(16):
        a(f"s_add_u32 s31, s38, {8*ZBLK*aa}")
        a(f"buffer_store_dwordx4 v[{DQ[aa]}:{DQ[aa]+3}], v15, s[20:23], s31 offen sc0 sc1")
    a("s_branch L_phB_done")

def rstamp(a, i):
    if "stamp" in DBG:
        a(f"s_memrealtime s[{60+2*i}:{61+2*i}]")

def phase_c2(a):
    R = 4; NS = 18; SZ = 34816
    a("s_and_b32 s28, s2, 7")
    a("s_lshr_b32 s29, s2, 3")
    a("s_lshr_b32 s30, s28, 1")
    a("s_and_b32 s31, s28, 1")
    a("s_lshl_b32 s31, s31, 3")
    a("s_lshr_b32 s32, s29, 2")
    a("s_add_u32 s31, s31, s32")
    a("s_and_b32 s32, s29, 3")
    a("s_and_b32 s34, s33, 3")
    a("s_lshr_b32 s35, s33, 2")
    a("v_lshrrev_b32 v3, 4, v2")
    a("v_and_b32 v4, 15, v2")
    a("v_lshrrev_b32 v5, 2, v4")
    a("v_and_b32 v6, 3, v4")
    srd(a, 12, 4, 0, S * F * 2)
    srd(a, 16, 8, U_OFF, U_SZ)
    srd(a, 20, 8, PART_OFF, PART_SZ)
    a("s_cmp_eq_u32 s35, 0")
    a("s_cbranch_scc1 L_g2_compute")
    a("s_mul_i32 s38, s30, 1152")
    a("s_lshl_b32 s39, s34, 4")
    a("s_add_u32 s38, s38, s39")
    a("v_add_u32 v9, s38, v3")
    a("v_lshlrev_b32 v9, 12, v9")
    a("s_lshl_b32 s39, s31, 8")
    a("v_add_u32 v9, s39, v9")
    a("v_lshlrev_b32 v10, 1, v3")
    a("v_xor_b32 v11, v10, v4")
    a("v_lshlrev_b32 v11, 4, v11")
    a("v_add_u32 v20, v9, v11")
    a("v_xor_b32 v11, 8, v10")
    a("v_xor_b32 v11, v11, v4")
    a("v_lshlrev_b32 v11, 4, v11")
    a("v_add_u32 v21, v9, v11")
    a("s_lshl_b32 s43, s34, 12")
    a("s_mov_b32 s42, 0")
    a("s_mov_b32 s47, 0")
    if KROT3:
        a("s_mul_i32 s38, s32, 9")
        a("s_lshr_b32 s38, s38, 1")
        a(f"s_mul_i32 s42, s38, {64*4096}")
        a(f"s_mul_i32 s47, s38, {8*9216}")
    a("s_cmp_lt_u32 s34, 2")
    a("s_cbranch_scc1 L_g2_v1")
    a("s_branch L_g2_v2")
    for var in (1, 2):
        a.label(f"L_g2_v{var}")
        n = 5 if var == 1 else 4
        for i in range(n):
            if var == 1:
                a("s_mul_i32 s38, s34, 320")
                a(f"s_add_u32 s38, s38, {64*i}")
            else:
                a("s_lshl_b32 s38, s34, 8")
                a(f"s_add_u32 s38, s38, {640 - 512 + 64*i}")
            a("v_add_u32 v9, s38, v2")
            a("v_mul_u32_u24 v10, 3641, v9")
            a("v_lshrrev_b32 v10, 19, v10")
            a("v_mul_u32_u24 v11, 144, v10")
            a("v_sub_u32 v11, v9, v11")
            a("v_mul_u32_u24 v10, 9216, v10")
            a("v_lshlrev_b32 v11, 4, v11")
            a("v_add_u32 v10, v10, v11")
            a(f"s_mul_i32 s38, s30, {144*9216}")
            a("s_mul_i32 s39, s32, 2304")
            a("s_add_u32 s38, s38, s39")
            if i & 3:
                a(f"s_sub_u32 s38, s38, {1024*(i&3)}")
            a(f"v_add_u32 v{22+i}, s38, v10")
        if var == 1:
            a("s_mul_i32 s46, s34, 5120")
            a("s_add_u32 s46, s46, 16384")
        else:
            a("s_lshl_b32 s46, s34, 12")
            a(f"s_add_u32 s46, s46, {16384 + 10240 - 8192}")
        def dma_w(wr):
            out = [f"s_add_u32 m0, s{wr}, s43"]
            for i in range(4):
                out.append(f"s_add_u32 s44, s42, {i*(4*4096-1024)}")
                out.append(f"buffer_load_dwordx4 v{20 + (i>>1)}, s[12:15], s44 offen offset:{1024*i} lds")
            out.append(f"s_add_u32 s42, s42, {64*4096}")
            out += [f"s_cmp_eq_u32 s42, {NS*64*4096}", "s_cselect_b32 s42, 0, s42"]
            return out
        def dma_u(wr, n=n):
            out = [f"s_add_u32 m0, s{wr}, s46", "s_nop 0"]
            for i in range(n):
                if i == 4:
                    out.append("s_add_u32 m0, m0, 4096")
                    out.append("s_nop 0")
                out.append(f"buffer_load_dwordx4 v{22+i}, s[16:19], s47 offen offset:{1024*(i&3)} lds")
            out.append(f"s_add_u32 s47, s47, {8*9216}")
            out += [f"s_cmp_eq_u32 s47, {NS*8*9216}", "s_cselect_b32 s47, 0, s47"]
            return out
        def dma(wr): return dma_w(wr) + dma_u(wr)
        def mid(var=var):
            if var == 2:
                a("s_cmp_lg_u32 s33, 7")
                a("s_cbranch_scc1 L_c2_go")
                for i in range(3): a(f"v_mov_b32 v{252+i}, 0")
                a("v_cmp_le_u32 vcc, 24, v2")
                a("s_nop 1")
                a("v_cndmask_b32 v255, 0, 1, vcc")
                poll_flags(a, "u", 56, 0, None, nld=[0, 1, 2, 3])
                a.label("L_c2_go")
            a("s_barrier")
        ring_loader(a, f"g2v{var}", R, NS, SZ, 4 + n, dma, done="L_phC_done", split=(dma_w, dma_u, 4, n, mid))
    a.label("L_g2_compute")
    VW = [100, 101]; VU = 102; VWc = [103, 104]; VUc = 105
    a("v_and_b32 v7, 1, v3")
    a("v_lshlrev_b32 v7, 2, v7")
    a("v_or_b32 v7, v7, v5")
    a("v_lshlrev_b32 v8, 3, v3")
    a("v_add_u32 v8, v8, v5")
    a("v_lshlrev_b32 v8, 8, v8")
    a("v_lshlrev_b32 v9, 3, v6")
    a("v_add_u32 v8, v8, v9")
    a("s_lshl_b32 s38, s34, 1")
    for sbk in range(2):
        a(f"s_add_u32 s39, s38, {sbk}")
        a(f"v_xor_b32 v9, s39, v7")
        a(f"v_lshlrev_b32 v9, 5, v9")
        a(f"v_add_u32 v{VW[sbk]}, v8, v9")
    a("v_mul_u32_u24 v9, 144, v3")
    a("v_add_u32 v9, v9, v4")
    a("v_lshlrev_b32 v9, 4, v9")
    a(f"v_add_u32 v{VU}, 16384, v9")
    ACC = 16
    for i in range(72):
        a(f"v_mov_b32 v{ACC+i}, 0")
    FR = [112, 156]
    def acc(dbk, sbk):
        b = ACC + (dbk * 2 + sbk) * 4
        return f"v[{b}:{b+3}]"
    def mfmas(st):
        out = []
        for dbk in range(9):
            for sbk in range(2):
                w = FR[st] + 4 * sbk; u = FR[st] + 8 + 4 * dbk
                out.append(f"v_mfma_f32_16x16x32_bf16 {acc(dbk,sbk)}, v[{u}:{u+3}], v[{w}:{w+3}], {acc(dbk,sbk)}")
        return out
    def reads(st, sub):
        out = []
        for sbk in range(2):
            w = FR[st] + 4 * sbk
            out.append(f"ds_read_b64_tr_b16 v[{w}:{w+1}], v{VWc[sbk]} offset:{sub*8192}")
            out.append(f"ds_read_b64_tr_b16 v[{w+2}:{w+3}], v{VWc[sbk]} offset:{sub*8192+1024}")
        for dbk in range(9):
            u = FR[st] + 8 + 4 * dbk
            out.append(f"ds_read_b128 v[{u}:{u+3}], v{VUc} offset:{sub*9216+256*dbk}")
        return out
    def addr_upd(sreg):
        out = [f"v_add_u32 v{VWc[k]}, s{sreg}, v{VW[k]}" for k in range(2)]
        out.append(f"v_add_u32 v{VUc}, s{sreg}, v{VU}")
        return out
    ring_compute(a, "g2", R, NS, SZ, mfmas, reads, addr_upd, mid=True)
    a("s_lshl_b32 s38, s30, 11")
    a("s_lshl_b32 s39, s31, 7")
    a("s_add_u32 s38, s38, s39")
    a("s_lshl_b32 s39, s34, 5")
    a("s_add_u32 s38, s38, s39")
    a("v_add_u32 v12, s38, v4")
    a("s_mov_b32 s39, 2304")
    a("v_mul_lo_u32 v12, v12, s39")
    a("s_mul_i32 s38, s32, 576")
    a("v_add_u32 v12, s38, v12")
    a("v_lshlrev_b32 v13, 4, v3")
    a("v_add_u32 v12, v12, v13")
    a(f"s_mov_b32 s39, {16*2304}")
    a("s_nop 3")
    for dbk in range(9):
        for sbk in range(2):
            b = ACC + (dbk * 2 + sbk) * 4
            so = "s39" if sbk else "0"
            a(f"buffer_store_dwordx4 v[{b}:{b+3}], v12, s[20:23], {so} offen offset:{64*dbk} sc0 sc1")

def phase_d(a):
    RA = 0; RB = 20736; RY = 41472; QS = 5184; QS3 = 4672
    a("s_mov_b32 s40, s33")
    a("s_load_dwordx2 s[4:5], s[0:1], 0")
    a("s_load_dwordx2 s[6:7], s[0:1], 56")
    a("s_load_dwordx2 s[10:11], s[0:1], 64")
    srd(a, 36, 8, ZT_OFF, ZT_SZ)
    srd(a, 20, 8, PART_OFF, PART_SZ)
    a("v_mul_u32_u24 v3, 911, v0")
    a("v_lshrrev_b32 v3, 16, v3")
    a("v_mul_u32_u24 v4, 72, v3")
    a("v_sub_u32 v4, v0, v4")
    a("v_lshrrev_b32 v5, 3, v4")
    a("v_and_b32 v6, 7, v4")
    a(f"v_mul_u32_u24 v7, {QS}, v3")
    a("v_mul_u32_u24 v8, 576, v5")
    a("v_add_u32 v7, v7, v8")
    a("s_cmp_lg_u32 s33, 7")
    a("s_cbranch_scc1 L_d_go")
    a("v_add_u32 v255, 192, v2")
    a("v_subrev_u32 v255, 216, v255")
    a("v_cmp_lt_u32 vcc, 36, v255")
    a("s_nop 1")
    a("v_cndmask_b32 v255, 0, 1, vcc")
    poll_flags(a, "z", 56, 0, None, nld=[3])
    a.label("L_d_go")
    a("s_barrier")
    a("s_lshr_b32 s42, s2, 1")
    a(f"s_mul_i32 s42, s42, {ZBLK}")
    a("s_and_b32 s43, s2, 1")
    a("s_lshl_b32 s43, s43, 6")
    a("s_add_u32 s42, s42, s43")
    for rnd in range(3):
        a(f"v_add_u32 v10, {512*rnd}, v0")
        a("v_lshrrev_b32 v11, 2, v10")
        a("v_lshlrev_b32 v11, 7, v11")
        a("v_and_b32 v12, 3, v10")
        a("v_lshlrev_b32 v12, 4, v12")
        a("v_add_u32 v13, v11, v12")
        a(f"buffer_load_dwordx4 v[{100+4*rnd}:{103+4*rnd}], v13, s[36:39], s42 offen")
    a("v_cvt_f32_u32 v60, v6")
    for c in range(1, 8):
        a(f"v_mul_f32 v61, {fl(c/64.0)}, v60")
        a(f"v_cos_f32 v{80+2*c}, v61")
        a(f"v_sin_f32 v{81+2*c}, v61")
    a("s_waitcnt vmcnt(0) lgkmcnt(0)")
    srd(a, 12, 4, 0, S * D * 2)
    srd(a, 16, 6, 0, S * 2)
    srd(a, 24, 10, 0, S * D * 2)
    for rnd in range(3):
        b = 100 + 4 * rnd
        a(f"v_add_u32 v10, {512*rnd}, v0")
        if rnd == 2:
            a("v_cmp_gt_u32 vcc, 1156, v10")
            a("s_and_saveexec_b64 s[30:31], vcc")
        a("v_lshrrev_b32 v11, 2, v10")
        a("v_and_b32 v12, 3, v10")
        a(f"v_mul_u32_u24 v13, {QS3}, v12")
        a("v_cmp_eq_u32 vcc, 0, v11")
        a("v_mov_b32 v17, 288")
        a("v_cmp_eq_u32 s[28:29], v17, v11")
        a("s_or_b64 vcc, vcc, s[28:29]")
        a("v_sub_u32 v14, 576, v11")
        a("v_lshlrev_b32 v18, 3, v11")
        a("v_cndmask_b32_e64 v%d, v%d, 0, vcc" % (b+1, b+1))
        a("v_cndmask_b32_e64 v%d, v%d, 0, vcc" % (b+3, b+3))
        a("v_add_u32 v18, v18, v13")
        a("v_lshlrev_b32 v14, 3, v14")
        a("v_add_u32 v14, v14, v13")
        a(f"v_sub_f32 v20, v{b}, v{b+3}")
        a(f"v_add_f32 v21, v{b+1}, v{b+2}")
        a(f"v_add_f32 v22, v{b}, v{b+3}")
        a(f"v_sub_f32 v23, v{b+2}, v{b+1}")
        a(f"ds_write_b64 v18, v[20:21] offset:{RA}")
        a(f"ds_write_b64 v14, v[22:23] offset:{RA}")
    a("s_mov_b64 exec, s[30:31]")
    a("s_waitcnt lgkmcnt(0)")
    a("s_barrier")
    rstamp(a, 5)
    a("s_cmp_ge_u32 s33, 5")
    a("s_cbranch_scc1 L_d_red")
    a("v_cmp_gt_u32 vcc, 288, v0")
    a("s_and_saveexec_b64 s[30:31], vcc")
    a(f"v_mul_u32_u24 v22, {QS3}, v3")
    a("v_mul_u32_u24 v23, 9, v6")
    a("v_add_u32 v23, v23, v5")
    a("v_lshlrev_b32 v23, 3, v23")
    a("v_add_u32 v22, v22, v23")
    for e in range(8):
        a(f"ds_read_b64 v[{30+2*e}:{31+2*e}], v22 offset:{RA + 576*e}")
    a("v_lshlrev_b32 v20, 3, v6")
    a("v_add_u32 v20, v7, v20")
    a("v_mul_u32_u24 v21, 72, v6")
    a("v_add_u32 v21, v7, v21")
    a("s_waitcnt lgkmcnt(0)")
    pool = P2(200, 244); g = FG(a, pool)
    ys = g.dft([((30+2*b, 1), (31+2*b, 1)) for b in range(8)], 1)
    for aa in range(8):
        d = 60 + 2 * aa
        if aa == 0:
            g.mov(ys[0][0], d); g.mov(ys[0][1], d + 1); g.frc(ys[0])
        else:
            g.cmul(ys[aa], 80 + 2*aa, 81 + 2*aa, dst=d)
    for aa in range(8):
        d = 60 + 2 * aa
        a(f"ds_write_b64 v20, v[{d}:{d+1}] offset:{RB + 72*aa}")
    a("s_waitcnt lgkmcnt(0)")
    a("s_barrier")
    for c in range(8):
        a(f"ds_read_b64 v[{30+2*c}:{31+2*c}], v21 offset:{RB + 8*c}")
    a("s_waitcnt lgkmcnt(0)")
    pool = P2(200, 244); g = FG(a, pool)
    g.dft([((30+2*b, 1), (31+2*b, 1)) for b in range(8)], 1, [60 + 2*b for b in range(8)])
    for b in range(8):
        d = 60 + 2 * b
        a(f"ds_write_b64 v20, v[{d}:{d+1}] offset:{RA + 64*b}")
    a("s_mov_b64 exec, s[30:31]")
    a("v_cvt_f32_u32 v60, v2")
    for k1 in range(1, 9):
        a(f"v_mul_f32 v61, {fl(k1/576.0)}, v60")
        a(f"v_cos_f32 v{80+2*k1}, v61")
        a(f"v_sin_f32 v{81+2*k1}, v61")
    a("s_waitcnt lgkmcnt(0)")
    a("s_barrier")
    a("s_cmp_ge_u32 s40, 4")
    a("s_cbranch_scc1 L_d_skip1")
    a(f"s_mul_i32 s43, s40, {QS}")
    a("v_lshlrev_b32 v10, 3, v2")
    a("v_add_u32 v10, s43, v10")
    for k1 in range(9):
        a(f"ds_read_b64 v[{30+2*k1}:{31+2*k1}], v10 offset:{RA + 576*k1}")
    a("s_waitcnt lgkmcnt(0)")
    pool = P2(200, 244); g = FG(a, pool)
    xs = []
    for k1 in range(9):
        x = ((30+2*k1, 1), (31+2*k1, 1))
        xs.append(x if k1 == 0 else g.cmul(x, 80 + 2*k1, 81 + 2*k1))
    g.dft(xs, 1, [60 + 2*n for n in range(9)])
    sc = fl(1.0 / (2.0 * 2048 * 576))
    for n in range(9):
        a(f"v_mul_f32 v{60+2*n}, {sc}, v{60+2*n}")
        a(f"v_mul_f32 v{61+2*n}, {sc}, v{61+2*n}")
        round_bf16_pair(a, 60 + 2*n, 61 + 2*n, 17 + (n & 1))
    a("s_mul_i32 s43, s40, 4608")
    a("v_lshlrev_b32 v10, 2, v2")
    a("v_add_u32 v10, s43, v10")
    for n in range(9):
        a(f"ds_write_b32 v10, v{60+2*n} offset:{RB + 256*n}")
        a(f"ds_write_b32 v10, v{61+2*n} offset:{RB + 2304 + 256*n}")
    a.label("L_d_skip1")
    a("s_waitcnt lgkmcnt(0)")
    a("s_barrier")
    a("s_branch L_k2_end")
    a.label("L_d_red")
    a("s_cmp_lg_u32 s33, 7")
    a("s_cbranch_scc1 L_d_red2")
    a("s_lshl_b32 s51, s2, 7")
    a("s_add_u32 s51, s51, 32768")
    a("v_mov_b32 v244, 1")
    a("v_mov_b32 v245, 0")
    a("s_mov_b64 s[30:31], exec")
    a("s_mov_b64 exec, 1")
    a("buffer_store_dword v244, v245, s[56:59], s51 offen sc0 sc1")
    a("s_mov_b64 exec, s[30:31]")
    a.label("L_d_red2")
    a("s_lshr_b32 s52, s2, 4")
    a("v_lshrrev_b32 v240, 2, v2")
    a("v_lshlrev_b32 v240, 1, v240")
    a("s_lshr_b32 s53, s52, 3")
    a("v_add_u32 v240, s53, v240")
    a("s_and_b32 s53, s52, 7")
    a("s_lshl_b32 s53, s53, 2")
    a("v_and_b32 v241, 3, v2")
    a("v_add_u32 v241, s53, v241")
    a("v_lshlrev_b32 v241, 3, v241")
    a("v_add_u32 v240, v240, v241")
    a("v_lshlrev_b32 v240, 7, v240")
    a("v_cmp_le_u32 vcc, 16, v2")
    a("s_nop 1")
    a("v_cndmask_b32 v242, 0, 1, vcc")
    a("v_subrev_u32 v1, 320, v0")
    a(f"s_mul_i32 s32, s2, {4608*4}")
    a(f"s_mul_i32 s34, s2, {4608*2}")
    a("v_lshlrev_b32 v15, 4, v1")
    a("v_lshlrev_b32 v9, 3, v1")
    for m in range(6):
        a(f"s_add_u32 s35, s34, {m*1536}")
        a(f"buffer_load_dwordx2 v[{20+2*m}:{21+2*m}], v9, s[12:15], s35 offen")
        a(f"v_add_u32 v10, {192*m}, v1")
        a("v_mul_u32_u24 v10, 3641, v10")
        a("v_lshrrev_b32 v10, 19, v10")
        a("v_lshlrev_b32 v10, 1, v10")
        a("s_lshl_b32 s35, s2, 4")
        a(f"buffer_load_ushort v{32+m}, v10, s[16:19], s35 offen")
    a("s_barrier")
    a("s_barrier")
    a("s_mov_b32 s50, 400000")
    a("s_mov_b32 s51, 32768")
    a.label("L_poll_d")
    a("buffer_load_dword v243, v240, s[56:59], s51 offen sc0 sc1")
    a("s_waitcnt vmcnt(0)")
    a("v_or_b32 v243, v243, v242")
    a("v_cmp_eq_u32 vcc, 0, v243")
    a("s_sub_u32 s50, s50, 1")
    a("s_cmp_eq_u32 s50, 0")
    a("s_cbranch_scc1 L_pollx_d")
    a("s_cmp_eq_u64 vcc, 0")
    a("s_cbranch_scc1 L_pollx_d")
    a("s_sleep 2")
    a("s_branch L_poll_d")
    a.label("L_pollx_d")
    PB = 100
    for m in range(6):
        for ks in range(4):
            a(f"s_add_u32 s35, s32, {ks*2048*2304 + m*3072}")
            a(f"buffer_load_dwordx4 v[{PB+16*m+4*ks}:{PB+3+16*m+4*ks}], v15, s[20:23], s35 offen")
    rstamp(a, 3)
    a("s_waitcnt vmcnt(0)")
    for m in range(6):
        b = PB + 16 * m
        for r in range(4):
            a(f"v_add_f32 v{b+r}, v{b+r}, v{b+4+r}")
            a(f"v_add_f32 v{b+8+r}, v{b+8+r}, v{b+12+r}")
            a(f"v_add_f32 v{b+r}, v{b+r}, v{b+8+r}")
        a(f"v_lshlrev_b32 v{32+m}, 16, v{32+m}")
        round_bf16_pair(a, b, b + 1, 4)
        round_bf16_pair(a, b + 2, b + 3, 5)
        for r in range(4):
            a(f"v_add_f32 v{b+r}, v{b+r}, v{32+m}")
        round_bf16_pair(a, b, b + 1, 4)
        round_bf16_pair(a, b + 2, b + 3, 5)
        a(f"v_lshlrev_b32 v{b+4}, 16, v{20+2*m}")
        a(f"v_and_b32 v{b+5}, 0xffff0000, v{20+2*m}")
        a(f"v_lshlrev_b32 v{b+6}, 16, v{21+2*m}")
        a(f"v_and_b32 v{b+7}, 0xffff0000, v{21+2*m}")
    a("s_barrier")
    for m in range(6):
        a(f"ds_read_b128 v[{40+4*m}:{43+4*m}], v15 offset:{RB + 3072*m}")
    a("s_waitcnt lgkmcnt(0)")
    rstamp(a, 6)
    for m in range(6):
        b = PB + 16 * m
        for r in range(4):
            a(f"v_add_f32 v{b+4+r}, v{b+4+r}, v{40+4*m+r}")
        round_bf16_pair(a, b + 4, b + 5, 4)
        round_bf16_pair(a, b + 6, b + 7, 5)
        for r in range(4):
            a(f"v_add_f32 v{b+r}, v{b+r}, v{b+4+r}")
        a(f"v_cvt_pk_bf16_f32 v{b+8}, v{b}, v{b+1}")
        a(f"v_cvt_pk_bf16_f32 v{b+9}, v{b+2}, v{b+3}")
        a(f"s_add_u32 s35, s34, {m*1536}")
        a(f"buffer_store_dwordx2 v[{b+8}:{b+9}], v9, s[24:27], s35 offen")

def gen_k2(a):
    name = "k2_kernel"
    kernel_begin(a, name)
    rstamp(a, 0)
    a("s_cmp_ge_u32 s2, 256")
    a("s_cbranch_scc1 L_k2_end")
    a("s_load_dwordx2 s[4:5], s[0:1], 32")
    a("s_load_dwordx2 s[6:7], s[0:1], 40")
    a("s_load_dwordx2 s[8:9], s[0:1], 80")
    a("v_lshrrev_b32 v1, 6, v0")
    a("v_and_b32 v2, 63, v0")
    a("s_nop 0")
    a("v_readfirstlane_b32 s33, v1")
    a("s_waitcnt lgkmcnt(0)")
    srd(a, 56, 8, FL_OFF, FL_SZ)
    a("s_cmp_ge_u32 s2, 253")
    a("s_cbranch_scc1 L_phB_done")
    a("s_cmp_ge_u32 s2, 216")
    a("s_cbranch_scc1 L_k2_fft")
    gen_gemm1(a)
    a.label("L_k2_fft")
    gen_colfft(a)
    a.label("L_phB_done")
    rstamp(a, 1)
    a("s_load_dwordx2 s[4:5], s[0:1], 48")
    set_flag(a, 56, 0)
    rstamp(a, 2)
    phase_c2(a)
    a.label("L_phC_done")
    rstamp(a, 4)
    phase_d(a)
    rstamp(a, 7)
    if "stamp" in DBG:
        a("s_waitcnt vmcnt(0) lgkmcnt(0)")
        a("s_cmp_lg_u32 s40, 7")
        a("s_cbranch_scc1 L_k2_end")
        a("s_mov_b64 exec, 1")
        stamp_flush(a, 8, 8, 0)
    a.label("L_k2_end")
    a("s_endpgm")
    return name, 256

def main(out):
    a = Asm()
    hdr = open("parallel_sum__spectral_gfnet__mixer_token_mlp__prompt.s.ref").read().split("\n")
    for l in hdr:
        if l.startswith("; @launch"):
            break
        a.raw(l)
    a.raw(f"; @launch kernel=k1_kernel grid=({256+K1_NWT},1,1) block=(320,1,1) lds=51200")
    a.raw("; @launch kernel=k2_kernel grid=(256,1,1) block=(512,1,1) lds=156672")
    a.raw('.amdgcn_target "amdgcn-amd-amdhsa--gfx950"')
    a.raw(".text")
    ks = []
    for g in (gen_k1, gen_k2):
        ks.append(g(a))
    a.raw('.section .rodata,"a"')
    for n, v in ks:
        kd(a, n, v)
    open(out, "w").write(a.text())

if __name__ == "__main__":
    for x in sys.argv[2:]: DBG.add(x)
    main(sys.argv[1] if len(sys.argv) > 1 else "parallel_sum__spectral_gfnet__mixer_token_mlp__prompt.s")
```

```python
import math, sys
from fftlib import Pool, FG

S, D, F = 2048, 576, 4608
DF = 289
HT_OFF = 0;                 HT_SZ = 256 * 576 * 16
U_OFF = 0x400000;           U_SZ = 576 * 576 * 16
PART_OFF = 0x1000000;       PART_SZ = 4 * 2048 * 576 * 4
PT_OFF = 0x3000000;         PBLK = 290 * 64; PT_SZ = 256 * PBLK
WT_OFF = 0x3800000;         WT_SZ = 289 * 2048 * 4
ZT_OFF = 0x4000000;         ZBLK = 290 * 128; ZT_SZ = 128 * ZBLK
YA_OFF = 0x4800000;         YA_SZ = 2048 * 576 * 2
FL_OFF = 0x5000000;         FL_SZ = 2 * 256 * 128

class Asm:
    def __init__(self):
        self.lines = []
        self.lab = 0
    def __call__(self, s):
        for l in s.strip("\n").split("\n"):
            self.lines.append("    " + l.strip())
    def label(self, name):
        self.lines.append(name + ":")
    def newlabel(self, p="L"):
        self.lab += 1
        return f"{p}_{self.lab}"
    def raw(self, s):
        self.lines.append(s)
    def text(self):
        return "\n".join(self.lines) + "\n"

def f32bits(x):
    import struct
    return struct.unpack("<I", struct.pack("<f", x))[0]
def fl(x):
    return "0x%08x" % f32bits(x)

def srd(a, sd, sbase, off, size):
    if off:
        a(f"s_add_u32 s{sd}, s{sbase}, {off}")
        a(f"s_addc_u32 s{sd+1}, s{sbase+1}, 0")
    else:
        a(f"s_mov_b32 s{sd}, s{sbase}")
        a(f"s_mov_b32 s{sd+1}, s{sbase+1}")
    a(f"s_mov_b32 s{sd+2}, {size}")
    a(f"s_mov_b32 s{sd+3}, 0x00020000")

def kernel_begin(a, name):
    a.raw(f".globl {name}")
    a.raw(".p2align 8")
    a.raw(f".type {name},@function")
    a.label(name)

def kd(a, name, vgpr, sgpr=102):
    acc = (vgpr + 3) // 4 * 4
    a.raw(".p2align 6")
    a.raw(f".amdhsa_kernel {name}")
    a.raw(f"  .amdhsa_next_free_vgpr {vgpr}")
    a.raw(f"  .amdhsa_next_free_sgpr {sgpr}")
    a.raw(f"  .amdhsa_accum_offset {acc}")
    a.raw("  .amdhsa_group_segment_fixed_size 0")
    a.raw("  .amdhsa_kernarg_size 88")
    a.raw("  .amdhsa_user_sgpr_count 2")
    a.raw("  .amdhsa_user_sgpr_kernarg_segment_ptr 1")
    a.raw("  .amdhsa_system_sgpr_workgroup_id_x 1")
    a.raw(".end_amdhsa_kernel")

def wave_reduce(a, vregs, sregs):
    for ctrl in ["row_shr:1", "row_shr:2", "row_shr:4", "row_shr:8"]:
        for v in vregs:
            a(f"v_add_f32_dpp v{v}, v{v}, v{v} {ctrl} row_mask:0xf bank_mask:0xf bound_ctrl:0")
        if len(vregs) < 3:
            a("s_nop 1")
    for v in vregs:
        a(f"v_add_f32_dpp v{v}, v{v}, v{v} row_bcast:15 row_mask:0xa bank_mask:0xf")
    if len(vregs) < 3:
        a("s_nop 1")
    for v in vregs:
        a(f"v_add_f32_dpp v{v}, v{v}, v{v} row_bcast:31 row_mask:0xc bank_mask:0xf")
    a("s_nop 1")
    for v, s in zip(vregs, sregs):
        a(f"v_readlane_b32 s{s}, v{v}, 63")

def round_bf16_pair(a, va, vb, vt):
    a(f"v_cvt_pk_bf16_f32 v{vt}, v{va}, v{vb}")
    a(f"v_lshlrev_b32 v{va}, 16, v{vt}")
    a(f"v_and_b32 v{vb}, 0xffff0000, v{vt}")

def layernorm_pair(a, xa, xb, oa, ob, t0, sbase):
    T = [t0 + i for i in range(12)]
    s0, s1, s2, s3 = sbase, sbase + 1, sbase + 2, sbase + 3
    a(f"v_add_f32 v{T[0]}, v{xa[0]}, v{xa[1]}")
    a(f"v_add_f32 v{T[1]}, v{xb[0]}, v{xb[1]}")
    for i in range(2, 9):
        a(f"v_add_f32 v{T[0]}, v{T[0]}, v{xa[i]}")
        a(f"v_add_f32 v{T[1]}, v{T[1]}, v{xb[i]}")
    a("s_nop 1")
    wave_reduce(a, [T[0], T[1]], [s0, s1])
    a("s_nop 1")
    c576 = fl(1.0 / 576.0)
    a(f"v_mov_b32 v{T[10]}, {c576}")
    a(f"v_mul_f32 v{T[2]}, s{s0}, v{T[10]}")
    a(f"v_mul_f32 v{T[3]}, s{s1}, v{T[10]}")
    a(f"v_sub_f32 v{T[4]}, v{xa[0]}, v{T[2]}")
    a(f"v_sub_f32 v{T[5]}, v{xb[0]}, v{T[3]}")
    a(f"v_mul_f32 v{T[0]}, v{T[4]}, v{T[4]}")
    a(f"v_mul_f32 v{T[1]}, v{T[5]}, v{T[5]}")
    for i in range(1, 9):
        a(f"v_sub_f32 v{T[4]}, v{xa[i]}, v{T[2]}")
        a(f"v_sub_f32 v{T[5]}, v{xb[i]}, v{T[3]}")
        a(f"v_fmac_f32 v{T[0]}, v{T[4]}, v{T[4]}")
        a(f"v_fmac_f32 v{T[1]}, v{T[5]}, v{T[5]}")
    a("s_nop 1")
    wave_reduce(a, [T[0], T[1]], [s2, s3])
    a("s_nop 1")
    a(f"v_mul_f32 v{T[6]}, s{s2}, v{T[10]}")
    a(f"v_mul_f32 v{T[7]}, s{s3}, v{T[10]}")
    round_bf16_pair(a, T[6], T[7], T[8])
    round_bf16_pair(a, T[2], T[3], T[9])
    eps = fl(1e-5)
    a(f"v_add_f32 v{T[6]}, {eps}, v{T[6]}")
    a(f"v_add_f32 v{T[7]}, {eps}, v{T[7]}")
    round_bf16_pair(a, T[6], T[7], T[8])
    a(f"v_sqrt_f32 v{T[6]}, v{T[6]}")
    a(f"v_sqrt_f32 v{T[7]}, v{T[7]}")
    a("s_nop 0")
    round_bf16_pair(a, T[6], T[7], T[8])
    a(f"v_rcp_f32 v{T[6]}, v{T[6]}")
    a(f"v_rcp_f32 v{T[7]}, v{T[7]}")
    for i in range(9):
        a(f"v_sub_f32 v{oa[i]}, v{xa[i]}, v{T[2]}")
        a(f"v_sub_f32 v{ob[i]}, v{xb[i]}, v{T[3]}")
        round_bf16_pair(a, oa[i], ob[i], T[8] if i % 2 == 0 else T[9])
        a(f"v_mul_f32 v{oa[i]}, v{oa[i]}, v{T[6]}")
        a(f"v_mul_f32 v{ob[i]}, v{ob[i]}, v{T[7]}")
        round_bf16_pair(a, oa[i], ob[i], T[4] if i % 2 == 0 else T[5])

K1_NWT = 64
K1_NPF = 64
import os
PFROWS = int(os.environ.get('PFROWS', '2048'))
W2PF_FFT = False
W2PF_GEMM = False
import os
K1PF = True
W2TAIL = int(os.environ.get('W2TAIL', '0'))
KROT = int(os.environ.get('KROT', '1'))
KROT3 = int(os.environ.get('KROT3', '1'))
PF_LEAD1 = 12
PF_LEAD2 = 10
def gen_k1(a):
    name = "k1_kernel"
    kernel_begin(a, name)
    stamp(a, 0)
    if "stamp" in DBG: a("s_memrealtime s[76:77]")
    a(f"s_cmp_ge_u32 s2, {256 + K1_NWT}")
    a("s_cbranch_scc1 L_k1_end")
    a("s_sub_u32 s3, s2, 256")
    a("s_load_dwordx2 s[40:41], s[0:1], 32")
    a("s_load_dwordx2 s[4:5], s[0:1], 0")
    a("s_load_dwordx2 s[6:7], s[0:1], 80")
    a("s_load_dwordx4 s[36:39], s[0:1], 8")
    a("v_lshrrev_b32 v1, 6, v0")
    a("v_and_b32 v2, 63, v0")
    a("s_nop 0")
    a("v_readfirstlane_b32 s20, v1")
    a("s_cmp_ge_u32 s2, 256")
    a("s_cbranch_scc1 L_k1_wt")
    a("s_waitcnt lgkmcnt(0)")
    srd(a, 8, 4, 0, S * D * 2)
    srd(a, 12, 6, HT_OFF, HT_SZ)
    srd(a, 16, 6, PT_OFF, PT_SZ)
    E1 = 9216; E2 = E1 + 20736; QS = 5184; E3 = E1; QS3 = 4672
    a("v_mul_u32_u24 v3, 911, v0")
    a("v_lshrrev_b32 v3, 16, v3")
    a("v_mul_u32_u24 v4, 72, v3")
    a("v_sub_u32 v4, v0, v4")
    a("v_lshrrev_b32 v5, 3, v4")
    a("v_and_b32 v6, 7, v4")
    a(f"v_mul_u32_u24 v7, {QS}, v3")
    a("v_mul_u32_u24 v8, 576, v5")
    a("v_add_u32 v7, v7, v8")
    a("s_cmp_ge_u32 s20, 4")
    a("s_cbranch_scc1 L_k1_pf")
    a("s_lshl_b32 s21, s2, 3")
    a("s_lshl_b32 s22, s20, 1")
    a("s_add_u32 s21, s21, s22")
    a("s_mul_i32 s21, s21, 1152")
    a("v_lshlrev_b32 v9, 1, v2")
    XA = list(range(10, 19)); XB = list(range(20, 29))
    for i in range(9):
        a(f"buffer_load_ushort v{XA[i]}, v9, s[8:11], s21 offen offset:{128*i}")
        a(f"buffer_load_ushort v{XB[i]}, v9, s[8:11], s21 offen offset:{1152+128*i}")
    a("v_cvt_f32_u32 v60, v2")
    for k1 in range(1, 9):
        a(f"v_mul_f32 v61, {fl(-k1/576.0)}, v60")
        a(f"v_cos_f32 v{80+2*k1}, v61")
        a(f"v_sin_f32 v{81+2*k1}, v61")
    a("s_waitcnt vmcnt(0)")
    stamp(a, 1)
    for i in range(9):
        a(f"v_lshlrev_b32 v{XA[i]}, 16, v{XA[i]}")
        a(f"v_lshlrev_b32 v{XB[i]}, 16, v{XB[i]}")
    NA = [30 + 2*i for i in range(9)]; NB = [31 + 2*i for i in range(9)]
    layernorm_pair(a, XA, XB, NA, NB, 60, 24)
    HA = list(range(10, 19)); HB = list(range(20, 29))
    layernorm_pair(a, NA, NB, HA, HB, 60, 24)
    a("v_lshlrev_b32 v9, 4, v2")
    a("s_lshl_b32 s22, s20, 2")
    a("v_add_u32 v9, s22, v9")
    for i in range(9):
        a(f"v_cvt_pk_bf16_f32 v{50+i}, v{HA[i]}, v{HB[i]}")
    for i in range(9):
        a(f"ds_write_b32 v9, v{50+i} offset:{1024*i}")
    stamp(a, 2)
    pool = Pool(98, 128)
    g = FG(a, pool)
    class P2(Pool):
        def release(self, r):
            if r < self.lo or r >= self.hi: return
            Pool.release(self, r)
    pool = P2(98, 128); g = FG(a, pool)
    xs = [((NA[i], 1), (NB[i], 1)) for i in range(9)]
    ys = g.dft(xs, -1)
    a(f"s_mul_i32 s22, s20, {QS}")
    a("v_lshlrev_b32 v9, 3, v2")
    a("v_add_u32 v9, s22, v9")
    for k1 in range(9):
        d = 60 + 2 * k1
        if k1 == 0:
            g.mov(ys[0][0], d); g.mov(ys[0][1], d + 1); g.frc(ys[0])
        else:
            g.cmul(ys[k1], 80 + 2*k1, 81 + 2*k1, dst=d)
    for k1 in range(9):
        d = 60 + 2 * k1
        a(f"ds_write_b64 v9, v[{d}:{d+1}] offset:{E1 + 576*k1}")
    a.label("L_k1_skipln")
    a("v_cvt_f32_u32 v60, v6")
    for c in range(1, 8):
        a(f"v_mul_f32 v61, {fl(-c/64.0)}, v60")
        a(f"v_cos_f32 v{80+2*c}, v61")
        a(f"v_sin_f32 v{81+2*c}, v61")
    a("s_waitcnt lgkmcnt(0)")
    a("s_barrier")
    stamp(a, 3)
    a("v_cmp_gt_u32 vcc, 288, v0")
    a("s_and_saveexec_b64 s[30:31], vcc")
    a("v_lshlrev_b32 v9, 4, v0")
    a("ds_read_b128 v[10:13], v9")
    a("ds_read_b128 v[14:17], v9 offset:4608")
    a("v_lshlrev_b32 v20, 3, v6")
    a("v_add_u32 v20, v7, v20")
    for b in range(8):
        a(f"ds_read_b64 v[{30+2*b}:{31+2*b}], v20 offset:{E1 + 64*b}")
    a(f"s_mul_i32 s23, s2, {576*16}")
    a("s_waitcnt lgkmcnt(8)")
    a("buffer_store_dwordx4 v[10:13], v9, s[12:15], s23 offen")
    a("v_add_u32 v21, 4608, v9")
    a("buffer_store_dwordx4 v[14:17], v21, s[12:15], s23 offen")
    a("s_waitcnt lgkmcnt(0)")
    pool = P2(98, 128); g = FG(a, pool)
    xs = [((30+2*b, 1), (31+2*b, 1)) for b in range(8)]
    ys = g.dft(xs, -1)
    a("v_mul_u32_u24 v22, 72, v6")
    a("v_add_u32 v22, v7, v22")
    for c in range(8):
        d = 60 + 2 * c
        if c == 0:
            g.mov(ys[0][0], d); g.mov(ys[0][1], d + 1); g.frc(ys[0])
        else:
            g.cmul(ys[c], 80 + 2*c, 81 + 2*c, dst=d)
    for c in range(8):
        d = 60 + 2 * c
        a(f"ds_write_b64 v22, v[{d}:{d+1}] offset:{E2 + 8*c}")
    a("s_waitcnt lgkmcnt(0)")
    a("s_barrier")
    stamp(a, 4)
    for aa in range(8):
        a(f"ds_read_b64 v[{30+2*aa}:{31+2*aa}], v20 offset:{E2 + 72*aa}")
    a("s_waitcnt lgkmcnt(0)")
    pool = P2(98, 128); g = FG(a, pool)
    xs = [((30+2*b, 1), (31+2*b, 1)) for b in range(8)]
    ys = g.dft(xs, -1, [60 + 2*e for e in range(8)])
    a(f"v_mul_u32_u24 v22, {QS3}, v3")
    a("v_mul_u32_u24 v23, 9, v6")
    a("v_add_u32 v23, v23, v5")
    a("v_lshlrev_b32 v23, 3, v23")
    a("v_add_u32 v22, v22, v23")
    for e in range(8):
        d = 60 + 2 * e
        a(f"ds_write_b64 v22, v[{d}:{d+1}] offset:{E3 + 576*e}")
    a("s_mov_b64 exec, s[30:31]")
    a("s_waitcnt lgkmcnt(0)")
    a("s_barrier")
    stamp(a, 5)
    a(f"s_mul_i32 s23, s2, {PBLK}")
    for rnd in range(4):
        a(f"v_add_u32 v10, {320*rnd}, v0")
        if rnd == 3:
            a("v_cmp_gt_u32 vcc, 1156, v10")
            a("s_and_saveexec_b64 s[30:31], vcc")
            a("s_cbranch_execz L_k1_end")
        a("v_lshrrev_b32 v11, 2, v10")
        a("v_and_b32 v12, 3, v10")
        a(f"v_mul_u32_u24 v13, {QS3}, v12")
        a("v_sub_u32 v14, 576, v11")
        a("v_cmp_eq_u32 vcc, 0, v11")
        a("v_lshlrev_b32 v15, 3, v11")
        a("v_add_u32 v15, v15, v13")
        a("v_cndmask_b32 v14, v14, v11, vcc")
        a("v_lshlrev_b32 v14, 3, v14")
        a("v_add_u32 v14, v14, v13")
        b = 30 + 8 * rnd
        a(f"ds_read_b64 v[{b}:{b+1}], v15 offset:{E3}")
        a(f"ds_read_b64 v[{b+2}:{b+3}], v14 offset:{E3}")
        a(f"v_lshlrev_b32 v{70+rnd}, 4, v10")
        a("s_waitcnt lgkmcnt(0)")
        a(f"v_add_f32 v{b+4}, v{b}, v{b+2}")
        a(f"v_sub_f32 v{b+5}, v{b+1}, v{b+3}")
        a(f"v_add_f32 v{b+6}, v{b+1}, v{b+3}")
        a(f"v_sub_f32 v{b+7}, v{b+2}, v{b}")
        a(f"buffer_store_dwordx4 v[{b+4}:{b+7}], v{70+rnd}, s[16:19], s23 offen")
    stamp(a, 6)
    if "stamp" in DBG: a("s_waitcnt vmcnt(0)")
    stamp(a, 7)
    if "stamp" in DBG:
        a("s_memrealtime s[78:79]")
        a("s_cmp_lg_u32 s20, 0")
        a("s_cbranch_scc1 L_k1_nostamp")
        a("s_mov_b64 exec, 1")
        stamp_flush(a, 10, 6, 1)
        a("s_waitcnt vmcnt(0)")
        a.label("L_k1_nostamp")
    a("s_endpgm")
    a.label("L_k1_wt")
    if "nowt" in DBG: a("s_endpgm")
    a("s_waitcnt lgkmcnt(0)")
    srd(a, 8, 36, 0, S * DF * 2)
    srd(a, 12, 38, 0, S * DF * 2)
    srd(a, 16, 6, WT_OFF, WT_SZ)
    a("s_mov_b32 s21, s3")
    a("s_mul_i32 s22, s21, 18496")
    a("v_lshlrev_b32 v9, 4, v0")
    for rnd in range(4):
        a(f"v_add_u32 v10, {320*16*rnd}, v9")
        if rnd == 3:
            a("v_cmp_gt_u32 vcc, 18496, v10")
            a("s_and_saveexec_b64 s[30:31], vcc")
        a(f"buffer_load_dwordx4 v[{20+8*rnd}:{23+8*rnd}], v10, s[8:11], s22 offen")
        a(f"buffer_load_dwordx4 v[{24+8*rnd}:{27+8*rnd}], v10, s[12:15], s22 offen")
    a("s_mov_b64 exec, s[30:31]")
    a("s_waitcnt vmcnt(0)")
    for rnd in range(4):
        a(f"v_add_u32 v10, {320*16*rnd}, v9")
        if rnd == 3:
            a("v_cmp_gt_u32 vcc, 18496, v10")
            a("s_and_saveexec_b64 s[30:31], vcc")
        a(f"ds_write_b128 v10, v[{20+8*rnd}:{23+8*rnd}]")
        a(f"ds_write_b128 v10, v[{24+8*rnd}:{27+8*rnd}] offset:18496")
    a("s_mov_b64 exec, s[30:31]")
    a("s_waitcnt lgkmcnt(0)")
    a("s_barrier")
    a("s_lshl_b32 s23, s21, 7")
    a("v_and_b32 v11, 31, v0")
    a("v_mul_u32_u24 v12, 578, v11")
    a("v_lshrrev_b32 v13, 5, v0")
    a("v_lshlrev_b32 v14, 1, v13")
    a("v_add_u32 v12, v12, v14")
    a("v_lshlrev_b32 v14, 13, v13")
    a("v_lshlrev_b32 v15, 2, v11")
    a("v_add_u32 v14, v14, v15")
    for base in range(0, 29, 7):
        rr = list(range(base, min(base + 7, 28)))
        if base == 28:
            rr = [28]
            a("v_cmp_gt_u32 vcc, 288, v0")
            a("s_and_saveexec_b64 s[30:31], vcc")
        for i, rnd in enumerate(rr):
            r0 = 20 + 2 * i
            a(f"ds_read_u16 v{r0}, v12 offset:{20*rnd}")
            a(f"ds_read_u16 v{r0+1}, v12 offset:{18496 + 20*rnd}")
        a("s_waitcnt lgkmcnt(0)")
        for i, rnd in enumerate(rr):
            r0 = 20 + 2 * i
            a(f"v_lshl_or_b32 v{40+i}, v{r0+1}, 16, v{r0}")
            a(f"s_add_u32 s24, s23, {rnd*10*8192}")
            a(f"buffer_store_dword v{40+i}, v14, s[16:19], s24 offen")
    a("s_waitcnt vmcnt(0)")
    a("s_endpgm")
    a.label("L_k1_pf")
    srd(a, 48, 6, FL_OFF, FL_SZ)
    a("s_lshl_b32 s21, s2, 7")
    a("v_mov_b32 v9, 0")
    a("v_lshlrev_b32 v10, 15, v2")
    a("buffer_store_dword v9, v10, s[48:51], s21 offen")
    if not K1PF: a("s_branch L_k1_skipln")
    srd(a, 44, 40, 0, S * F * 2)
    a("s_mul_i32 s21, s2, 9216")
    a("v_lshlrev_b32 v9, 7, v2")
    a("buffer_load_dword v76, v9, s[8:11], s21 offen")
    a("s_waitcnt vmcnt(0)")
    a("s_and_b32 s22, s2, 7")
    a("s_lshr_b32 s23, s2, 3")
    a(f"s_mul_i32 s23, s23, {PFROWS//32}")
    a("s_mul_i32 s22, s22, 1152")
    a("s_mov_b32 s24, 9216")
    nitems = PFROWS // 32 * 9
    for i in range((nitems + 63) // 64):
        a(f"v_add_u32 v10, {64*i}, v2")
        a("v_mul_u32_u24 v11, 7282, v10")
        a("v_lshrrev_b32 v11, 16, v11")
        a("v_mul_u32_u24 v12, 9, v11")
        a("v_sub_u32 v12, v10, v12")
        a("v_add_u32 v11, s23, v11")
        a("v_mul_lo_u32 v11, v11, s24")
        a("v_lshlrev_b32 v12, 7, v12")
        a("v_add_u32 v11, v11, v12")
        if (i + 1) * 64 > nitems:
            a(f"v_cmp_gt_u32 vcc, {nitems}, v10")
            a("s_and_saveexec_b64 s[30:31], vcc")
        a(f"buffer_load_dword v76, v11, s[44:47], s22 offen")
        if (i + 1) * 64 > nitems:
            a("s_mov_b64 exec, s[30:31]")
    a("s_branch L_k1_skipln")
    a.label("L_k1_end")
    a("s_endpgm")
    return name, 128

DBG = set()
STAMP_OFF = 0x8000000
def stamp(a, idx):
    if "stamp" in DBG:
        a(f"s_memtime s[{60+2*idx}:{61+2*idx}]")
def stamp_flush(a, n, wsbase, slot):
    if "stamp" not in DBG: return
    a("s_waitcnt lgkmcnt(0)")
    srd(a, 56, wsbase, STAMP_OFF + slot * 0x10000, 0x10000)
    a("s_lshl_b32 s55, s2, 6")
    for i in range(n):
        a(f"v_mov_b32 v121, s{60+2*i}")
        a(f"v_mov_b32 v120, {4*i}")
        a(f"buffer_store_dword v121, v120, s[56:59], s55 offen")
def interleave(a, mf, other, per=2):
    if "nomfma" in DBG: mf = []
    if "noread" in DBG: other = []
    j = 0
    for i, m in enumerate(mf):
        a(m)
        k = min(len(other), (i + 1) * per)
        while j < k:
            a(other[j]); j += 1
    while j < len(other):
        a(other[j]); j += 1

def ring_loader(a, tag, R, NS, SZ, n, dma, pf=None, done=None, split=None):
    nst = NS - R
    lab = f"L_{tag}_ld"
    peel = 0
    if split is None:
        for st in range(R):
            a(f"s_mov_b32 s40, {st*SZ}")
            for x in dma(40): a(x)
        a(f"s_waitcnt vmcnt({(R-1)*n})")
    else:
        dma_w, dma_u, nW, nU, mid = split
        for st in range(R):
            a(f"s_mov_b32 s40, {st*SZ}")
            for x in dma_w(40): a(x)
        mid()
        for st in range(R):
            a(f"s_mov_b32 s40, {st*SZ}")
            for x in dma_u(40): a(x)
        a(f"s_waitcnt vmcnt({(R-1)*nU})")
        peel = R - 2
    a("s_barrier")
    a("s_mov_b32 s40, 0")
    def adv():
        a(f"s_add_u32 s40, s40, {SZ}")
        a(f"s_cmp_eq_u32 s40, {R*SZ}")
        a("s_cselect_b32 s40, 0, s40")
    for i in range(peel):
        a(f"s_waitcnt vmcnt({(R-2-i)*nU + i*n})")
        a("s_barrier")
        for x in dma(40): a(x)
        adv()
    a(f"s_mov_b32 s45, {nst - peel}")
    a.label(lab)
    a(f"s_waitcnt vmcnt({(R-2)*n})")
    a("s_barrier")
    for x in dma(40): a(x)
    adv()
    a("s_sub_u32 s45, s45, 1")
    a("s_cmp_lg_u32 s45, 0")
    a(f"s_cbranch_scc1 {lab}")
    for i in range(nst, NS):
        vm = max(0, NS - 1 - (i + 1)) * n
        a(f"s_waitcnt vmcnt({vm})")
        a("s_barrier")
    if done is None: a("s_endpgm")
    else: a(f"s_branch {done}")

def ring_compute(a, tag, R, NS, SZ, mfmas, reads, addr_upd, hook=None, mid=False):
    if mid: a("s_barrier")
    a("s_barrier")
    a("s_mov_b32 s41, 0")
    for x in addr_upd(41): a(x)
    for x in reads(0, 0): a(x)
    a(f"s_mov_b32 s45, {NS-1}")
    lab = f"L_{tag}_cp"
    a.label(lab)
    for h in (hook or []):
        if h.endswith(":"): a.label(h[:-1])
        else: a(h)
    a("s_waitcnt lgkmcnt(0)")
    interleave(a, mfmas(0), reads(1, 1))
    a(f"s_add_u32 s41, s41, {SZ}")
    a(f"s_cmp_eq_u32 s41, {R*SZ}")
    a("s_cselect_b32 s41, 0, s41")
    for x in addr_upd(41): a(x)
    a("s_waitcnt lgkmcnt(0)")
    a("s_barrier")
    interleave(a, mfmas(1), reads(0, 0))
    a("s_sub_u32 s45, s45, 1")
    a("s_cmp_lg_u32 s45, 0")
    a(f"s_cbranch_scc1 {lab}")
    a("s_waitcnt lgkmcnt(0)")
    interleave(a, mfmas(0), reads(1, 1))
    a("s_waitcnt lgkmcnt(0)")
    a("s_barrier")
    interleave(a, mfmas(1), [])

def poll_flags(a, tag, sfl, phase_off, vmask_gen, nld=4, vtmp=244, maxspin=400000):
    a(f"v_lshlrev_b32 v{vtmp+4}, 7, v2")
    a(f"s_mov_b32 s50, {maxspin}")
    a.label(f"L_poll_{tag}")
    for i in nld:
        a(f"s_mov_b32 s51, {phase_off + i*64*128}")
        a(f"buffer_load_dword v{vtmp+i}, v{vtmp+4}, s[{sfl}:{sfl+3}], s51 offen sc0 sc1")
    a("s_waitcnt vmcnt(0)")
    first = True
    for i in nld:
        a(f"v_or_b32 v{vtmp+i}, v{vtmp+i}, v{vtmp+8+i}")
        if not first: a(f"v_min_u32 v{vtmp+nld[0]}, v{vtmp+nld[0]}, v{vtmp+i}")
        first = False
    a(f"v_cmp_eq_u32 vcc, 0, v{vtmp+nld[0]}")
    a("s_sub_u32 s50, s50, 1")
    a("s_cmp_eq_u32 s50, 0")
    a(f"s_cbranch_scc1 L_pollx_{tag}")
    a("s_cmp_eq_u64 vcc, 0")
    a(f"s_cbranch_scc1 L_pollx_{tag}")
    a("s_sleep 2")
    a(f"s_branch L_poll_{tag}")
    a.label(f"L_pollx_{tag}")

def set_flag(a, sfl, phase_off, novm=False):
    a("s_waitcnt lgkmcnt(0)" if novm else "s_waitcnt vmcnt(0) lgkmcnt(0)")
    a("s_barrier")
    lab = a.newlabel("L_nf")
    a("s_cmp_lg_u32 s33, 0")
    a(f"s_cbranch_scc1 {lab}")
    a("s_lshl_b32 s51, s2, 7")
    a(f"s_add_u32 s51, s51, {phase_off}")
    a("v_mov_b32 v244, 1")
    a("v_mov_b32 v245, 0")
    a("s_mov_b64 s[30:31], exec")
    a("s_mov_b64 exec, 1")
    a(f"buffer_store_dword v244, v245, s[{sfl}:{sfl+3}], s51 offen sc0 sc1")
    a("s_mov_b64 exec, s[30:31]")
    a.label(lab)

def gen_gemm1(a):
    R = 5; NS = 32; SZ = 28672
    srd(a, 12, 4, 0, S * F * 2)
    srd(a, 16, 8, HT_OFF, HT_SZ)
    srd(a, 20, 8, U_OFF, U_SZ)
    srd(a, 24, 6, 0, F * 2)
    a("s_and_b32 s28, s2, 7")
    a("s_lshr_b32 s29, s2, 3")
    a("s_mul_i32 s28, s28, 27")
    a("s_add_u32 s28, s28, s29")
    a("s_mul_i32 s29, s28, 171")
    a("s_lshr_b32 s29, s29, 10")
    a("s_mul_i32 s30, s29, 6")
    a("s_sub_u32 s30, s28, s30")
    a("s_lshl_b32 s31, s29, 8")
    a("s_mul_i32 s32, s30, 1536")
    a("s_and_b32 s34, s33, 3")
    a("s_lshr_b32 s35, s33, 2")
    a("s_and_b32 s36, s34, 1")
    a("s_lshr_b32 s37, s34, 1")
    a("v_lshrrev_b32 v3, 4, v2")
    a("v_and_b32 v4, 15, v2")
    a("v_lshrrev_b32 v5, 2, v4")
    a("v_and_b32 v6, 3, v4")
    a("s_cmp_eq_u32 s35, 0")
    a("s_cbranch_scc1 L_g1_compute")
    a("s_lshl_b32 s38, s34, 4")
    a("v_add_u32 v9, s38, v3")
    a("s_mov_b32 s39, 9216")
    a("v_mul_lo_u32 v9, v9, s39")
    a("v_add_u32 v9, s31, v9")
    a("v_lshlrev_b32 v10, 1, v3")
    a("v_xor_b32 v11, v10, v4")
    a("v_lshlrev_b32 v11, 4, v11")
    a("v_add_u32 v20, v9, v11")
    a("v_xor_b32 v11, 8, v10")
    a("v_xor_b32 v11, v11, v4")
    a("v_lshlrev_b32 v11, 4, v11")
    a("v_add_u32 v21, v9, v11")
    for i in range(3):
        a("s_mul_i32 s38, s34, 192")
        a(f"s_add_u32 s38, s38, {64*i}")
        a("v_add_u32 v9, s38, v2")
        a("v_mul_u32_u24 v10, 683, v9")
        a("v_lshrrev_b32 v10, 16, v10")
        a("v_mul_u32_u24 v11, 96, v10")
        a("v_sub_u32 v11, v9, v11")
        a("v_mul_u32_u24 v10, 9216, v10")
        a("v_lshlrev_b32 v11, 4, v11")
        a("v_add_u32 v10, v10, v11")
        a(f"s_sub_u32 s38, s32, {1024*i}") if i else a("s_mov_b32 s38, s32")
        a(f"v_add_u32 v{22+i}, s38, v10")
    a("s_lshl_b32 s43, s34, 12")
    a("s_mul_i32 s46, s34, 3072")
    a("s_add_u32 s46, s46, 16384")
    a("s_mov_b32 s47, 0")
    a("s_mov_b32 s42, 0")
    if KROT:
        a("s_lshl_b32 s38, s30, 5")
        a("s_mul_i32 s38, s38, 171")
        a("s_lshr_b32 s38, s38, 10")
        a(f"s_mul_i32 s42, s38, {64*9216}")
        a(f"s_mul_i32 s47, s38, {8*9216}")
    def dma(wr):
        out = [f"s_add_u32 m0, s{wr}, s43"]
        for i in range(4):
            out.append(f"s_add_u32 s44, s42, {i*(4*9216-1024)}")
            out.append(f"buffer_load_dwordx4 v{20 + (i>>1)}, s[12:15], s44 offen offset:{1024*i} lds")
        out.append(f"s_add_u32 m0, s{wr}, s46")
        out.append(f"s_add_u32 s42, s42, {64*9216}")
        for i in range(3):
            out.append(f"buffer_load_dwordx4 v{22+i}, s[16:19], s47 offen offset:{1024*i} lds")
        out.append(f"s_add_u32 s47, s47, {8*9216}")
        if KROT:
            out += [f"s_cmp_eq_u32 s42, {NS*64*9216}", "s_cselect_b32 s42, 0, s42", "s_cselect_b32 s47, 0, s47"]
        return out
    ring_loader(a, "g1", R, NS, SZ, 7, dma, done="L_g1_epi_ld")
    a.label("L_g1_compute")
    hook = None
    VW = [100, 101, 102, 103]; VH = 104
    VWc = [105, 106, 107, 108]; VHc = 109
    a("v_and_b32 v7, 1, v3")
    a("v_lshlrev_b32 v7, 2, v7")
    a("v_or_b32 v7, v7, v5")
    a("v_lshlrev_b32 v8, 3, v3")
    a("v_add_u32 v8, v8, v5")
    a("v_lshlrev_b32 v8, 8, v8")
    a("v_lshlrev_b32 v9, 3, v6")
    a("v_add_u32 v8, v8, v9")
    a("s_lshl_b32 s38, s36, 2")
    for fbk in range(4):
        a(f"s_add_u32 s39, s38, {fbk}")
        a(f"v_xor_b32 v9, s39, v7")
        a(f"v_lshlrev_b32 v9, 5, v9")
        a(f"v_add_u32 v{VW[fbk]}, v8, v9")
    a("v_mul_u32_u24 v9, 96, v3")
    a("s_mul_i32 s38, s37, 48")
    a("v_add_u32 v9, s38, v9")
    a("v_add_u32 v9, v9, v4")
    a("v_lshlrev_b32 v9, 4, v9")
    a(f"v_add_u32 v{VH}, 16384, v9")
    ACC = 16
    for i in range(48):
        a(f"v_mov_b32 v{ACC+i}, 0")
    FR = [112, 140]
    def acc(fbk, dbk):
        b = ACC + (fbk * 3 + dbk) * 4
        return f"v[{b}:{b+3}]"
    def mfmas(st):
        out = []
        for dbk in range(3):
            for fbk in range(4):
                w = FR[st] + 4 * fbk; h = FR[st] + 16 + 4 * dbk
                out.append(f"v_mfma_f32_16x16x32_bf16 {acc(fbk,dbk)}, v[{w}:{w+3}], v[{h}:{h+3}], {acc(fbk,dbk)}")
        return out
    def reads(st, sub):
        out = []
        for fbk in range(4):
            w = FR[st] + 4 * fbk
            out.append(f"ds_read_b64_tr_b16 v[{w}:{w+1}], v{VWc[fbk]} offset:{sub*8192}")
            out.append(f"ds_read_b64_tr_b16 v[{w+2}:{w+3}], v{VWc[fbk]} offset:{sub*8192+1024}")
        for dbk in range(3):
            h = FR[st] + 16 + 4 * dbk
            out.append(f"ds_read_b128 v[{h}:{h+3}], v{VHc} offset:{sub*6144+256*dbk}")
        return out
    def addr_upd(sreg):
        out = [f"v_add_u32 v{VWc[k]}, s{sreg}, v{VW[k]}" for k in range(4)]
        out.append(f"v_add_u32 v{VHc}, s{sreg}, v{VH}")
        return out
    ring_compute(a, "g1", R, NS, SZ, mfmas, reads, addr_upd, hook)
    a("v_lshlrev_b32 v9, 4, v2")
    a("s_mul_i32 s38, s34, 6144")
    a("v_add_u32 v10, s38, v9")
    a("s_nop 4")
    for j in range(6):
        b = ACC + (6 + j) * 4
        a(f"ds_write_b128 v10, v[{b}:{b+3}] offset:{1024*j}")
    a("s_branch L_g1_epi")
    a.label("L_g1_epi_ld")
    a("v_lshlrev_b32 v9, 4, v2")
    a("s_mul_i32 s38, s34, 6144")
    a("v_add_u32 v10, s38, v9")
    a.label("L_g1_epi")
    a("s_lshl_b32 s38, s36, 7")
    a("s_add_u32 s38, s38, s31")
    a("s_lshl_b32 s39, s35, 6")
    a("s_add_u32 s38, s38, s39")
    a("v_lshlrev_b32 v12, 3, v3")
    for k in range(2):
        a(f"buffer_load_dwordx2 v[{64+2*k}:{65+2*k}], v12, s[24:27], s38 offen offset:{32*k}")
    k0 = -2.0 * math.log2(math.e) * math.sqrt(2.0 / math.pi)
    k1 = k0 * 0.044715
    a(f"s_mov_b32 s46, {fl(k0)}")
    a(f"s_mov_b32 s47, {fl(k1)}")
    a("v_mov_b32 v102, s46")
    a("s_lshl_b32 s38, s29, 4")
    a("s_lshl_b32 s39, s36, 3")
    a("s_add_u32 s38, s38, s39")
    a("s_lshl_b32 s39, s35, 2")
    a("s_add_u32 s38, s38, s39")
    a("v_lshrrev_b32 v12, 1, v3")
    a("v_add_u32 v12, s38, v12")
    a("v_mul_u32_u24 v12, 576, v12")
    a("s_mul_i32 s38, s37, 48")
    a("v_add_u32 v12, s38, v12")
    a("v_add_u32 v12, v12, v4")
    a("v_lshlrev_b32 v12, 4, v12")
    a("v_add_u32 v12, s32, v12")
    a("v_and_b32 v13, 1, v3")
    a("v_lshlrev_b32 v13, 3, v13")
    a("v_add_u32 v12, v12, v13")
    a("s_waitcnt lgkmcnt(0)")
    a("s_barrier")
    a("s_cmp_eq_u32 s35, 0")
    a("s_cbranch_scc1 L_g1_epi2")
    for j in range(6):
        b = ACC + j * 4
        a(f"ds_read_b128 v[{b}:{b+3}], v10 offset:{1024*j}")
    a.label("L_g1_epi2")
    a("s_waitcnt vmcnt(0) lgkmcnt(0)")
    for k in range(2):
        a(f"v_lshlrev_b32 v{80+4*k}, 16, v{64+2*k}")
        a(f"v_and_b32 v{81+4*k}, 0xffff0000, v{64+2*k}")
        a(f"v_lshlrev_b32 v{82+4*k}, 16, v{65+2*k}")
        a(f"v_and_b32 v{83+4*k}, 0xffff0000, v{65+2*k}")
    cnt = 0
    for k in range(2):
        for dbk in range(3):
            b = ACC + (k * 3 + dbk) * 4
            for r in (0, 2):
                round_bf16_pair(a, b + r, b + r + 1, 64)
                a(f"v_add_f32 v{b+r}, v{b+r}, v{80+4*k+r}")
                a(f"v_add_f32 v{b+r+1}, v{b+r+1}, v{80+4*k+r+1}")
                round_bf16_pair(a, b + r, b + r + 1, 65)
            for r in range(4):
                t = 66 + r
                a(f"v_mul_f32 v{t}, v{b+r}, v{b+r}")
                a(f"v_fma_f32 v{t}, v{t}, s47, v102")
                a(f"v_mul_f32 v{t}, v{t}, v{b+r}")
                a(f"v_exp_f32 v{t}, v{t}")
            for r in range(4):
                t = 66 + r
                a(f"v_add_f32 v{t}, 1.0, v{t}")
                a(f"v_rcp_f32 v{t}, v{t}")
            a("s_nop 0")
            for r in range(4):
                t = 66 + r
                a(f"v_mul_f32 v{t}, v{t}, v{b+r}")
            o = 70 + 2 * (cnt % 4); cnt += 1
            a(f"v_cvt_pk_bf16_f32 v{o}, v66, v67")
            a(f"v_cvt_pk_bf16_f32 v{o+1}, v68, v69")
            a(f"s_mov_b32 s38, {k*18432}")
            a(f"buffer_store_dwordx2 v[{o}:{o+1}], v12, s[20:23], s38 offen offset:{256*dbk} sc0 sc1")
    if not W2TAIL:
        a("s_branch L_phB_done")
    a("s_load_dwordx2 s[88:89], s[0:1], 48")
    a("s_and_b32 s48, s2, 7")
    a("s_lshr_b32 s49, s48, 1")
    a("s_mul_i32 s49, s49, 1152")
    a("s_and_b32 s48, s48, 1")
    a("s_lshl_b32 s48, s48, 11")
    a("s_lshr_b32 s50, s2, 3")
    a("s_lshl_b32 s50, s50, 3")
    a("s_add_u32 s50, s50, s33")
    a("s_lshl_b32 s51, s50, 2")
    a("s_add_u32 s49, s49, s51")
    a("v_add_u32 v30, s49, v3")
    a("v_lshlrev_b32 v30, 12, v30")
    a("v_lshlrev_b32 v31, 7, v4")
    a("v_add_u32 v30, v30, v31")
    a("v_add_u32 v30, s48, v30")
    a("s_waitcnt lgkmcnt(0)")
    srd(a, 92, 88, 0, S * F * 2)
    a("buffer_load_dword v110, v30, s[92:95], 0 offen")
    a("s_mov_b32 s52, 0x7f000000")
    a("s_cmp_lt_u32 s50, 72")
    a(f"s_cselect_b32 s51, {864*4096}, s52")
    a("buffer_load_dword v110, v30, s[92:95], s51 offen")
    a("s_waitcnt vmcnt(2)")
    a("s_branch L_phB_done2")

class P2(Pool):
    def release(self, r):
        if r < self.lo or r >= self.hi: return
        Pool.release(self, r)

TB1 = 139264; TB2 = TB1 + 16384
def gen_colfft(a):
    srd(a, 12, 8, PT_OFF, PT_SZ)
    srd(a, 16, 8, WT_OFF, WT_SZ)
    srd(a, 20, 8, ZT_OFF, ZT_SZ)
    a("s_sub_u32 s28, s2, 216")
    a("s_lshl_b32 s28, s28, 3")
    a("s_add_u32 s28, s28, s33")
    a("s_lshl_b32 s29, s28, 6")
    a("v_lshrrev_b32 v14, 2, v2")
    a(f"v_mul_u32_u24 v14, {PBLK}, v14")
    a("v_and_b32 v15, 3, v2")
    a("v_lshlrev_b32 v15, 4, v15")
    a("v_add_u32 v14, v14, v15")
    a("s_lshl_b32 s30, s28, 13")
    a("v_lshlrev_b32 v3, 4, v2")
    a("v_lshlrev_b32 v4, 2, v2")
    DQ = [16 + 4*i for i in range(16)]
    for aa in range(16):
        a(f"s_add_u32 s31, s29, {16*PBLK*aa}")
        a(f"buffer_load_dwordx4 v[{DQ[aa]}:{DQ[aa]+3}], v14, s[12:15], s31 offen")
    WR = 80
    for m in range(4):
        for kc in range(8):
            a(f"buffer_load_dword v{WR + 8*m + kc}, v4, s[16:19], s30 offen offset:{256*m + 1024*kc}") if 256*m + 1024*kc < 4096 else None
            if 256*m + 1024*kc >= 4096:
                a(f"s_add_u32 s31, s30, {1024*kc}")
                a(f"buffer_load_dword v{WR + 8*m + kc}, v4, s[16:19], s31 offen offset:{256*m}")
    for i in range(4):
        a(f"v_add_u32 v5, {512*i}, v0")
        a("v_lshrrev_b32 v6, 7, v5")
        a("v_and_b32 v7, 127, v5")
        a("v_mul_u32_u24 v6, v6, v7")
        a("v_cvt_f32_u32 v6, v6")
        a(f"v_mul_f32 v6, {fl(-1.0/2048)}, v6")
        a("v_cos_f32 v8, v6")
        a("v_sin_f32 v9, v6")
        a("v_lshlrev_b32 v5, 3, v5")
        a(f"v_add_u32 v5, {TB1}, v5")
        a("ds_write_b64 v5, v[8:9]")
    a("v_cmp_gt_u32 vcc, 128, v0")
    a("s_and_saveexec_b64 s[34:35], vcc")
    a("v_lshrrev_b32 v6, 3, v0")
    a("v_and_b32 v7, 7, v0")
    a("v_mul_u32_u24 v6, v6, v7")
    a("v_cvt_f32_u32 v6, v6")
    a(f"v_mul_f32 v6, {fl(-1.0/128)}, v6")
    a("v_cos_f32 v8, v6")
    a("v_sin_f32 v9, v6")
    a("v_lshlrev_b32 v5, 3, v0")
    a(f"v_add_u32 v5, {TB2}, v5")
    a("ds_write_b64 v5, v[8:9]")
    a("s_mov_b64 exec, s[34:35]")
    a("s_waitcnt lgkmcnt(0)")
    a("s_barrier")
    a("s_cmp_ge_u32 s28, 289")
    a("s_cbranch_scc1 L_phB_done")
    a("s_mul_i32 s32, s33, 17408")
    a("v_add_u32 v5, s32, v3")
    a("v_lshrrev_b32 v10, 2, v2")
    a("v_and_b32 v11, 3, v2")
    a("v_mul_u32_u24 v6, 1088, v10")
    a("v_lshlrev_b32 v12, 4, v11")
    a("v_add_u32 v6, v6, v12")
    a("v_add_u32 v6, s32, v6")
    a("v_mul_u32_u24 v7, 4128, v11")
    a("v_lshlrev_b32 v13, 4, v10")
    a("v_add_u32 v7, v7, v13")
    a("v_add_u32 v7, s32, v7")
    a(f"v_add_u32 v8, {TB1}, v3")
    a(f"v_add_u32 v9, {TB2}, v12")
    TW = 112
    def tw_reads(vaddr, stride):
        for i in range(1, 16):
            a(f"ds_read_b128 v[{TW+4*i}:{TW+4*i+3}], v{vaddr} offset:{stride*i}")
    pool = P2(176, 256)
    g = FG(a, pool)
    def quads_to_c(h):
        return [((DQ[i] + 2*h, 1), (DQ[i] + 2*h + 1, 1)) for i in range(16)]
    tw_reads(8, 1024)
    a("s_waitcnt vmcnt(32)")
    def dft16_both(sgn):
        return [g.dft(quads_to_c(h), sgn) for h in range(2)]
    outs = dft16_both(-1)
    a("s_waitcnt lgkmcnt(0)")
    for k in range(16):
        for h in range(2):
            d = DQ[k] + 2*h
            if k == 0:
                g.mov(outs[h][0][0], d); g.mov(outs[h][0][1], d + 1); g.frc(outs[h][0])
            else:
                g.cmul(outs[h][k], TW + 4*k + 2*h, TW + 4*k + 2*h + 1, dst=d)
        a(f"ds_write_b128 v5, v[{DQ[k]}:{DQ[k]+3}] offset:{1088*k}")
    for b in range(16):
        a(f"ds_read_b128 v[{DQ[b]}:{DQ[b]+3}], v6 offset:{64*b}")
    tw_reads(9, 64)
    a("s_waitcnt lgkmcnt(15)")
    outs = dft16_both(-1)
    a("s_waitcnt lgkmcnt(0)")
    for k in range(16):
        for h in range(2):
            d = DQ[k] + 2*h
            if k == 0:
                g.mov(outs[h][0][0], d); g.mov(outs[h][0][1], d + 1); g.frc(outs[h][0])
            else:
                g.cmul(outs[h][k], TW + 4*k + 2*h, TW + 4*k + 2*h + 1, dst=d)
        a(f"ds_write_b128 v7, v[{DQ[k]}:{DQ[k]+3}] offset:{256*k}")
    for m in range(4):
        for cp in range(4):
            q = DQ[4*m + cp]
            a(f"ds_read_b128 v[{q}:{q+3}], v5 offset:{4128*cp + 1024*m}")
    a("s_waitcnt vmcnt(0) lgkmcnt(0)")
    if W2PF_FFT:
        a("s_load_dwordx2 s[88:89], s[0:1], 48")
        a("s_and_b32 s48, s2, 7")
        a("s_lshr_b32 s49, s48, 1")
        a("s_mul_i32 s49, s49, 1152")
        a("s_and_b32 s48, s48, 1")
        a("s_lshl_b32 s48, s48, 11")
        a("s_sub_u32 s50, s2, 216")
        a("s_lshr_b32 s50, s50, 3")
        a("s_lshl_b32 s50, s50, 3")
        a("s_add_u32 s50, s50, s33")
        a("s_lshl_b32 s50, s50, 5")
        a("s_add_u32 s49, s49, s50")
        a("v_lshrrev_b32 v10, 4, v2")
        a("v_add_u32 v10, s49, v10")
        a("v_lshlrev_b32 v10, 12, v10")
        a("v_and_b32 v11, 15, v2")
        a("v_lshlrev_b32 v11, 7, v11")
        a("v_add_u32 v10, v10, v11")
        a("v_add_u32 v10, s48, v10")
        a("s_waitcnt lgkmcnt(0)")
        srd(a, 92, 88, 0, S * F * 2)
        a("s_cmp_ge_u32 s50, 1152")
        a("s_cbranch_scc1 L_cf_nopf")
        for i in range(8):
            a(f"s_mov_b32 s51, {i*4*4096}")
            a(f"buffer_load_dword v13, v10, s[92:95], s51 offen")
        a.label("L_cf_nopf")
    for m in range(4):
        xs = []
        for c in range(8):
            q = DQ[4*m + (c >> 1)] + 2*(c & 1)
            xs.append(((q, 1), (q + 1, 1)))
        X = g.dft(xs, -1)
        Y = []
        for kc in range(8):
            w = WR + 8*m + kc
            wr = pool.alloc(); wi = pool.alloc()
            a(f"v_lshlrev_b32 v{wr}, 16, v{w}")
            a(f"v_and_b32 v{wi}, 0xffff0000, v{w}")
            Y.append(g.cmul(X[kc], wr, wi))
            pool.release(wr); pool.release(wi)
        dsts = [DQ[4*m + (c >> 1)] + 2*(c & 1) for c in range(8)]
        g.dft(Y, 1, dsts)
        for cp in range(4):
            q = DQ[4*m + cp]
            a(f"ds_write_b128 v5, v[{q}:{q+3}] offset:{4128*cp + 1024*m}")
    for kb in range(16):
        a(f"ds_read_b128 v[{DQ[kb]}:{DQ[kb]+3}], v7 offset:{256*kb}")
    a("s_waitcnt lgkmcnt(0)")
    def twiddle_in(conj):
        res = [[], []]
        for k in range(16):
            for h in range(2):
                q = DQ[k] + 2*h
                x = ((q, 1), (q + 1, 1))
                if k == 0: res[h].append(x)
                else: res[h].append(g.cmul(x, TW + 4*k + 2*h, TW + 4*k + 2*h + 1, conj=conj))
        return res
    xin = twiddle_in(True)
    tw_reads(8, 1024)
    for h in range(2):
        g.dft(xin[h], 1, [DQ[b] + 2*h for b in range(16)])
    for b in range(16):
        a(f"ds_write_b128 v6, v[{DQ[b]}:{DQ[b]+3}] offset:{64*b}")
    for ka in range(16):
        a(f"ds_read_b128 v[{DQ[ka]}:{DQ[ka]+3}], v5 offset:{1088*ka}")
    a("s_waitcnt lgkmcnt(0)")
    xin = twiddle_in(True)
    for h in range(2):
        g.dft(xin[h], 1, [DQ[aa] + 2*h for aa in range(16)])
    a("v_lshrrev_b32 v15, 3, v2")
    a(f"v_mul_u32_u24 v15, {ZBLK}, v15")
    a("v_and_b32 v13, 7, v2")
    a("v_lshlrev_b32 v13, 4, v13")
    a("v_add_u32 v15, v15, v13")
    a("s_lshl_b32 s38, s28, 7")
    for aa in range(16):
        a(f"s_add_u32 s31, s38, {8*ZBLK*aa}")
        a(f"buffer_store_dwordx4 v[{DQ[aa]}:{DQ[aa]+3}], v15, s[20:23], s31 offen sc0 sc1")
    a("s_branch L_phB_done")

def rstamp(a, i):
    if "stamp" in DBG:
        a(f"s_memrealtime s[{60+2*i}:{61+2*i}]")

def phase_c2(a):
    R = 4; NS = 18; SZ = 34816
    a("s_and_b32 s28, s2, 7")
    a("s_lshr_b32 s29, s2, 3")
    a("s_lshr_b32 s30, s28, 1")
    a("s_and_b32 s31, s28, 1")
    a("s_lshl_b32 s31, s31, 3")
    a("s_lshr_b32 s32, s29, 2")
    a("s_add_u32 s31, s31, s32")
    a("s_and_b32 s32, s29, 3")
    a("s_and_b32 s34, s33, 3")
    a("s_lshr_b32 s35, s33, 2")
    a("v_lshrrev_b32 v3, 4, v2")
    a("v_and_b32 v4, 15, v2")
    a("v_lshrrev_b32 v5, 2, v4")
    a("v_and_b32 v6, 3, v4")
    srd(a, 12, 4, 0, S * F * 2)
    srd(a, 16, 8, U_OFF, U_SZ)
    srd(a, 20, 8, PART_OFF, PART_SZ)
    a("s_cmp_eq_u32 s35, 0")
    a("s_cbranch_scc1 L_g2_compute")
    a("s_mul_i32 s38, s30, 1152")
    a("s_lshl_b32 s39, s34, 4")
    a("s_add_u32 s38, s38, s39")
    a("v_add_u32 v9, s38, v3")
    a("v_lshlrev_b32 v9, 12, v9")
    a("s_lshl_b32 s39, s31, 8")
    a("v_add_u32 v9, s39, v9")
    a("v_lshlrev_b32 v10, 1, v3")
    a("v_xor_b32 v11, v10, v4")
    a("v_lshlrev_b32 v11, 4, v11")
    a("v_add_u32 v20, v9, v11")
    a("v_xor_b32 v11, 8, v10")
    a("v_xor_b32 v11, v11, v4")
    a("v_lshlrev_b32 v11, 4, v11")
    a("v_add_u32 v21, v9, v11")
    a("s_lshl_b32 s43, s34, 12")
    a("s_mov_b32 s42, 0")
    a("s_mov_b32 s47, 0")
    if KROT3:
        a("s_mul_i32 s38, s32, 9")
        a("s_lshr_b32 s38, s38, 1")
        a(f"s_mul_i32 s42, s38, {64*4096}")
        a(f"s_mul_i32 s47, s38, {8*9216}")
    a("s_cmp_lt_u32 s34, 2")
    a("s_cbranch_scc1 L_g2_v1")
    a("s_branch L_g2_v2")
    for var in (1, 2):
        a.label(f"L_g2_v{var}")
        n = 5 if var == 1 else 4
        for i in range(n):
            if var == 1:
                a("s_mul_i32 s38, s34, 320")
                a(f"s_add_u32 s38, s38, {64*i}")
            else:
                a("s_lshl_b32 s38, s34, 8")
                a(f"s_add_u32 s38, s38, {640 - 512 + 64*i}")
            a("v_add_u32 v9, s38, v2")
            a("v_mul_u32_u24 v10, 3641, v9")
            a("v_lshrrev_b32 v10, 19, v10")
            a("v_mul_u32_u24 v11, 144, v10")
            a("v_sub_u32 v11, v9, v11")
            a("v_mul_u32_u24 v10, 9216, v10")
            a("v_lshlrev_b32 v11, 4, v11")
            a("v_add_u32 v10, v10, v11")
            a(f"s_mul_i32 s38, s30, {144*9216}")
            a("s_mul_i32 s39, s32, 2304")
            a("s_add_u32 s38, s38, s39")
            if i & 3:
                a(f"s_sub_u32 s38, s38, {1024*(i&3)}")
            a(f"v_add_u32 v{22+i}, s38, v10")
        if var == 1:
            a("s_mul_i32 s46, s34, 5120")
            a("s_add_u32 s46, s46, 16384")
        else:
            a("s_lshl_b32 s46, s34, 12")
            a(f"s_add_u32 s46, s46, {16384 + 10240 - 8192}")
        def dma_w(wr):
            out = [f"s_add_u32 m0, s{wr}, s43"]
            for i in range(4):
                out.append(f"s_add_u32 s44, s42, {i*(4*4096-1024)}")
                out.append(f"buffer_load_dwordx4 v{20 + (i>>1)}, s[12:15], s44 offen offset:{1024*i} lds")
            out.append(f"s_add_u32 s42, s42, {64*4096}")
            out += [f"s_cmp_eq_u32 s42, {NS*64*4096}", "s_cselect_b32 s42, 0, s42"]
            return out
        def dma_u(wr, n=n):
            out = [f"s_add_u32 m0, s{wr}, s46", "s_nop 0"]
            for i in range(n):
                if i == 4:
                    out.append("s_add_u32 m0, m0, 4096")
                    out.append("s_nop 0")
                out.append(f"buffer_load_dwordx4 v{22+i}, s[16:19], s47 offen offset:{1024*(i&3)} lds")
            out.append(f"s_add_u32 s47, s47, {8*9216}")
            out += [f"s_cmp_eq_u32 s47, {NS*8*9216}", "s_cselect_b32 s47, 0, s47"]
            return out
        def dma(wr): return dma_w(wr) + dma_u(wr)
        def mid(var=var):
            if var == 2:
                a("s_cmp_lg_u32 s33, 7")
                a("s_cbranch_scc1 L_c2_go")
                for i in range(3): a(f"v_mov_b32 v{252+i}, 0")
                a("v_cmp_le_u32 vcc, 24, v2")
                a("s_nop 1")
                a("v_cndmask_b32 v255, 0, 1, vcc")
                poll_flags(a, "u", 56, 0, None, nld=[0, 1, 2, 3])
                a.label("L_c2_go")
            a("s_barrier")
        ring_loader(a, f"g2v{var}", R, NS, SZ, 4 + n, dma, done="L_phC_done", split=(dma_w, dma_u, 4, n, mid))
    a.label("L_g2_compute")
    VW = [100, 101]; VU = 102; VWc = [103, 104]; VUc = 105
    a("v_and_b32 v7, 1, v3")
    a("v_lshlrev_b32 v7, 2, v7")
    a("v_or_b32 v7, v7, v5")
    a("v_lshlrev_b32 v8, 3, v3")
    a("v_add_u32 v8, v8, v5")
    a("v_lshlrev_b32 v8, 8, v8")
    a("v_lshlrev_b32 v9, 3, v6")
    a("v_add_u32 v8, v8, v9")
    a("s_lshl_b32 s38, s34, 1")
    for sbk in range(2):
        a(f"s_add_u32 s39, s38, {sbk}")
        a(f"v_xor_b32 v9, s39, v7")
        a(f"v_lshlrev_b32 v9, 5, v9")
        a(f"v_add_u32 v{VW[sbk]}, v8, v9")
    a("v_mul_u32_u24 v9, 144, v3")
    a("v_add_u32 v9, v9, v4")
    a("v_lshlrev_b32 v9, 4, v9")
    a(f"v_add_u32 v{VU}, 16384, v9")
    ACC = 16
    for i in range(72):
        a(f"v_mov_b32 v{ACC+i}, 0")
    FR = [112, 156]
    def acc(dbk, sbk):
        b = ACC + (dbk * 2 + sbk) * 4
        return f"v[{b}:{b+3}]"
    def mfmas(st):
        out = []
        for dbk in range(9):
            for sbk in range(2):
                w = FR[st] + 4 * sbk; u = FR[st] + 8 + 4 * dbk
                out.append(f"v_mfma_f32_16x16x32_bf16 {acc(dbk,sbk)}, v[{u}:{u+3}], v[{w}:{w+3}], {acc(dbk,sbk)}")
        return out
    def reads(st, sub):
        out = []
        for sbk in range(2):
            w = FR[st] + 4 * sbk
            out.append(f"ds_read_b64_tr_b16 v[{w}:{w+1}], v{VWc[sbk]} offset:{sub*8192}")
            out.append(f"ds_read_b64_tr_b16 v[{w+2}:{w+3}], v{VWc[sbk]} offset:{sub*8192+1024}")
        for dbk in range(9):
            u = FR[st] + 8 + 4 * dbk
            out.append(f"ds_read_b128 v[{u}:{u+3}], v{VUc} offset:{sub*9216+256*dbk}")
        return out
    def addr_upd(sreg):
        out = [f"v_add_u32 v{VWc[k]}, s{sreg}, v{VW[k]}" for k in range(2)]
        out.append(f"v_add_u32 v{VUc}, s{sreg}, v{VU}")
        return out
    ring_compute(a, "g2", R, NS, SZ, mfmas, reads, addr_upd, mid=True)
    a("s_lshl_b32 s38, s30, 11")
    a("s_lshl_b32 s39, s31, 7")
    a("s_add_u32 s38, s38, s39")
    a("s_lshl_b32 s39, s34, 5")
    a("s_add_u32 s38, s38, s39")
    a("v_add_u32 v12, s38, v4")
    a("s_mov_b32 s39, 2304")
    a("v_mul_lo_u32 v12, v12, s39")
    a("s_mul_i32 s38, s32, 576")
    a("v_add_u32 v12, s38, v12")
    a("v_lshlrev_b32 v13, 4, v3")
    a("v_add_u32 v12, v12, v13")
    a(f"s_mov_b32 s39, {16*2304}")
    a("s_nop 3")
    for dbk in range(9):
        for sbk in range(2):
            b = ACC + (dbk * 2 + sbk) * 4
            so = "s39" if sbk else "0"
            a(f"buffer_store_dwordx4 v[{b}:{b+3}], v12, s[20:23], {so} offen offset:{64*dbk} sc0 sc1")

def phase_d(a):
    RA = 0; RB = 20736; RY = 41472; QS = 5184; QS3 = 4672
    a("s_mov_b32 s40, s33")
    a("s_load_dwordx2 s[4:5], s[0:1], 0")
    a("s_load_dwordx2 s[6:7], s[0:1], 56")
    a("s_load_dwordx2 s[10:11], s[0:1], 64")
    srd(a, 36, 8, ZT_OFF, ZT_SZ)
    srd(a, 20, 8, PART_OFF, PART_SZ)
    a("v_mul_u32_u24 v3, 911, v0")
    a("v_lshrrev_b32 v3, 16, v3")
    a("v_mul_u32_u24 v4, 72, v3")
    a("v_sub_u32 v4, v0, v4")
    a("v_lshrrev_b32 v5, 3, v4")
    a("v_and_b32 v6, 7, v4")
    a(f"v_mul_u32_u24 v7, {QS}, v3")
    a("v_mul_u32_u24 v8, 576, v5")
    a("v_add_u32 v7, v7, v8")
    a("s_cmp_lg_u32 s33, 7")
    a("s_cbranch_scc1 L_d_go")
    a("v_add_u32 v255, 192, v2")
    a("v_subrev_u32 v255, 216, v255")
    a("v_cmp_lt_u32 vcc, 36, v255")
    a("s_nop 1")
    a("v_cndmask_b32 v255, 0, 1, vcc")
    poll_flags(a, "z", 56, 0, None, nld=[3])
    a.label("L_d_go")
    a("s_barrier")
    a("s_lshr_b32 s42, s2, 1")
    a(f"s_mul_i32 s42, s42, {ZBLK}")
    a("s_and_b32 s43, s2, 1")
    a("s_lshl_b32 s43, s43, 6")
    a("s_add_u32 s42, s42, s43")
    for rnd in range(3):
        a(f"v_add_u32 v10, {512*rnd}, v0")
        a("v_lshrrev_b32 v11, 2, v10")
        a("v_lshlrev_b32 v11, 7, v11")
        a("v_and_b32 v12, 3, v10")
        a("v_lshlrev_b32 v12, 4, v12")
        a("v_add_u32 v13, v11, v12")
        a(f"buffer_load_dwordx4 v[{100+4*rnd}:{103+4*rnd}], v13, s[36:39], s42 offen")
    a("v_cvt_f32_u32 v60, v6")
    for c in range(1, 8):
        a(f"v_mul_f32 v61, {fl(c/64.0)}, v60")
        a(f"v_cos_f32 v{80+2*c}, v61")
        a(f"v_sin_f32 v{81+2*c}, v61")
    a("s_waitcnt vmcnt(0) lgkmcnt(0)")
    srd(a, 12, 4, 0, S * D * 2)
    srd(a, 16, 6, 0, S * 2)
    srd(a, 24, 10, 0, S * D * 2)
    for rnd in range(3):
        b = 100 + 4 * rnd
        a(f"v_add_u32 v10, {512*rnd}, v0")
        if rnd == 2:
            a("v_cmp_gt_u32 vcc, 1156, v10")
            a("s_and_saveexec_b64 s[30:31], vcc")
        a("v_lshrrev_b32 v11, 2, v10")
        a("v_and_b32 v12, 3, v10")
        a(f"v_mul_u32_u24 v13, {QS3}, v12")
        a("v_cmp_eq_u32 vcc, 0, v11")
        a("v_mov_b32 v17, 288")
        a("v_cmp_eq_u32 s[28:29], v17, v11")
        a("s_or_b64 vcc, vcc, s[28:29]")
        a("v_sub_u32 v14, 576, v11")
        a("v_lshlrev_b32 v18, 3, v11")
        a("v_cndmask_b32_e64 v%d, v%d, 0, vcc" % (b+1, b+1))
        a("v_cndmask_b32_e64 v%d, v%d, 0, vcc" % (b+3, b+3))
        a("v_add_u32 v18, v18, v13")
        a("v_lshlrev_b32 v14, 3, v14")
        a("v_add_u32 v14, v14, v13")
        a(f"v_sub_f32 v20, v{b}, v{b+3}")
        a(f"v_add_f32 v21, v{b+1}, v{b+2}")
        a(f"v_add_f32 v22, v{b}, v{b+3}")
        a(f"v_sub_f32 v23, v{b+2}, v{b+1}")
        a(f"ds_write_b64 v18, v[20:21] offset:{RA}")
        a(f"ds_write_b64 v14, v[22:23] offset:{RA}")
    a("s_mov_b64 exec, s[30:31]")
    a("s_waitcnt lgkmcnt(0)")
    a("s_barrier")
    rstamp(a, 5)
    a("s_cmp_ge_u32 s33, 5")
    a("s_cbranch_scc1 L_d_red")
    a("v_cmp_gt_u32 vcc, 288, v0")
    a("s_and_saveexec_b64 s[30:31], vcc")
    a(f"v_mul_u32_u24 v22, {QS3}, v3")
    a("v_mul_u32_u24 v23, 9, v6")
    a("v_add_u32 v23, v23, v5")
    a("v_lshlrev_b32 v23, 3, v23")
    a("v_add_u32 v22, v22, v23")
    for e in range(8):
        a(f"ds_read_b64 v[{30+2*e}:{31+2*e}], v22 offset:{RA + 576*e}")
    a("v_lshlrev_b32 v20, 3, v6")
    a("v_add_u32 v20, v7, v20")
    a("v_mul_u32_u24 v21, 72, v6")
    a("v_add_u32 v21, v7, v21")
    a("s_waitcnt lgkmcnt(0)")
    pool = P2(200, 244); g = FG(a, pool)
    ys = g.dft([((30+2*b, 1), (31+2*b, 1)) for b in range(8)], 1)
    for aa in range(8):
        d = 60 + 2 * aa
        if aa == 0:
            g.mov(ys[0][0], d); g.mov(ys[0][1], d + 1); g.frc(ys[0])
        else:
            g.cmul(ys[aa], 80 + 2*aa, 81 + 2*aa, dst=d)
    for aa in range(8):
        d = 60 + 2 * aa
        a(f"ds_write_b64 v20, v[{d}:{d+1}] offset:{RB + 72*aa}")
    a("s_waitcnt lgkmcnt(0)")
    a("s_barrier")
    for c in range(8):
        a(f"ds_read_b64 v[{30+2*c}:{31+2*c}], v21 offset:{RB + 8*c}")
    a("s_waitcnt lgkmcnt(0)")
    pool = P2(200, 244); g = FG(a, pool)
    g.dft([((30+2*b, 1), (31+2*b, 1)) for b in range(8)], 1, [60 + 2*b for b in range(8)])
    for b in range(8):
        d = 60 + 2 * b
        a(f"ds_write_b64 v20, v[{d}:{d+1}] offset:{RA + 64*b}")
    a("s_mov_b64 exec, s[30:31]")
    a("v_cvt_f32_u32 v60, v2")
    for k1 in range(1, 9):
        a(f"v_mul_f32 v61, {fl(k1/576.0)}, v60")
        a(f"v_cos_f32 v{80+2*k1}, v61")
        a(f"v_sin_f32 v{81+2*k1}, v61")
    a("s_waitcnt lgkmcnt(0)")
    a("s_barrier")
    a("s_cmp_ge_u32 s40, 4")
    a("s_cbranch_scc1 L_d_skip1")
    a(f"s_mul_i32 s43, s40, {QS}")
    a("v_lshlrev_b32 v10, 3, v2")
    a("v_add_u32 v10, s43, v10")
    for k1 in range(9):
        a(f"ds_read_b64 v[{30+2*k1}:{31+2*k1}], v10 offset:{RA + 576*k1}")
    a("s_waitcnt lgkmcnt(0)")
    pool = P2(200, 244); g = FG(a, pool)
    xs = []
    for k1 in range(9):
        x = ((30+2*k1, 1), (31+2*k1, 1))
        xs.append(x if k1 == 0 else g.cmul(x, 80 + 2*k1, 81 + 2*k1))
    g.dft(xs, 1, [60 + 2*n for n in range(9)])
    sc = fl(1.0 / (2.0 * 2048 * 576))
    for n in range(9):
        a(f"v_mul_f32 v{60+2*n}, {sc}, v{60+2*n}")
        a(f"v_mul_f32 v{61+2*n}, {sc}, v{61+2*n}")
        round_bf16_pair(a, 60 + 2*n, 61 + 2*n, 17 + (n & 1))
    a("s_mul_i32 s43, s40, 4608")
    a("v_lshlrev_b32 v10, 2, v2")
    a("v_add_u32 v10, s43, v10")
    for n in range(9):
        a(f"ds_write_b32 v10, v{60+2*n} offset:{RB + 256*n}")
        a(f"ds_write_b32 v10, v{61+2*n} offset:{RB + 2304 + 256*n}")
    a.label("L_d_skip1")
    a("s_waitcnt lgkmcnt(0)")
    a("s_barrier")
    a("s_branch L_k2_end")
    a.label("L_d_red")
    a("s_cmp_lg_u32 s33, 7")
    a("s_cbranch_scc1 L_d_red2")
    a("s_lshl_b32 s51, s2, 7")
    a("s_add_u32 s51, s51, 32768")
    a("v_mov_b32 v244, 1")
    a("v_mov_b32 v245, 0")
    a("s_mov_b64 s[30:31], exec")
    a("s_mov_b64 exec, 1")
    a("buffer_store_dword v244, v245, s[56:59], s51 offen sc0 sc1")
    a("s_mov_b64 exec, s[30:31]")
    a.label("L_d_red2")
    a("s_lshr_b32 s52, s2, 4")
    a("v_lshrrev_b32 v240, 2, v2")
    a("v_lshlrev_b32 v240, 1, v240")
    a("s_lshr_b32 s53, s52, 3")
    a("v_add_u32 v240, s53, v240")
    a("s_and_b32 s53, s52, 7")
    a("s_lshl_b32 s53, s53, 2")
    a("v_and_b32 v241, 3, v2")
    a("v_add_u32 v241, s53, v241")
    a("v_lshlrev_b32 v241, 3, v241")
    a("v_add_u32 v240, v240, v241")
    a("v_lshlrev_b32 v240, 7, v240")
    a("v_cmp_le_u32 vcc, 16, v2")
    a("s_nop 1")
    a("v_cndmask_b32 v242, 0, 1, vcc")
    a("v_subrev_u32 v1, 320, v0")
    a(f"s_mul_i32 s32, s2, {4608*4}")
    a(f"s_mul_i32 s34, s2, {4608*2}")
    a("v_lshlrev_b32 v15, 4, v1")
    a("v_lshlrev_b32 v9, 3, v1")
    for m in range(6):
        a(f"s_add_u32 s35, s34, {m*1536}")
        a(f"buffer_load_dwordx2 v[{20+2*m}:{21+2*m}], v9, s[12:15], s35 offen")
        a(f"v_add_u32 v10, {192*m}, v1")
        a("v_mul_u32_u24 v10, 3641, v10")
        a("v_lshrrev_b32 v10, 19, v10")
        a("v_lshlrev_b32 v10, 1, v10")
        a("s_lshl_b32 s35, s2, 4")
        a(f"buffer_load_ushort v{32+m}, v10, s[16:19], s35 offen")
    a("s_barrier")
    a("s_barrier")
    a("s_mov_b32 s50, 400000")
    a("s_mov_b32 s51, 32768")
    a.label("L_poll_d")
    a("buffer_load_dword v243, v240, s[56:59], s51 offen sc0 sc1")
    a("s_waitcnt vmcnt(0)")
    a("v_or_b32 v243, v243, v242")
    a("v_cmp_eq_u32 vcc, 0, v243")
    a("s_sub_u32 s50, s50, 1")
    a("s_cmp_eq_u32 s50, 0")
    a("s_cbranch_scc1 L_pollx_d")
    a("s_cmp_eq_u64 vcc, 0")
    a("s_cbranch_scc1 L_pollx_d")
    a("s_sleep 2")
    a("s_branch L_poll_d")
    a.label("L_pollx_d")
    PB = 100
    for m in range(6):
        for ks in range(4):
            a(f"s_add_u32 s35, s32, {ks*2048*2304 + m*3072}")
            a(f"buffer_load_dwordx4 v[{PB+16*m+4*ks}:{PB+3+16*m+4*ks}], v15, s[20:23], s35 offen")
    rstamp(a, 3)
    a("s_waitcnt vmcnt(0)")
    for m in range(6):
        b = PB + 16 * m
        for r in range(4):
            a(f"v_add_f32 v{b+r}, v{b+r}, v{b+4+r}")
            a(f"v_add_f32 v{b+8+r}, v{b+8+r}, v{b+12+r}")
            a(f"v_add_f32 v{b+r}, v{b+r}, v{b+8+r}")
        a(f"v_lshlrev_b32 v{32+m}, 16, v{32+m}")
        round_bf16_pair(a, b, b + 1, 4)
        round_bf16_pair(a, b + 2, b + 3, 5)
        for r in range(4):
            a(f"v_add_f32 v{b+r}, v{b+r}, v{32+m}")
        round_bf16_pair(a, b, b + 1, 4)
        round_bf16_pair(a, b + 2, b + 3, 5)
        a(f"v_lshlrev_b32 v{b+4}, 16, v{20+2*m}")
        a(f"v_and_b32 v{b+5}, 0xffff0000, v{20+2*m}")
        a(f"v_lshlrev_b32 v{b+6}, 16, v{21+2*m}")
        a(f"v_and_b32 v{b+7}, 0xffff0000, v{21+2*m}")
    a("s_barrier")
    for m in range(6):
        a(f"ds_read_b128 v[{40+4*m}:{43+4*m}], v15 offset:{RB + 3072*m}")
    a("s_waitcnt lgkmcnt(0)")
    rstamp(a, 6)
    for m in range(6):
        b = PB + 16 * m
        for r in range(4):
            a(f"v_add_f32 v{b+4+r}, v{b+4+r}, v{40+4*m+r}")
        round_bf16_pair(a, b + 4, b + 5, 4)
        round_bf16_pair(a, b + 6, b + 7, 5)
        for r in range(4):
            a(f"v_add_f32 v{b+r}, v{b+r}, v{b+4+r}")
        a(f"v_cvt_pk_bf16_f32 v{b+8}, v{b}, v{b+1}")
        a(f"v_cvt_pk_bf16_f32 v{b+9}, v{b+2}, v{b+3}")
        a(f"s_add_u32 s35, s34, {m*1536}")
        a(f"buffer_store_dwordx2 v[{b+8}:{b+9}], v9, s[24:27], s35 offen")

def gen_k2(a):
    name = "k2_kernel"
    kernel_begin(a, name)
    rstamp(a, 0)
    a("s_cmp_ge_u32 s2, 256")
    a("s_cbranch_scc1 L_k2_end")
    a("s_load_dwordx2 s[4:5], s[0:1], 32")
    a("s_load_dwordx2 s[6:7], s[0:1], 40")
    a("s_load_dwordx2 s[8:9], s[0:1], 80")
    a("v_lshrrev_b32 v1, 6, v0")
    a("v_and_b32 v2, 63, v0")
    a("s_nop 0")
    a("v_readfirstlane_b32 s33, v1")
    a("s_waitcnt lgkmcnt(0)")
    srd(a, 56, 8, FL_OFF, FL_SZ)
    a("s_cmp_ge_u32 s2, 253")
    a("s_cbranch_scc1 L_phB_done")
    a("s_cmp_ge_u32 s2, 216")
    a("s_cbranch_scc1 L_k2_fft")
    gen_gemm1(a)
    a.label("L_k2_fft")
    gen_colfft(a)
    a.label("L_phB_done")
    a("s_waitcnt vmcnt(0)")
    a.label("L_phB_done2")
    rstamp(a, 1)
    a("s_load_dwordx2 s[4:5], s[0:1], 48")
    set_flag(a, 56, 0, novm=True)
    rstamp(a, 2)
    phase_c2(a)
    a.label("L_phC_done")
    rstamp(a, 4)
    phase_d(a)
    rstamp(a, 7)
    if "stamp" in DBG:
        a("s_waitcnt vmcnt(0) lgkmcnt(0)")
        a("s_cmp_lg_u32 s40, 7")
        a("s_cbranch_scc1 L_k2_end")
        a("s_mov_b64 exec, 1")
        stamp_flush(a, 8, 8, 0)
    a.label("L_k2_end")
    a("s_endpgm")
    return name, 256

def main(out):
    a = Asm()
    hdr = open("parallel_sum__spectral_gfnet__mixer_token_mlp__prompt.s.ref").read().split("\n")
    for l in hdr:
        if l.startswith("; @launch"):
            break
        a.raw(l)
    a.raw(f"; @launch kernel=k1_kernel grid=({256+K1_NWT},1,1) block=(320,1,1) lds=51200")
    a.raw("; @launch kernel=k2_kernel grid=(256,1,1) block=(512,1,1) lds=156672")
    a.raw('.amdgcn_target "amdgcn-amd-amdhsa--gfx950"')
    a.raw(".text")
    ks = []
    for g in (gen_k1, gen_k2):
        ks.append(g(a))
    a.raw('.section .rodata,"a"')
    for n, v in ks:
        kd(a, n, v)
    open(out, "w").write(a.text())

if __name__ == "__main__":
    for x in sys.argv[2:]: DBG.add(x)
    main(sys.argv[1] if len(sys.argv) > 1 else "parallel_sum__spectral_gfnet__mixer_token_mlp__prompt.s")
```

```python
import math, sys
from fftlib import Pool, FG

S, D, F = 2048, 576, 4608
DF = 289
HT_OFF = 0;                 HT_SZ = 256 * 576 * 16
U_OFF = 0x400000;           U_SZ = 576 * 576 * 16
PART_OFF = 0x1000000;       PART_SZ = 4 * 2048 * 576 * 4
PT_OFF = 0x3000000;         PBLK = 290 * 64; PT_SZ = 256 * PBLK
WT_OFF = 0x3800000;         WT_SZ = 289 * 2048 * 4
ZT_OFF = 0x4000000;         ZBLK = 290 * 128; ZT_SZ = 128 * ZBLK
YA_OFF = 0x4800000;         YA_SZ = 2048 * 576 * 2
FL_OFF = 0x5000000;         FL_SZ = 3 * 256 * 128

class Asm:
    def __init__(self):
        self.lines = []
        self.lab = 0
    def __call__(self, s):
        for l in s.strip("\n").split("\n"):
            self.lines.append("    " + l.strip())
    def label(self, name):
        self.lines.append(name + ":")
    def newlabel(self, p="L"):
        self.lab += 1
        return f"{p}_{self.lab}"
    def raw(self, s):
        self.lines.append(s)
    def text(self):
        return "\n".join(self.lines) + "\n"

def f32bits(x):
    import struct
    return struct.unpack("<I", struct.pack("<f", x))[0]
def fl(x):
    return "0x%08x" % f32bits(x)

def srd(a, sd, sbase, off, size):
    if off:
        a(f"s_add_u32 s{sd}, s{sbase}, {off}")
        a(f"s_addc_u32 s{sd+1}, s{sbase+1}, 0")
    else:
        a(f"s_mov_b32 s{sd}, s{sbase}")
        a(f"s_mov_b32 s{sd+1}, s{sbase+1}")
    a(f"s_mov_b32 s{sd+2}, {size}")
    a(f"s_mov_b32 s{sd+3}, 0x00020000")

def kernel_begin(a, name):
    a.raw(f".globl {name}")
    a.raw(".p2align 8")
    a.raw(f".type {name},@function")
    a.label(name)

def kd(a, name, vgpr, sgpr=102):
    acc = (vgpr + 3) // 4 * 4
    a.raw(".p2align 6")
    a.raw(f".amdhsa_kernel {name}")
    a.raw(f"  .amdhsa_next_free_vgpr {vgpr}")
    a.raw(f"  .amdhsa_next_free_sgpr {sgpr}")
    a.raw(f"  .amdhsa_accum_offset {acc}")
    a.raw("  .amdhsa_group_segment_fixed_size 0")
    a.raw("  .amdhsa_kernarg_size 88")
    a.raw("  .amdhsa_user_sgpr_count 2")
    a.raw("  .amdhsa_user_sgpr_kernarg_segment_ptr 1")
    a.raw("  .amdhsa_system_sgpr_workgroup_id_x 1")
    a.raw(".end_amdhsa_kernel")

def wave_reduce(a, vregs, sregs):
    for ctrl in ["row_shr:1", "row_shr:2", "row_shr:4", "row_shr:8"]:
        for v in vregs:
            a(f"v_add_f32_dpp v{v}, v{v}, v{v} {ctrl} row_mask:0xf bank_mask:0xf bound_ctrl:0")
        if len(vregs) < 3:
            a("s_nop 1")
    for v in vregs:
        a(f"v_add_f32_dpp v{v}, v{v}, v{v} row_bcast:15 row_mask:0xa bank_mask:0xf")
    if len(vregs) < 3:
        a("s_nop 1")
    for v in vregs:
        a(f"v_add_f32_dpp v{v}, v{v}, v{v} row_bcast:31 row_mask:0xc bank_mask:0xf")
    a("s_nop 1")
    for v, s in zip(vregs, sregs):
        a(f"v_readlane_b32 s{s}, v{v}, 63")

def round_bf16_pair(a, va, vb, vt):
    a(f"v_cvt_pk_bf16_f32 v{vt}, v{va}, v{vb}")
    a(f"v_lshlrev_b32 v{va}, 16, v{vt}")
    a(f"v_and_b32 v{vb}, 0xffff0000, v{vt}")

def layernorm_pair(a, xa, xb, oa, ob, t0, sbase):
    T = [t0 + i for i in range(12)]
    s0, s1, s2, s3 = sbase, sbase + 1, sbase + 2, sbase + 3
    a(f"v_add_f32 v{T[0]}, v{xa[0]}, v{xa[1]}")
    a(f"v_add_f32 v{T[1]}, v{xb[0]}, v{xb[1]}")
    for i in range(2, 9):
        a(f"v_add_f32 v{T[0]}, v{T[0]}, v{xa[i]}")
        a(f"v_add_f32 v{T[1]}, v{T[1]}, v{xb[i]}")
    a("s_nop 1")
    wave_reduce(a, [T[0], T[1]], [s0, s1])
    a("s_nop 1")
    c576 = fl(1.0 / 576.0)
    a(f"v_mov_b32 v{T[10]}, {c576}")
    a(f"v_mul_f32 v{T[2]}, s{s0}, v{T[10]}")
    a(f"v_mul_f32 v{T[3]}, s{s1}, v{T[10]}")
    a(f"v_sub_f32 v{T[4]}, v{xa[0]}, v{T[2]}")
    a(f"v_sub_f32 v{T[5]}, v{xb[0]}, v{T[3]}")
    a(f"v_mul_f32 v{T[0]}, v{T[4]}, v{T[4]}")
    a(f"v_mul_f32 v{T[1]}, v{T[5]}, v{T[5]}")
    for i in range(1, 9):
        a(f"v_sub_f32 v{T[4]}, v{xa[i]}, v{T[2]}")
        a(f"v_sub_f32 v{T[5]}, v{xb[i]}, v{T[3]}")
        a(f"v_fmac_f32 v{T[0]}, v{T[4]}, v{T[4]}")
        a(f"v_fmac_f32 v{T[1]}, v{T[5]}, v{T[5]}")
    a("s_nop 1")
    wave_reduce(a, [T[0], T[1]], [s2, s3])
    a("s_nop 1")
    a(f"v_mul_f32 v{T[6]}, s{s2}, v{T[10]}")
    a(f"v_mul_f32 v{T[7]}, s{s3}, v{T[10]}")
    round_bf16_pair(a, T[6], T[7], T[8])
    round_bf16_pair(a, T[2], T[3], T[9])
    eps = fl(1e-5)
    a(f"v_add_f32 v{T[6]}, {eps}, v{T[6]}")
    a(f"v_add_f32 v{T[7]}, {eps}, v{T[7]}")
    round_bf16_pair(a, T[6], T[7], T[8])
    a(f"v_sqrt_f32 v{T[6]}, v{T[6]}")
    a(f"v_sqrt_f32 v{T[7]}, v{T[7]}")
    a("s_nop 0")
    round_bf16_pair(a, T[6], T[7], T[8])
    a(f"v_rcp_f32 v{T[6]}, v{T[6]}")
    a(f"v_rcp_f32 v{T[7]}, v{T[7]}")
    for i in range(9):
        a(f"v_sub_f32 v{oa[i]}, v{xa[i]}, v{T[2]}")
        a(f"v_sub_f32 v{ob[i]}, v{xb[i]}, v{T[3]}")
        round_bf16_pair(a, oa[i], ob[i], T[8] if i % 2 == 0 else T[9])
        a(f"v_mul_f32 v{oa[i]}, v{oa[i]}, v{T[6]}")
        a(f"v_mul_f32 v{ob[i]}, v{ob[i]}, v{T[7]}")
        round_bf16_pair(a, oa[i], ob[i], T[4] if i % 2 == 0 else T[5])

K1_NWT = 64
K1_NPF = 64
import os
PFROWS = int(os.environ.get('PFROWS', '2048'))
W2PF_FFT = False
W2PF_GEMM = False
import os
K1PF = True
W2TAIL = int(os.environ.get('W2TAIL', '0'))
KROT = int(os.environ.get('KROT', '1'))
KROT3 = int(os.environ.get('KROT3', '1'))
PF_LEAD1 = 12
PF_LEAD2 = 10
K1_DUMMY = 0
class P2(Pool):
    def release(self, r):
        if r < self.lo or r >= self.hi: return
        Pool.release(self, r)

def phase_a(a):
    WTL = 51200
    a("s_load_dwordx2 s[4:5], s[0:1], 0")
    a("s_load_dwordx4 s[36:39], s[0:1], 8")
    a("s_load_dwordx2 s[40:41], s[0:1], 32")
    a("s_load_dwordx2 s[42:43], s[0:1], 72")
    a("s_cmp_ge_u32 s33, 5")
    a("s_cbranch_scc1 L_a_aux")
    E1 = 9216; E2 = E1 + 20736; QS = 5184; E3 = E1; QS3 = 4672
    a("v_mul_u32_u24 v3, 911, v0")
    a("v_lshrrev_b32 v3, 16, v3")
    a("v_mul_u32_u24 v4, 72, v3")
    a("v_sub_u32 v4, v0, v4")
    a("v_lshrrev_b32 v5, 3, v4")
    a("v_and_b32 v6, 7, v4")
    a(f"v_mul_u32_u24 v7, {QS}, v3")
    a("v_mul_u32_u24 v8, 576, v5")
    a("v_add_u32 v7, v7, v8")
    a("s_lshl_b32 s21, s2, 3")
    a("s_lshl_b32 s22, s33, 1")
    a("s_add_u32 s21, s21, s22")
    a("s_mul_i32 s21, s21, 1152")
    a("v_lshlrev_b32 v9, 1, v2")
    a("s_waitcnt lgkmcnt(0)")
    srd(a, 12, 4, 0, S * D * 2)
    srd(a, 16, 8, HT_OFF, HT_SZ)
    srd(a, 24, 8, PT_OFF, PT_SZ)
    a("s_cmp_ge_u32 s33, 4")
    a("s_cbranch_scc1 L_a_skipln")
    XA = list(range(10, 19)); XB = list(range(20, 29))
    for i in range(9):
        a(f"buffer_load_ushort v{XA[i]}, v9, s[12:15], s21 offen offset:{128*i}")
        a(f"buffer_load_ushort v{XB[i]}, v9, s[12:15], s21 offen offset:{1152+128*i}")
    a("v_cvt_f32_u32 v60, v2")
    for k1 in range(1, 9):
        a(f"v_mul_f32 v61, {fl(-k1/576.0)}, v60")
        a(f"v_cos_f32 v{80+2*k1}, v61")
        a(f"v_sin_f32 v{81+2*k1}, v61")
    a("s_waitcnt vmcnt(0)")
    for i in range(9):
        a(f"v_lshlrev_b32 v{XA[i]}, 16, v{XA[i]}")
        a(f"v_lshlrev_b32 v{XB[i]}, 16, v{XB[i]}")
    NA = [30 + 2*i for i in range(9)]; NB = [31 + 2*i for i in range(9)]
    layernorm_pair(a, XA, XB, NA, NB, 60, 44)
    HA = list(range(10, 19)); HB = list(range(20, 29))
    layernorm_pair(a, NA, NB, HA, HB, 60, 44)
    a("v_lshlrev_b32 v9, 4, v2")
    a("s_lshl_b32 s22, s33, 2")
    a("v_add_u32 v9, s22, v9")
    for i in range(9):
        a(f"v_cvt_pk_bf16_f32 v{50+i}, v{HA[i]}, v{HB[i]}")
    for i in range(9):
        a(f"ds_write_b32 v9, v{50+i} offset:{1024*i}")
    pool = P2(98, 128); g = FG(a, pool)
    xs = [((NA[i], 1), (NB[i], 1)) for i in range(9)]
    ys = g.dft(xs, -1)
    a(f"s_mul_i32 s22, s33, {QS}")
    a("v_lshlrev_b32 v9, 3, v2")
    a("v_add_u32 v9, s22, v9")
    for k1 in range(9):
        d = 60 + 2 * k1
        if k1 == 0:
            g.mov(ys[0][0], d); g.mov(ys[0][1], d + 1); g.frc(ys[0])
        else:
            g.cmul(ys[k1], 80 + 2*k1, 81 + 2*k1, dst=d)
    for k1 in range(9):
        d = 60 + 2 * k1
        a(f"ds_write_b64 v9, v[{d}:{d+1}] offset:{E1 + 576*k1}")
    a.label("L_a_skipln")
    a("v_cvt_f32_u32 v60, v6")
    for c in range(1, 8):
        a(f"v_mul_f32 v61, {fl(-c/64.0)}, v60")
        a(f"v_cos_f32 v{80+2*c}, v61")
        a(f"v_sin_f32 v{81+2*c}, v61")
    a("s_waitcnt lgkmcnt(0)")
    a("s_barrier")
    a("v_cmp_gt_u32 vcc, 288, v0")
    a("s_and_saveexec_b64 s[30:31], vcc")
    a("v_lshlrev_b32 v9, 4, v0")
    a("ds_read_b128 v[10:13], v9")
    a("ds_read_b128 v[14:17], v9 offset:4608")
    a("v_lshlrev_b32 v20, 3, v6")
    a("v_add_u32 v20, v7, v20")
    for b in range(8):
        a(f"ds_read_b64 v[{30+2*b}:{31+2*b}], v20 offset:{E1 + 64*b}")
    a(f"s_mul_i32 s23, s2, {576*16}")
    a("s_waitcnt lgkmcnt(8)")
    a("buffer_store_dwordx4 v[10:13], v9, s[16:19], s23 offen sc0 sc1")
    a("v_add_u32 v21, 4608, v9")
    a("buffer_store_dwordx4 v[14:17], v21, s[16:19], s23 offen sc0 sc1")
    a("s_waitcnt lgkmcnt(0)")
    pool = P2(98, 128); g = FG(a, pool)
    ys = g.dft([((30+2*b, 1), (31+2*b, 1)) for b in range(8)], -1)
    a("v_mul_u32_u24 v22, 72, v6")
    a("v_add_u32 v22, v7, v22")
    for c in range(8):
        d = 60 + 2 * c
        if c == 0:
            g.mov(ys[0][0], d); g.mov(ys[0][1], d + 1); g.frc(ys[0])
        else:
            g.cmul(ys[c], 80 + 2*c, 81 + 2*c, dst=d)
    for c in range(8):
        d = 60 + 2 * c
        a(f"ds_write_b64 v22, v[{d}:{d+1}] offset:{E2 + 8*c}")
    a("s_waitcnt lgkmcnt(0)")
    a("s_barrier")
    for aa in range(8):
        a(f"ds_read_b64 v[{30+2*aa}:{31+2*aa}], v20 offset:{E2 + 72*aa}")
    a("s_waitcnt lgkmcnt(0)")
    pool = P2(98, 128); g = FG(a, pool)
    g.dft([((30+2*b, 1), (31+2*b, 1)) for b in range(8)], -1, [60 + 2*e for e in range(8)])
    a(f"v_mul_u32_u24 v22, {QS3}, v3")
    a("v_mul_u32_u24 v23, 9, v6")
    a("v_add_u32 v23, v23, v5")
    a("v_lshlrev_b32 v23, 3, v23")
    a("v_add_u32 v22, v22, v23")
    for e in range(8):
        d = 60 + 2 * e
        a(f"ds_write_b64 v22, v[{d}:{d+1}] offset:{E3 + 576*e}")
    a("s_mov_b64 exec, s[30:31]")
    a("s_waitcnt lgkmcnt(0)")
    a("s_barrier")
    a(f"s_mul_i32 s23, s2, {PBLK}")
    for rnd in range(4):
        a(f"v_add_u32 v10, {320*rnd}, v0")
        if rnd == 3:
            a("v_cmp_gt_u32 vcc, 1156, v10")
            a("s_and_saveexec_b64 s[30:31], vcc")
            a("s_cbranch_execz L_a_unp_done")
        a("v_lshrrev_b32 v11, 2, v10")
        a("v_and_b32 v12, 3, v10")
        a(f"v_mul_u32_u24 v13, {QS3}, v12")
        a("v_sub_u32 v14, 576, v11")
        a("v_cmp_eq_u32 vcc, 0, v11")
        a("v_lshlrev_b32 v15, 3, v11")
        a("v_add_u32 v15, v15, v13")
        a("v_cndmask_b32 v14, v14, v11, vcc")
        a("v_lshlrev_b32 v14, 3, v14")
        a("v_add_u32 v14, v14, v13")
        b = 30 + 8 * rnd
        a(f"ds_read_b64 v[{b}:{b+1}], v15 offset:{E3}")
        a(f"ds_read_b64 v[{b+2}:{b+3}], v14 offset:{E3}")
        a(f"v_lshlrev_b32 v{70+rnd}, 4, v10")
        a("s_waitcnt lgkmcnt(0)")
        a(f"v_add_f32 v{b+4}, v{b}, v{b+2}")
        a(f"v_sub_f32 v{b+5}, v{b+1}, v{b+3}")
        a(f"v_add_f32 v{b+6}, v{b+1}, v{b+3}")
        a(f"v_sub_f32 v{b+7}, v{b+2}, v{b}")
        a(f"buffer_store_dwordx4 v[{b+4}:{b+7}], v{70+rnd}, s[24:27], s23 offen sc0 sc1")
    a.label("L_a_unp_done")
    a("s_mov_b64 exec, s[30:31]")
    a("s_branch L_phA_done")
    a.label("L_a_aux")
    a("v_subrev_u32 v1, 320, v0")
    a("s_waitcnt lgkmcnt(0)")
    a("s_cmp_lg_u32 s33, 7")
    a("s_cbranch_scc1 L_a_aux2")
    srd(a, 44, 42, 0, 256)
    a("s_lshl_b32 s21, s2, 7")
    a("v_mov_b32 v9, 0")
    a("v_lshlrev_b32 v10, 15, v2")
    a("buffer_store_dword v9, v10, s[56:59], s21 offen sc0 sc1")
    a("s_waitcnt vmcnt(0)")
    a("v_mov_b32 v9, 1")
    a("v_mov_b32 v10, 0")
    a("s_mov_b64 s[30:31], exec")
    a("s_mov_b64 exec, 1")
    a("buffer_atomic_add v9, v10, s[44:47], 0 offen sc1")
    a("s_mov_b64 exec, s[30:31]")
    a.label("L_a_aux2")
    a("s_cmp_lt_u32 s2, 64")
    a("s_cbranch_scc1 L_a_wt")
    srd(a, 12, 40, 0, S * F * 2)
    a("s_and_b32 s22, s2, 7")
    a("s_mul_i32 s22, s22, 1152")
    a("s_lshr_b32 s23, s2, 3")
    a("s_sub_u32 s23, s23, 8")
    a("s_mul_i32 s23, s23, 192")
    a("s_mov_b32 s24, 9216")
    nper = (PFROWS * 9 + 24 * 192 - 1) // (24 * 192)
    for i in range(nper):
        a(f"v_add_u32 v10, {i * 24 * 192}, v1")
        a("v_add_u32 v10, s23, v10")
        a("v_mul_hi_u32 v11, v10, v121") if False else None
        a("v_mul_u32_u24 v11, 7282, v10") if False else None
        a("s_mov_b32 s25, 0x1c71c71d")
        a("v_mul_hi_u32 v11, v10, s25")
        a("v_mul_u32_u24 v12, 9, v11")
        a("v_sub_u32 v12, v10, v12")
        a("v_mul_lo_u32 v11, v11, s24")
        a("v_lshlrev_b32 v12, 7, v12")
        a("v_add_u32 v11, v11, v12")
        a(f"buffer_load_dword v76, v11, s[12:15], s22 offen")
    a("s_barrier"); a("s_barrier"); a("s_barrier")
    a("s_branch L_phA_done2")
    a.label("L_a_wt")
    srd(a, 12, 36, 0, S * DF * 2)
    srd(a, 16, 38, 0, S * DF * 2)
    srd(a, 24, 8, WT_OFF, WT_SZ)
    a("s_mul_i32 s22, s2, 18496")
    a("v_lshlrev_b32 v9, 4, v1")
    for rnd in range(7):
        a(f"v_add_u32 v10, {192*16*rnd}, v9")
        if rnd == 6:
            a("v_cmp_gt_u32 vcc, 18496, v10")
            a("s_and_saveexec_b64 s[30:31], vcc")
        a(f"buffer_load_dwordx4 v[{20+8*rnd}:{23+8*rnd}], v10, s[12:15], s22 offen")
        a(f"buffer_load_dwordx4 v[{24+8*rnd}:{27+8*rnd}], v10, s[16:19], s22 offen")
    a("s_mov_b64 exec, s[30:31]")
    a("s_waitcnt vmcnt(0)")
    for rnd in range(7):
        a(f"v_add_u32 v10, {192*16*rnd}, v9")
        if rnd == 6:
            a("v_cmp_gt_u32 vcc, 18496, v10")
            a("s_and_saveexec_b64 s[30:31], vcc")
        a(f"ds_write_b128 v10, v[{20+8*rnd}:{23+8*rnd}] offset:{WTL}")
        a(f"v_add_u32 v11, {WTL + 18496}, v10")
        a(f"ds_write_b128 v11, v[{24+8*rnd}:{27+8*rnd}]")
    a("s_mov_b64 exec, s[30:31]")
    a("s_waitcnt lgkmcnt(0)")
    a("s_barrier")
    a("s_lshl_b32 s23, s2, 7")
    a("v_and_b32 v11, 31, v1")
    a("v_mul_u32_u24 v12, 578, v11")
    a("v_lshrrev_b32 v13, 5, v1")
    a("v_lshlrev_b32 v14, 1, v13")
    a("v_add_u32 v12, v12, v14")
    a(f"v_add_u32 v12, {WTL}, v12")
    a(f"v_add_u32 v16, 18496, v12")
    a("v_lshlrev_b32 v14, 13, v13")
    a("v_lshlrev_b32 v15, 2, v11")
    a("v_add_u32 v14, v14, v15")
    nb = 0
    for base in range(0, 49, 7):
        rr = list(range(base, min(base + 7, 48)))
        if base == 42: rr = list(range(42, 48))
        last = (base == 42)
        for i, rnd in enumerate(rr):
            r0 = 20 + 2 * i
            a(f"ds_read_u16 v{r0}, v12 offset:{12*rnd}")
            a(f"ds_read_u16 v{r0+1}, v16 offset:{12*rnd}")
        a("s_waitcnt lgkmcnt(0)")
        for i, rnd in enumerate(rr):
            r0 = 20 + 2 * i
            a(f"v_lshl_or_b32 v{40+i}, v{r0+1}, 16, v{r0}")
            a(f"s_add_u32 s36, s23, {rnd*6*8192}")
            a(f"buffer_store_dword v{40+i}, v14, s[24:27], s36 offen sc0 sc1")
        nb += 1
        if nb == 3 or nb == 6: a("s_barrier")
    a("v_cmp_gt_u32 vcc, 32, v1")
    a("s_and_saveexec_b64 s[30:31], vcc")
    a("s_cbranch_execz L_a_wt_done")
    a(f"ds_read_u16 v20, v12 offset:{12*48}")
    a(f"ds_read_u16 v21, v16 offset:{12*48}")
    a("s_waitcnt lgkmcnt(0)")
    a("v_lshl_or_b32 v40, v21, 16, v20")
    a(f"s_add_u32 s36, s23, {48*6*8192}")
    a("buffer_store_dword v40, v14, s[24:27], s36 offen sc0 sc1")
    a.label("L_a_wt_done")
    a("s_mov_b64 exec, s[30:31]")

DBG = set()
STAMP_OFF = 0x8000000
def stamp(a, idx):
    if "stamp" in DBG:
        a(f"s_memtime s[{60+2*idx}:{61+2*idx}]")
def stamp_flush(a, n, wsbase, slot):
    if "stamp" not in DBG: return
    a("s_waitcnt lgkmcnt(0)")
    srd(a, 56, wsbase, STAMP_OFF + slot * 0x10000, 0x10000)
    a("s_lshl_b32 s55, s2, 6")
    for i in range(n):
        a(f"v_mov_b32 v121, s{60+2*i}")
        a(f"v_mov_b32 v120, {4*i}")
        a(f"buffer_store_dword v121, v120, s[56:59], s55 offen")
def interleave(a, mf, other, per=2):
    if "nomfma" in DBG: mf = []
    if "noread" in DBG: other = []
    j = 0
    for i, m in enumerate(mf):
        a(m)
        k = min(len(other), (i + 1) * per)
        while j < k:
            a(other[j]); j += 1
    while j < len(other):
        a(other[j]); j += 1

def ring_loader(a, tag, R, NS, SZ, n, dma, pf=None, done=None, split=None):
    nst = NS - R
    lab = f"L_{tag}_ld"
    peel = 0
    if split is None:
        for st in range(R):
            a(f"s_mov_b32 s40, {st*SZ}")
            for x in dma(40): a(x)
        a(f"s_waitcnt vmcnt({(R-1)*n})")
    else:
        dma_w, dma_u, nW, nU, mid = split
        for st in range(R):
            a(f"s_mov_b32 s40, {st*SZ}")
            for x in dma_w(40): a(x)
        mid()
        for st in range(R):
            a(f"s_mov_b32 s40, {st*SZ}")
            for x in dma_u(40): a(x)
        a(f"s_waitcnt vmcnt({(R-1)*nU})")
        peel = R - 2
    a("s_barrier")
    a("s_mov_b32 s40, 0")
    def adv():
        a(f"s_add_u32 s40, s40, {SZ}")
        a(f"s_cmp_eq_u32 s40, {R*SZ}")
        a("s_cselect_b32 s40, 0, s40")
    for i in range(peel):
        a(f"s_waitcnt vmcnt({(R-2-i)*nU + i*n})")
        a("s_barrier")
        for x in dma(40): a(x)
        adv()
    a(f"s_mov_b32 s45, {nst - peel}")
    a.label(lab)
    a(f"s_waitcnt vmcnt({(R-2)*n})")
    a("s_barrier")
    for x in dma(40): a(x)
    adv()
    a("s_sub_u32 s45, s45, 1")
    a("s_cmp_lg_u32 s45, 0")
    a(f"s_cbranch_scc1 {lab}")
    for i in range(nst, NS):
        vm = max(0, NS - 1 - (i + 1)) * n
        a(f"s_waitcnt vmcnt({vm})")
        a("s_barrier")
    if done is None: a("s_endpgm")
    else: a(f"s_branch {done}")

def ring_compute(a, tag, R, NS, SZ, mfmas, reads, addr_upd, hook=None, mid=False):
    if mid: a("s_barrier")
    a("s_barrier")
    a("s_mov_b32 s41, 0")
    for x in addr_upd(41): a(x)
    for x in reads(0, 0): a(x)
    a(f"s_mov_b32 s45, {NS-1}")
    lab = f"L_{tag}_cp"
    a.label(lab)
    for h in (hook or []):
        if h.endswith(":"): a.label(h[:-1])
        else: a(h)
    a("s_waitcnt lgkmcnt(0)")
    interleave(a, mfmas(0), reads(1, 1))
    a(f"s_add_u32 s41, s41, {SZ}")
    a(f"s_cmp_eq_u32 s41, {R*SZ}")
    a("s_cselect_b32 s41, 0, s41")
    for x in addr_upd(41): a(x)
    a("s_waitcnt lgkmcnt(0)")
    a("s_barrier")
    interleave(a, mfmas(1), reads(0, 0))
    a("s_sub_u32 s45, s45, 1")
    a("s_cmp_lg_u32 s45, 0")
    a(f"s_cbranch_scc1 {lab}")
    a("s_waitcnt lgkmcnt(0)")
    interleave(a, mfmas(0), reads(1, 1))
    a("s_waitcnt lgkmcnt(0)")
    a("s_barrier")
    interleave(a, mfmas(1), [])

def poll_flags(a, tag, sfl, phase_off, vmask_gen, nld=4, vtmp=244, maxspin=400000):
    a(f"v_lshlrev_b32 v{vtmp+4}, 7, v2")
    a(f"s_mov_b32 s50, {maxspin}")
    a.label(f"L_poll_{tag}")
    for i in nld:
        a(f"s_mov_b32 s51, {phase_off + i*64*128}")
        a(f"buffer_load_dword v{vtmp+i}, v{vtmp+4}, s[{sfl}:{sfl+3}], s51 offen sc0 sc1")
    a("s_waitcnt vmcnt(0)")
    first = True
    for i in nld:
        a(f"v_or_b32 v{vtmp+i}, v{vtmp+i}, v{vtmp+8+i}")
        if not first: a(f"v_min_u32 v{vtmp+nld[0]}, v{vtmp+nld[0]}, v{vtmp+i}")
        first = False
    a(f"v_cmp_eq_u32 vcc, 0, v{vtmp+nld[0]}")
    a("s_sub_u32 s50, s50, 1")
    a("s_cmp_eq_u32 s50, 0")
    a(f"s_cbranch_scc1 L_pollx_{tag}")
    a("s_cmp_eq_u64 vcc, 0")
    a(f"s_cbranch_scc1 L_pollx_{tag}")
    a("s_sleep 2")
    a(f"s_branch L_poll_{tag}")
    a.label(f"L_pollx_{tag}")

def set_flag(a, sfl, phase_off, novm=False):
    a("s_waitcnt lgkmcnt(0)" if novm else "s_waitcnt vmcnt(0) lgkmcnt(0)")
    a("s_barrier")
    lab = a.newlabel("L_nf")
    a("s_cmp_lg_u32 s33, 0")
    a(f"s_cbranch_scc1 {lab}")
    a("s_lshl_b32 s51, s2, 7")
    a(f"s_add_u32 s51, s51, {phase_off}")
    a("v_mov_b32 v244, 1")
    a("v_mov_b32 v245, 0")
    a("s_mov_b64 s[30:31], exec")
    a("s_mov_b64 exec, 1")
    a(f"buffer_store_dword v244, v245, s[{sfl}:{sfl+3}], s51 offen sc0 sc1")
    a("s_mov_b64 exec, s[30:31]")
    a.label(lab)

def gen_gemm1(a):
    R = 5; NS = 32; SZ = 28672
    srd(a, 12, 4, 0, S * F * 2)
    srd(a, 16, 8, HT_OFF, HT_SZ)
    srd(a, 20, 8, U_OFF, U_SZ)
    srd(a, 24, 6, 0, F * 2)
    a("s_and_b32 s28, s2, 7")
    a("s_lshr_b32 s29, s2, 3")
    a("s_mul_i32 s28, s28, 27")
    a("s_add_u32 s28, s28, s29")
    a("s_mul_i32 s29, s28, 171")
    a("s_lshr_b32 s29, s29, 10")
    a("s_mul_i32 s30, s29, 6")
    a("s_sub_u32 s30, s28, s30")
    a("s_lshl_b32 s31, s29, 8")
    a("s_mul_i32 s32, s30, 1536")
    a("s_and_b32 s34, s33, 3")
    a("s_lshr_b32 s35, s33, 2")
    a("s_and_b32 s36, s34, 1")
    a("s_lshr_b32 s37, s34, 1")
    a("v_lshrrev_b32 v3, 4, v2")
    a("v_and_b32 v4, 15, v2")
    a("v_lshrrev_b32 v5, 2, v4")
    a("v_and_b32 v6, 3, v4")
    a("s_cmp_eq_u32 s35, 0")
    a("s_cbranch_scc1 L_g1_compute")
    a("s_lshl_b32 s38, s34, 4")
    a("v_add_u32 v9, s38, v3")
    a("s_mov_b32 s39, 9216")
    a("v_mul_lo_u32 v9, v9, s39")
    a("v_add_u32 v9, s31, v9")
    a("v_lshlrev_b32 v10, 1, v3")
    a("v_xor_b32 v11, v10, v4")
    a("v_lshlrev_b32 v11, 4, v11")
    a("v_add_u32 v20, v9, v11")
    a("v_xor_b32 v11, 8, v10")
    a("v_xor_b32 v11, v11, v4")
    a("v_lshlrev_b32 v11, 4, v11")
    a("v_add_u32 v21, v9, v11")
    for i in range(3):
        a("s_mul_i32 s38, s34, 192")
        a(f"s_add_u32 s38, s38, {64*i}")
        a("v_add_u32 v9, s38, v2")
        a("v_mul_u32_u24 v10, 683, v9")
        a("v_lshrrev_b32 v10, 16, v10")
        a("v_mul_u32_u24 v11, 96, v10")
        a("v_sub_u32 v11, v9, v11")
        a("v_mul_u32_u24 v10, 9216, v10")
        a("v_lshlrev_b32 v11, 4, v11")
        a("v_add_u32 v10, v10, v11")
        a(f"s_sub_u32 s38, s32, {1024*i}") if i else a("s_mov_b32 s38, s32")
        a(f"v_add_u32 v{22+i}, s38, v10")
    a("s_lshl_b32 s43, s34, 12")
    a("s_mul_i32 s46, s34, 3072")
    a("s_add_u32 s46, s46, 16384")
    a("s_mov_b32 s47, 0")
    a("s_mov_b32 s42, 0")
    if KROT:
        a("s_lshl_b32 s38, s30, 5")
        a("s_mul_i32 s38, s38, 171")
        a("s_lshr_b32 s38, s38, 10")
        a(f"s_mul_i32 s42, s38, {64*9216}")
        a(f"s_mul_i32 s47, s38, {8*9216}")
    def dma(wr):
        out = [f"s_add_u32 m0, s{wr}, s43"]
        for i in range(4):
            out.append(f"s_add_u32 s44, s42, {i*(4*9216-1024)}")
            out.append(f"buffer_load_dwordx4 v{20 + (i>>1)}, s[12:15], s44 offen offset:{1024*i} lds")
        out.append(f"s_add_u32 m0, s{wr}, s46")
        out.append(f"s_add_u32 s42, s42, {64*9216}")
        for i in range(3):
            out.append(f"buffer_load_dwordx4 v{22+i}, s[16:19], s47 offen offset:{1024*i} lds")
        out.append(f"s_add_u32 s47, s47, {8*9216}")
        if KROT:
            out += [f"s_cmp_eq_u32 s42, {NS*64*9216}", "s_cselect_b32 s42, 0, s42", "s_cselect_b32 s47, 0, s47"]
        return out
    ring_loader(a, "g1", R, NS, SZ, 7, dma, done="L_g1_epi_ld")
    a.label("L_g1_compute")
    hook = None
    VW = [100, 101, 102, 103]; VH = 104
    VWc = [105, 106, 107, 108]; VHc = 109
    a("v_and_b32 v7, 1, v3")
    a("v_lshlrev_b32 v7, 2, v7")
    a("v_or_b32 v7, v7, v5")
    a("v_lshlrev_b32 v8, 3, v3")
    a("v_add_u32 v8, v8, v5")
    a("v_lshlrev_b32 v8, 8, v8")
    a("v_lshlrev_b32 v9, 3, v6")
    a("v_add_u32 v8, v8, v9")
    a("s_lshl_b32 s38, s36, 2")
    for fbk in range(4):
        a(f"s_add_u32 s39, s38, {fbk}")
        a(f"v_xor_b32 v9, s39, v7")
        a(f"v_lshlrev_b32 v9, 5, v9")
        a(f"v_add_u32 v{VW[fbk]}, v8, v9")
    a("v_mul_u32_u24 v9, 96, v3")
    a("s_mul_i32 s38, s37, 48")
    a("v_add_u32 v9, s38, v9")
    a("v_add_u32 v9, v9, v4")
    a("v_lshlrev_b32 v9, 4, v9")
    a(f"v_add_u32 v{VH}, 16384, v9")
    ACC = 16
    for i in range(48):
        a(f"v_mov_b32 v{ACC+i}, 0")
    FR = [112, 140]
    def acc(fbk, dbk):
        b = ACC + (fbk * 3 + dbk) * 4
        return f"v[{b}:{b+3}]"
    def mfmas(st):
        out = []
        for dbk in range(3):
            for fbk in range(4):
                w = FR[st] + 4 * fbk; h = FR[st] + 16 + 4 * dbk
                out.append(f"v_mfma_f32_16x16x32_bf16 {acc(fbk,dbk)}, v[{w}:{w+3}], v[{h}:{h+3}], {acc(fbk,dbk)}")
        return out
    def reads(st, sub):
        out = []
        for fbk in range(4):
            w = FR[st] + 4 * fbk
            out.append(f"ds_read_b64_tr_b16 v[{w}:{w+1}], v{VWc[fbk]} offset:{sub*8192}")
            out.append(f"ds_read_b64_tr_b16 v[{w+2}:{w+3}], v{VWc[fbk]} offset:{sub*8192+1024}")
        for dbk in range(3):
            h = FR[st] + 16 + 4 * dbk
            out.append(f"ds_read_b128 v[{h}:{h+3}], v{VHc} offset:{sub*6144+256*dbk}")
        return out
    def addr_upd(sreg):
        out = [f"v_add_u32 v{VWc[k]}, s{sreg}, v{VW[k]}" for k in range(4)]
        out.append(f"v_add_u32 v{VHc}, s{sreg}, v{VH}")
        return out
    ring_compute(a, "g1", R, NS, SZ, mfmas, reads, addr_upd, hook)
    a("v_lshlrev_b32 v9, 4, v2")
    a("s_mul_i32 s38, s34, 6144")
    a("v_add_u32 v10, s38, v9")
    a("s_nop 4")
    for j in range(6):
        b = ACC + (6 + j) * 4
        a(f"ds_write_b128 v10, v[{b}:{b+3}] offset:{1024*j}")
    a("s_branch L_g1_epi")
    a.label("L_g1_epi_ld")
    a("v_lshlrev_b32 v9, 4, v2")
    a("s_mul_i32 s38, s34, 6144")
    a("v_add_u32 v10, s38, v9")
    a.label("L_g1_epi")
    a("s_lshl_b32 s38, s36, 7")
    a("s_add_u32 s38, s38, s31")
    a("s_lshl_b32 s39, s35, 6")
    a("s_add_u32 s38, s38, s39")
    a("v_lshlrev_b32 v12, 3, v3")
    for k in range(2):
        a(f"buffer_load_dwordx2 v[{64+2*k}:{65+2*k}], v12, s[24:27], s38 offen offset:{32*k}")
    k0 = -2.0 * math.log2(math.e) * math.sqrt(2.0 / math.pi)
    k1 = k0 * 0.044715
    a(f"s_mov_b32 s46, {fl(k0)}")
    a(f"s_mov_b32 s47, {fl(k1)}")
    a("v_mov_b32 v102, s46")
    a("s_lshl_b32 s38, s29, 4")
    a("s_lshl_b32 s39, s36, 3")
    a("s_add_u32 s38, s38, s39")
    a("s_lshl_b32 s39, s35, 2")
    a("s_add_u32 s38, s38, s39")
    a("v_lshrrev_b32 v12, 1, v3")
    a("v_add_u32 v12, s38, v12")
    a("v_mul_u32_u24 v12, 576, v12")
    a("s_mul_i32 s38, s37, 48")
    a("v_add_u32 v12, s38, v12")
    a("v_add_u32 v12, v12, v4")
    a("v_lshlrev_b32 v12, 4, v12")
    a("v_add_u32 v12, s32, v12")
    a("v_and_b32 v13, 1, v3")
    a("v_lshlrev_b32 v13, 3, v13")
    a("v_add_u32 v12, v12, v13")
    a("s_waitcnt lgkmcnt(0)")
    a("s_barrier")
    a("s_cmp_eq_u32 s35, 0")
    a("s_cbranch_scc1 L_g1_epi2")
    for j in range(6):
        b = ACC + j * 4
        a(f"ds_read_b128 v[{b}:{b+3}], v10 offset:{1024*j}")
    a.label("L_g1_epi2")
    a("s_waitcnt vmcnt(0) lgkmcnt(0)")
    for k in range(2):
        a(f"v_lshlrev_b32 v{80+4*k}, 16, v{64+2*k}")
        a(f"v_and_b32 v{81+4*k}, 0xffff0000, v{64+2*k}")
        a(f"v_lshlrev_b32 v{82+4*k}, 16, v{65+2*k}")
        a(f"v_and_b32 v{83+4*k}, 0xffff0000, v{65+2*k}")
    cnt = 0
    for k in range(2):
        for dbk in range(3):
            b = ACC + (k * 3 + dbk) * 4
            for r in (0, 2):
                round_bf16_pair(a, b + r, b + r + 1, 64)
                a(f"v_add_f32 v{b+r}, v{b+r}, v{80+4*k+r}")
                a(f"v_add_f32 v{b+r+1}, v{b+r+1}, v{80+4*k+r+1}")
                round_bf16_pair(a, b + r, b + r + 1, 65)
            for r in range(4):
                t = 66 + r
                a(f"v_mul_f32 v{t}, v{b+r}, v{b+r}")
                a(f"v_fma_f32 v{t}, v{t}, s47, v102")
                a(f"v_mul_f32 v{t}, v{t}, v{b+r}")
                a(f"v_exp_f32 v{t}, v{t}")
            for r in range(4):
                t = 66 + r
                a(f"v_add_f32 v{t}, 1.0, v{t}")
                a(f"v_rcp_f32 v{t}, v{t}")
            a("s_nop 0")
            for r in range(4):
                t = 66 + r
                a(f"v_mul_f32 v{t}, v{t}, v{b+r}")
            o = 70 + 2 * (cnt % 4); cnt += 1
            a(f"v_cvt_pk_bf16_f32 v{o}, v66, v67")
            a(f"v_cvt_pk_bf16_f32 v{o+1}, v68, v69")
            a(f"s_mov_b32 s38, {k*18432}")
            a(f"buffer_store_dwordx2 v[{o}:{o+1}], v12, s[20:23], s38 offen offset:{256*dbk} sc0 sc1")
    if not W2TAIL:
        a("s_branch L_phB_done")
    a("s_load_dwordx2 s[88:89], s[0:1], 48")
    a("s_and_b32 s48, s2, 7")
    a("s_lshr_b32 s49, s48, 1")
    a("s_mul_i32 s49, s49, 1152")
    a("s_and_b32 s48, s48, 1")
    a("s_lshl_b32 s48, s48, 11")
    a("s_lshr_b32 s50, s2, 3")
    a("s_lshl_b32 s50, s50, 3")
    a("s_add_u32 s50, s50, s33")
    a("s_lshl_b32 s51, s50, 2")
    a("s_add_u32 s49, s49, s51")
    a("v_add_u32 v30, s49, v3")
    a("v_lshlrev_b32 v30, 12, v30")
    a("v_lshlrev_b32 v31, 7, v4")
    a("v_add_u32 v30, v30, v31")
    a("v_add_u32 v30, s48, v30")
    a("s_waitcnt lgkmcnt(0)")
    srd(a, 92, 88, 0, S * F * 2)
    a("buffer_load_dword v110, v30, s[92:95], 0 offen")
    a("s_mov_b32 s52, 0x7f000000")
    a("s_cmp_lt_u32 s50, 72")
    a(f"s_cselect_b32 s51, {864*4096}, s52")
    a("buffer_load_dword v110, v30, s[92:95], s51 offen")
    a("s_waitcnt vmcnt(2)")
    a("s_branch L_phB_done2")

TB1 = 139264; TB2 = TB1 + 16384
def gen_colfft(a):
    srd(a, 12, 8, PT_OFF, PT_SZ)
    srd(a, 16, 8, WT_OFF, WT_SZ)
    srd(a, 20, 8, ZT_OFF, ZT_SZ)
    a("s_sub_u32 s28, s2, 216")
    a("s_lshl_b32 s28, s28, 3")
    a("s_add_u32 s28, s28, s33")
    a("s_lshl_b32 s29, s28, 6")
    a("v_lshrrev_b32 v14, 2, v2")
    a(f"v_mul_u32_u24 v14, {PBLK}, v14")
    a("v_and_b32 v15, 3, v2")
    a("v_lshlrev_b32 v15, 4, v15")
    a("v_add_u32 v14, v14, v15")
    a("s_lshl_b32 s30, s28, 13")
    a("v_lshlrev_b32 v3, 4, v2")
    a("v_lshlrev_b32 v4, 2, v2")
    DQ = [16 + 4*i for i in range(16)]
    for aa in range(16):
        a(f"s_add_u32 s31, s29, {16*PBLK*aa}")
        a(f"buffer_load_dwordx4 v[{DQ[aa]}:{DQ[aa]+3}], v14, s[12:15], s31 offen")
    WR = 80
    for m in range(4):
        for kc in range(8):
            a(f"buffer_load_dword v{WR + 8*m + kc}, v4, s[16:19], s30 offen offset:{256*m + 1024*kc}") if 256*m + 1024*kc < 4096 else None
            if 256*m + 1024*kc >= 4096:
                a(f"s_add_u32 s31, s30, {1024*kc}")
                a(f"buffer_load_dword v{WR + 8*m + kc}, v4, s[16:19], s31 offen offset:{256*m}")
    for i in range(4):
        a(f"v_add_u32 v5, {512*i}, v0")
        a("v_lshrrev_b32 v6, 7, v5")
        a("v_and_b32 v7, 127, v5")
        a("v_mul_u32_u24 v6, v6, v7")
        a("v_cvt_f32_u32 v6, v6")
        a(f"v_mul_f32 v6, {fl(-1.0/2048)}, v6")
        a("v_cos_f32 v8, v6")
        a("v_sin_f32 v9, v6")
        a("v_lshlrev_b32 v5, 3, v5")
        a(f"v_add_u32 v5, {TB1}, v5")
        a("ds_write_b64 v5, v[8:9]")
    a("v_cmp_gt_u32 vcc, 128, v0")
    a("s_and_saveexec_b64 s[34:35], vcc")
    a("v_lshrrev_b32 v6, 3, v0")
    a("v_and_b32 v7, 7, v0")
    a("v_mul_u32_u24 v6, v6, v7")
    a("v_cvt_f32_u32 v6, v6")
    a(f"v_mul_f32 v6, {fl(-1.0/128)}, v6")
    a("v_cos_f32 v8, v6")
    a("v_sin_f32 v9, v6")
    a("v_lshlrev_b32 v5, 3, v0")
    a(f"v_add_u32 v5, {TB2}, v5")
    a("ds_write_b64 v5, v[8:9]")
    a("s_mov_b64 exec, s[34:35]")
    a("s_waitcnt lgkmcnt(0)")
    a("s_barrier")
    a("s_cmp_ge_u32 s28, 289")
    a("s_cbranch_scc1 L_phB_done")
    a("s_mul_i32 s32, s33, 17408")
    a("v_add_u32 v5, s32, v3")
    a("v_lshrrev_b32 v10, 2, v2")
    a("v_and_b32 v11, 3, v2")
    a("v_mul_u32_u24 v6, 1088, v10")
    a("v_lshlrev_b32 v12, 4, v11")
    a("v_add_u32 v6, v6, v12")
    a("v_add_u32 v6, s32, v6")
    a("v_mul_u32_u24 v7, 4128, v11")
    a("v_lshlrev_b32 v13, 4, v10")
    a("v_add_u32 v7, v7, v13")
    a("v_add_u32 v7, s32, v7")
    a(f"v_add_u32 v8, {TB1}, v3")
    a(f"v_add_u32 v9, {TB2}, v12")
    TW = 112
    def tw_reads(vaddr, stride):
        for i in range(1, 16):
            a(f"ds_read_b128 v[{TW+4*i}:{TW+4*i+3}], v{vaddr} offset:{stride*i}")
    pool = P2(176, 256)
    g = FG(a, pool)
    def quads_to_c(h):
        return [((DQ[i] + 2*h, 1), (DQ[i] + 2*h + 1, 1)) for i in range(16)]
    tw_reads(8, 1024)
    a("s_waitcnt vmcnt(32)")
    def dft16_both(sgn):
        return [g.dft(quads_to_c(h), sgn) for h in range(2)]
    outs = dft16_both(-1)
    a("s_waitcnt lgkmcnt(0)")
    for k in range(16):
        for h in range(2):
            d = DQ[k] + 2*h
            if k == 0:
                g.mov(outs[h][0][0], d); g.mov(outs[h][0][1], d + 1); g.frc(outs[h][0])
            else:
                g.cmul(outs[h][k], TW + 4*k + 2*h, TW + 4*k + 2*h + 1, dst=d)
        a(f"ds_write_b128 v5, v[{DQ[k]}:{DQ[k]+3}] offset:{1088*k}")
    for b in range(16):
        a(f"ds_read_b128 v[{DQ[b]}:{DQ[b]+3}], v6 offset:{64*b}")
    tw_reads(9, 64)
    a("s_waitcnt lgkmcnt(15)")
    outs = dft16_both(-1)
    a("s_waitcnt lgkmcnt(0)")
    for k in range(16):
        for h in range(2):
            d = DQ[k] + 2*h
            if k == 0:
                g.mov(outs[h][0][0], d); g.mov(outs[h][0][1], d + 1); g.frc(outs[h][0])
            else:
                g.cmul(outs[h][k], TW + 4*k + 2*h, TW + 4*k + 2*h + 1, dst=d)
        a(f"ds_write_b128 v7, v[{DQ[k]}:{DQ[k]+3}] offset:{256*k}")
    for m in range(4):
        for cp in range(4):
            q = DQ[4*m + cp]
            a(f"ds_read_b128 v[{q}:{q+3}], v5 offset:{4128*cp + 1024*m}")
    a("s_waitcnt vmcnt(0) lgkmcnt(0)")
    if W2PF_FFT:
        a("s_load_dwordx2 s[88:89], s[0:1], 48")
        a("s_and_b32 s48, s2, 7")
        a("s_lshr_b32 s49, s48, 1")
        a("s_mul_i32 s49, s49, 1152")
        a("s_and_b32 s48, s48, 1")
        a("s_lshl_b32 s48, s48, 11")
        a("s_sub_u32 s50, s2, 216")
        a("s_lshr_b32 s50, s50, 3")
        a("s_lshl_b32 s50, s50, 3")
        a("s_add_u32 s50, s50, s33")
        a("s_lshl_b32 s50, s50, 5")
        a("s_add_u32 s49, s49, s50")
        a("v_lshrrev_b32 v10, 4, v2")
        a("v_add_u32 v10, s49, v10")
        a("v_lshlrev_b32 v10, 12, v10")
        a("v_and_b32 v11, 15, v2")
        a("v_lshlrev_b32 v11, 7, v11")
        a("v_add_u32 v10, v10, v11")
        a("v_add_u32 v10, s48, v10")
        a("s_waitcnt lgkmcnt(0)")
        srd(a, 92, 88, 0, S * F * 2)
        a("s_cmp_ge_u32 s50, 1152")
        a("s_cbranch_scc1 L_cf_nopf")
        for i in range(8):
            a(f"s_mov_b32 s51, {i*4*4096}")
            a(f"buffer_load_dword v13, v10, s[92:95], s51 offen")
        a.label("L_cf_nopf")
    for m in range(4):
        xs = []
        for c in range(8):
            q = DQ[4*m + (c >> 1)] + 2*(c & 1)
            xs.append(((q, 1), (q + 1, 1)))
        X = g.dft(xs, -1)
        Y = []
        for kc in range(8):
            w = WR + 8*m + kc
            wr = pool.alloc(); wi = pool.alloc()
            a(f"v_lshlrev_b32 v{wr}, 16, v{w}")
            a(f"v_and_b32 v{wi}, 0xffff0000, v{w}")
            Y.append(g.cmul(X[kc], wr, wi))
            pool.release(wr); pool.release(wi)
        dsts = [DQ[4*m + (c >> 1)] + 2*(c & 1) for c in range(8)]
        g.dft(Y, 1, dsts)
        for cp in range(4):
            q = DQ[4*m + cp]
            a(f"ds_write_b128 v5, v[{q}:{q+3}] offset:{4128*cp + 1024*m}")
    for kb in range(16):
        a(f"ds_read_b128 v[{DQ[kb]}:{DQ[kb]+3}], v7 offset:{256*kb}")
    a("s_waitcnt lgkmcnt(0)")
    def twiddle_in(conj):
        res = [[], []]
        for k in range(16):
            for h in range(2):
                q = DQ[k] + 2*h
                x = ((q, 1), (q + 1, 1))
                if k == 0: res[h].append(x)
                else: res[h].append(g.cmul(x, TW + 4*k + 2*h, TW + 4*k + 2*h + 1, conj=conj))
        return res
    xin = twiddle_in(True)
    tw_reads(8, 1024)
    for h in range(2):
        g.dft(xin[h], 1, [DQ[b] + 2*h for b in range(16)])
    for b in range(16):
        a(f"ds_write_b128 v6, v[{DQ[b]}:{DQ[b]+3}] offset:{64*b}")
    for ka in range(16):
        a(f"ds_read_b128 v[{DQ[ka]}:{DQ[ka]+3}], v5 offset:{1088*ka}")
    a("s_waitcnt lgkmcnt(0)")
    xin = twiddle_in(True)
    for h in range(2):
        g.dft(xin[h], 1, [DQ[aa] + 2*h for aa in range(16)])
    a("v_lshrrev_b32 v15, 3, v2")
    a(f"v_mul_u32_u24 v15, {ZBLK}, v15")
    a("v_and_b32 v13, 7, v2")
    a("v_lshlrev_b32 v13, 4, v13")
    a("v_add_u32 v15, v15, v13")
    a("s_lshl_b32 s38, s28, 7")
    for aa in range(16):
        a(f"s_add_u32 s31, s38, {8*ZBLK*aa}")
        a(f"buffer_store_dwordx4 v[{DQ[aa]}:{DQ[aa]+3}], v15, s[20:23], s31 offen sc0 sc1")
    a("s_branch L_phB_done")

def rstamp(a, i):
    if "stamp" in DBG:
        a(f"s_memrealtime s[{60+2*i}:{61+2*i}]")

def phase_c2(a):
    R = 4; NS = 18; SZ = 34816
    a("s_and_b32 s28, s2, 7")
    a("s_lshr_b32 s29, s2, 3")
    a("s_lshr_b32 s30, s28, 1")
    a("s_and_b32 s31, s28, 1")
    a("s_lshl_b32 s31, s31, 3")
    a("s_lshr_b32 s32, s29, 2")
    a("s_add_u32 s31, s31, s32")
    a("s_and_b32 s32, s29, 3")
    a("s_and_b32 s34, s33, 3")
    a("s_lshr_b32 s35, s33, 2")
    a("v_lshrrev_b32 v3, 4, v2")
    a("v_and_b32 v4, 15, v2")
    a("v_lshrrev_b32 v5, 2, v4")
    a("v_and_b32 v6, 3, v4")
    srd(a, 12, 4, 0, S * F * 2)
    srd(a, 16, 8, U_OFF, U_SZ)
    srd(a, 20, 8, PART_OFF, PART_SZ)
    a("s_cmp_eq_u32 s35, 0")
    a("s_cbranch_scc1 L_g2_compute")
    a("s_mul_i32 s38, s30, 1152")
    a("s_lshl_b32 s39, s34, 4")
    a("s_add_u32 s38, s38, s39")
    a("v_add_u32 v9, s38, v3")
    a("v_lshlrev_b32 v9, 12, v9")
    a("s_lshl_b32 s39, s31, 8")
    a("v_add_u32 v9, s39, v9")
    a("v_lshlrev_b32 v10, 1, v3")
    a("v_xor_b32 v11, v10, v4")
    a("v_lshlrev_b32 v11, 4, v11")
    a("v_add_u32 v20, v9, v11")
    a("v_xor_b32 v11, 8, v10")
    a("v_xor_b32 v11, v11, v4")
    a("v_lshlrev_b32 v11, 4, v11")
    a("v_add_u32 v21, v9, v11")
    a("s_lshl_b32 s43, s34, 12")
    a("s_mov_b32 s42, 0")
    a("s_mov_b32 s47, 0")
    if KROT3:
        a("s_mul_i32 s38, s32, 9")
        a("s_lshr_b32 s38, s38, 1")
        a(f"s_mul_i32 s42, s38, {64*4096}")
        a(f"s_mul_i32 s47, s38, {8*9216}")
    a("s_cmp_lt_u32 s34, 2")
    a("s_cbranch_scc1 L_g2_v1")
    a("s_branch L_g2_v2")
    for var in (1, 2):
        a.label(f"L_g2_v{var}")
        n = 5 if var == 1 else 4
        for i in range(n):
            if var == 1:
                a("s_mul_i32 s38, s34, 320")
                a(f"s_add_u32 s38, s38, {64*i}")
            else:
                a("s_lshl_b32 s38, s34, 8")
                a(f"s_add_u32 s38, s38, {640 - 512 + 64*i}")
            a("v_add_u32 v9, s38, v2")
            a("v_mul_u32_u24 v10, 3641, v9")
            a("v_lshrrev_b32 v10, 19, v10")
            a("v_mul_u32_u24 v11, 144, v10")
            a("v_sub_u32 v11, v9, v11")
            a("v_mul_u32_u24 v10, 9216, v10")
            a("v_lshlrev_b32 v11, 4, v11")
            a("v_add_u32 v10, v10, v11")
            a(f"s_mul_i32 s38, s30, {144*9216}")
            a("s_mul_i32 s39, s32, 2304")
            a("s_add_u32 s38, s38, s39")
            if i & 3:
                a(f"s_sub_u32 s38, s38, {1024*(i&3)}")
            a(f"v_add_u32 v{22+i}, s38, v10")
        if var == 1:
            a("s_mul_i32 s46, s34, 5120")
            a("s_add_u32 s46, s46, 16384")
        else:
            a("s_lshl_b32 s46, s34, 12")
            a(f"s_add_u32 s46, s46, {16384 + 10240 - 8192}")
        def dma_w(wr):
            out = [f"s_add_u32 m0, s{wr}, s43"]
            for i in range(4):
                out.append(f"s_add_u32 s44, s42, {i*(4*4096-1024)}")
                out.append(f"buffer_load_dwordx4 v{20 + (i>>1)}, s[12:15], s44 offen offset:{1024*i} lds")
            out.append(f"s_add_u32 s42, s42, {64*4096}")
            out += [f"s_cmp_eq_u32 s42, {NS*64*4096}", "s_cselect_b32 s42, 0, s42"]
            return out
        def dma_u(wr, n=n):
            out = [f"s_add_u32 m0, s{wr}, s46", "s_nop 0"]
            for i in range(n):
                if i == 4:
                    out.append("s_add_u32 m0, m0, 4096")
                    out.append("s_nop 0")
                out.append(f"buffer_load_dwordx4 v{22+i}, s[16:19], s47 offen offset:{1024*(i&3)} lds")
            out.append(f"s_add_u32 s47, s47, {8*9216}")
            out += [f"s_cmp_eq_u32 s47, {NS*8*9216}", "s_cselect_b32 s47, 0, s47"]
            return out
        def dma(wr): return dma_w(wr) + dma_u(wr)
        def mid(var=var):
            if var == 2:
                a("s_cmp_lg_u32 s33, 7")
                a("s_cbranch_scc1 L_c2_go")
                for i in range(3): a(f"v_mov_b32 v{252+i}, 0")
                a("v_cmp_le_u32 vcc, 24, v2")
                a("s_nop 1")
                a("v_cndmask_b32 v255, 0, 1, vcc")
                poll_flags(a, "u", 56, 32768, None, nld=[0, 1, 2, 3])
                a.label("L_c2_go")
            a("s_barrier")
        ring_loader(a, f"g2v{var}", R, NS, SZ, 4 + n, dma, done="L_phC_done", split=(dma_w, dma_u, 4, n, mid))
    a.label("L_g2_compute")
    VW = [100, 101]; VU = 102; VWc = [103, 104]; VUc = 105
    a("v_and_b32 v7, 1, v3")
    a("v_lshlrev_b32 v7, 2, v7")
    a("v_or_b32 v7, v7, v5")
    a("v_lshlrev_b32 v8, 3, v3")
    a("v_add_u32 v8, v8, v5")
    a("v_lshlrev_b32 v8, 8, v8")
    a("v_lshlrev_b32 v9, 3, v6")
    a("v_add_u32 v8, v8, v9")
    a("s_lshl_b32 s38, s34, 1")
    for sbk in range(2):
        a(f"s_add_u32 s39, s38, {sbk}")
        a(f"v_xor_b32 v9, s39, v7")
        a(f"v_lshlrev_b32 v9, 5, v9")
        a(f"v_add_u32 v{VW[sbk]}, v8, v9")
    a("v_mul_u32_u24 v9, 144, v3")
    a("v_add_u32 v9, v9, v4")
    a("v_lshlrev_b32 v9, 4, v9")
    a(f"v_add_u32 v{VU}, 16384, v9")
    ACC = 16
    for i in range(72):
        a(f"v_mov_b32 v{ACC+i}, 0")
    FR = [112, 156]
    def acc(dbk, sbk):
        b = ACC + (dbk * 2 + sbk) * 4
        return f"v[{b}:{b+3}]"
    def mfmas(st):
        out = []
        for dbk in range(9):
            for sbk in range(2):
                w = FR[st] + 4 * sbk; u = FR[st] + 8 + 4 * dbk
                out.append(f"v_mfma_f32_16x16x32_bf16 {acc(dbk,sbk)}, v[{u}:{u+3}], v[{w}:{w+3}], {acc(dbk,sbk)}")
        return out
    def reads(st, sub):
        out = []
        for sbk in range(2):
            w = FR[st] + 4 * sbk
            out.append(f"ds_read_b64_tr_b16 v[{w}:{w+1}], v{VWc[sbk]} offset:{sub*8192}")
            out.append(f"ds_read_b64_tr_b16 v[{w+2}:{w+3}], v{VWc[sbk]} offset:{sub*8192+1024}")
        for dbk in range(9):
            u = FR[st] + 8 + 4 * dbk
            out.append(f"ds_read_b128 v[{u}:{u+3}], v{VUc} offset:{sub*9216+256*dbk}")
        return out
    def addr_upd(sreg):
        out = [f"v_add_u32 v{VWc[k]}, s{sreg}, v{VW[k]}" for k in range(2)]
        out.append(f"v_add_u32 v{VUc}, s{sreg}, v{VU}")
        return out
    ring_compute(a, "g2", R, NS, SZ, mfmas, reads, addr_upd, mid=True)
    a("s_lshl_b32 s38, s30, 11")
    a("s_lshl_b32 s39, s31, 7")
    a("s_add_u32 s38, s38, s39")
    a("s_lshl_b32 s39, s34, 5")
    a("s_add_u32 s38, s38, s39")
    a("v_add_u32 v12, s38, v4")
    a("s_mov_b32 s39, 2304")
    a("v_mul_lo_u32 v12, v12, s39")
    a("s_mul_i32 s38, s32, 576")
    a("v_add_u32 v12, s38, v12")
    a("v_lshlrev_b32 v13, 4, v3")
    a("v_add_u32 v12, v12, v13")
    a(f"s_mov_b32 s39, {16*2304}")
    a("s_nop 3")
    for dbk in range(9):
        for sbk in range(2):
            b = ACC + (dbk * 2 + sbk) * 4
            so = "s39" if sbk else "0"
            a(f"buffer_store_dwordx4 v[{b}:{b+3}], v12, s[20:23], {so} offen offset:{64*dbk} sc0 sc1")

def phase_d(a):
    RA = 0; RB = 20736; RY = 41472; QS = 5184; QS3 = 4672
    a("s_mov_b32 s40, s33")
    a("s_load_dwordx2 s[4:5], s[0:1], 0")
    a("s_load_dwordx2 s[6:7], s[0:1], 56")
    a("s_load_dwordx2 s[10:11], s[0:1], 64")
    srd(a, 36, 8, ZT_OFF, ZT_SZ)
    srd(a, 20, 8, PART_OFF, PART_SZ)
    a("v_mul_u32_u24 v3, 911, v0")
    a("v_lshrrev_b32 v3, 16, v3")
    a("v_mul_u32_u24 v4, 72, v3")
    a("v_sub_u32 v4, v0, v4")
    a("v_lshrrev_b32 v5, 3, v4")
    a("v_and_b32 v6, 7, v4")
    a(f"v_mul_u32_u24 v7, {QS}, v3")
    a("v_mul_u32_u24 v8, 576, v5")
    a("v_add_u32 v7, v7, v8")
    a("s_cmp_lg_u32 s33, 7")
    a("s_cbranch_scc1 L_d_go")
    a("v_add_u32 v255, 192, v2")
    a("v_subrev_u32 v255, 216, v255")
    a("v_cmp_lt_u32 vcc, 36, v255")
    a("s_nop 1")
    a("v_cndmask_b32 v255, 0, 1, vcc")
    poll_flags(a, "z", 56, 32768, None, nld=[3])
    a.label("L_d_go")
    a("s_barrier")
    a("s_lshr_b32 s42, s2, 1")
    a(f"s_mul_i32 s42, s42, {ZBLK}")
    a("s_and_b32 s43, s2, 1")
    a("s_lshl_b32 s43, s43, 6")
    a("s_add_u32 s42, s42, s43")
    for rnd in range(3):
        a(f"v_add_u32 v10, {512*rnd}, v0")
        a("v_lshrrev_b32 v11, 2, v10")
        a("v_lshlrev_b32 v11, 7, v11")
        a("v_and_b32 v12, 3, v10")
        a("v_lshlrev_b32 v12, 4, v12")
        a("v_add_u32 v13, v11, v12")
        a(f"buffer_load_dwordx4 v[{100+4*rnd}:{103+4*rnd}], v13, s[36:39], s42 offen")
    a("v_cvt_f32_u32 v60, v6")
    for c in range(1, 8):
        a(f"v_mul_f32 v61, {fl(c/64.0)}, v60")
        a(f"v_cos_f32 v{80+2*c}, v61")
        a(f"v_sin_f32 v{81+2*c}, v61")
    a("s_waitcnt vmcnt(0) lgkmcnt(0)")
    srd(a, 12, 4, 0, S * D * 2)
    srd(a, 16, 6, 0, S * 2)
    srd(a, 24, 10, 0, S * D * 2)
    for rnd in range(3):
        b = 100 + 4 * rnd
        a(f"v_add_u32 v10, {512*rnd}, v0")
        if rnd == 2:
            a("v_cmp_gt_u32 vcc, 1156, v10")
            a("s_and_saveexec_b64 s[30:31], vcc")
        a("v_lshrrev_b32 v11, 2, v10")
        a("v_and_b32 v12, 3, v10")
        a(f"v_mul_u32_u24 v13, {QS3}, v12")
        a("v_cmp_eq_u32 vcc, 0, v11")
        a("v_mov_b32 v17, 288")
        a("v_cmp_eq_u32 s[28:29], v17, v11")
        a("s_or_b64 vcc, vcc, s[28:29]")
        a("v_sub_u32 v14, 576, v11")
        a("v_lshlrev_b32 v18, 3, v11")
        a("v_cndmask_b32_e64 v%d, v%d, 0, vcc" % (b+1, b+1))
        a("v_cndmask_b32_e64 v%d, v%d, 0, vcc" % (b+3, b+3))
        a("v_add_u32 v18, v18, v13")
        a("v_lshlrev_b32 v14, 3, v14")
        a("v_add_u32 v14, v14, v13")
        a(f"v_sub_f32 v20, v{b}, v{b+3}")
        a(f"v_add_f32 v21, v{b+1}, v{b+2}")
        a(f"v_add_f32 v22, v{b}, v{b+3}")
        a(f"v_sub_f32 v23, v{b+2}, v{b+1}")
        a(f"ds_write_b64 v18, v[20:21] offset:{RA}")
        a(f"ds_write_b64 v14, v[22:23] offset:{RA}")
    a("s_mov_b64 exec, s[30:31]")
    a("s_waitcnt lgkmcnt(0)")
    a("s_barrier")
    rstamp(a, 5)
    a("s_cmp_ge_u32 s33, 5")
    a("s_cbranch_scc1 L_d_red")
    a("v_cmp_gt_u32 vcc, 288, v0")
    a("s_and_saveexec_b64 s[30:31], vcc")
    a(f"v_mul_u32_u24 v22, {QS3}, v3")
    a("v_mul_u32_u24 v23, 9, v6")
    a("v_add_u32 v23, v23, v5")
    a("v_lshlrev_b32 v23, 3, v23")
    a("v_add_u32 v22, v22, v23")
    for e in range(8):
        a(f"ds_read_b64 v[{30+2*e}:{31+2*e}], v22 offset:{RA + 576*e}")
    a("v_lshlrev_b32 v20, 3, v6")
    a("v_add_u32 v20, v7, v20")
    a("v_mul_u32_u24 v21, 72, v6")
    a("v_add_u32 v21, v7, v21")
    a("s_waitcnt lgkmcnt(0)")
    pool = P2(200, 244); g = FG(a, pool)
    ys = g.dft([((30+2*b, 1), (31+2*b, 1)) for b in range(8)], 1)
    for aa in range(8):
        d = 60 + 2 * aa
        if aa == 0:
            g.mov(ys[0][0], d); g.mov(ys[0][1], d + 1); g.frc(ys[0])
        else:
            g.cmul(ys[aa], 80 + 2*aa, 81 + 2*aa, dst=d)
    for aa in range(8):
        d = 60 + 2 * aa
        a(f"ds_write_b64 v20, v[{d}:{d+1}] offset:{RB + 72*aa}")
    a("s_waitcnt lgkmcnt(0)")
    a("s_barrier")
    for c in range(8):
        a(f"ds_read_b64 v[{30+2*c}:{31+2*c}], v21 offset:{RB + 8*c}")
    a("s_waitcnt lgkmcnt(0)")
    pool = P2(200, 244); g = FG(a, pool)
    g.dft([((30+2*b, 1), (31+2*b, 1)) for b in range(8)], 1, [60 + 2*b for b in range(8)])
    for b in range(8):
        d = 60 + 2 * b
        a(f"ds_write_b64 v20, v[{d}:{d+1}] offset:{RA + 64*b}")
    a("s_mov_b64 exec, s[30:31]")
    a("v_cvt_f32_u32 v60, v2")
    for k1 in range(1, 9):
        a(f"v_mul_f32 v61, {fl(k1/576.0)}, v60")
        a(f"v_cos_f32 v{80+2*k1}, v61")
        a(f"v_sin_f32 v{81+2*k1}, v61")
    a("s_waitcnt lgkmcnt(0)")
    a("s_barrier")
    a("s_cmp_ge_u32 s40, 4")
    a("s_cbranch_scc1 L_d_skip1")
    a(f"s_mul_i32 s43, s40, {QS}")
    a("v_lshlrev_b32 v10, 3, v2")
    a("v_add_u32 v10, s43, v10")
    for k1 in range(9):
        a(f"ds_read_b64 v[{30+2*k1}:{31+2*k1}], v10 offset:{RA + 576*k1}")
    a("s_waitcnt lgkmcnt(0)")
    pool = P2(200, 244); g = FG(a, pool)
    xs = []
    for k1 in range(9):
        x = ((30+2*k1, 1), (31+2*k1, 1))
        xs.append(x if k1 == 0 else g.cmul(x, 80 + 2*k1, 81 + 2*k1))
    g.dft(xs, 1, [60 + 2*n for n in range(9)])
    sc = fl(1.0 / (2.0 * 2048 * 576))
    for n in range(9):
        a(f"v_mul_f32 v{60+2*n}, {sc}, v{60+2*n}")
        a(f"v_mul_f32 v{61+2*n}, {sc}, v{61+2*n}")
        round_bf16_pair(a, 60 + 2*n, 61 + 2*n, 17 + (n & 1))
    a("s_mul_i32 s43, s40, 4608")
    a("v_lshlrev_b32 v10, 2, v2")
    a("v_add_u32 v10, s43, v10")
    for n in range(9):
        a(f"ds_write_b32 v10, v{60+2*n} offset:{RB + 256*n}")
        a(f"ds_write_b32 v10, v{61+2*n} offset:{RB + 2304 + 256*n}")
    a.label("L_d_skip1")
    a("s_waitcnt lgkmcnt(0)")
    a("s_barrier")
    a("s_branch L_k2_end")
    a.label("L_d_red")
    a("s_cmp_lg_u32 s33, 7")
    a("s_cbranch_scc1 L_d_red2")
    a("s_lshl_b32 s51, s2, 7")
    a("s_add_u32 s51, s51, 65536")
    a("v_mov_b32 v244, 1")
    a("v_mov_b32 v245, 0")
    a("s_mov_b64 s[30:31], exec")
    a("s_mov_b64 exec, 1")
    a("buffer_store_dword v244, v245, s[56:59], s51 offen sc0 sc1")
    a("s_mov_b64 exec, s[30:31]")
    a.label("L_d_red2")
    a("s_lshr_b32 s52, s2, 4")
    a("v_lshrrev_b32 v240, 2, v2")
    a("v_lshlrev_b32 v240, 1, v240")
    a("s_lshr_b32 s53, s52, 3")
    a("v_add_u32 v240, s53, v240")
    a("s_and_b32 s53, s52, 7")
    a("s_lshl_b32 s53, s53, 2")
    a("v_and_b32 v241, 3, v2")
    a("v_add_u32 v241, s53, v241")
    a("v_lshlrev_b32 v241, 3, v241")
    a("v_add_u32 v240, v240, v241")
    a("v_lshlrev_b32 v240, 7, v240")
    a("v_cmp_le_u32 vcc, 16, v2")
    a("s_nop 1")
    a("v_cndmask_b32 v242, 0, 1, vcc")
    a("v_subrev_u32 v1, 320, v0")
    a(f"s_mul_i32 s32, s2, {4608*4}")
    a(f"s_mul_i32 s34, s2, {4608*2}")
    a("v_lshlrev_b32 v15, 4, v1")
    a("v_lshlrev_b32 v9, 3, v1")
    for m in range(6):
        a(f"s_add_u32 s35, s34, {m*1536}")
        a(f"buffer_load_dwordx2 v[{20+2*m}:{21+2*m}], v9, s[12:15], s35 offen")
        a(f"v_add_u32 v10, {192*m}, v1")
        a("v_mul_u32_u24 v10, 3641, v10")
        a("v_lshrrev_b32 v10, 19, v10")
        a("v_lshlrev_b32 v10, 1, v10")
        a("s_lshl_b32 s35, s2, 4")
        a(f"buffer_load_ushort v{32+m}, v10, s[16:19], s35 offen")
    a("s_barrier")
    a("s_barrier")
    a("s_mov_b32 s50, 400000")
    a("s_mov_b32 s51, 65536")
    a.label("L_poll_d")
    a("buffer_load_dword v243, v240, s[56:59], s51 offen sc0 sc1")
    a("s_waitcnt vmcnt(0)")
    a("v_or_b32 v243, v243, v242")
    a("v_cmp_eq_u32 vcc, 0, v243")
    a("s_sub_u32 s50, s50, 1")
    a("s_cmp_eq_u32 s50, 0")
    a("s_cbranch_scc1 L_pollx_d")
    a("s_cmp_eq_u64 vcc, 0")
    a("s_cbranch_scc1 L_pollx_d")
    a("s_sleep 2")
    a("s_branch L_poll_d")
    a.label("L_pollx_d")
    PB = 100
    for m in range(6):
        for ks in range(4):
            a(f"s_add_u32 s35, s32, {ks*2048*2304 + m*3072}")
            a(f"buffer_load_dwordx4 v[{PB+16*m+4*ks}:{PB+3+16*m+4*ks}], v15, s[20:23], s35 offen")
    a("s_waitcnt vmcnt(0)")
    for m in range(6):
        b = PB + 16 * m
        for r in range(4):
            a(f"v_add_f32 v{b+r}, v{b+r}, v{b+4+r}")
            a(f"v_add_f32 v{b+8+r}, v{b+8+r}, v{b+12+r}")
            a(f"v_add_f32 v{b+r}, v{b+r}, v{b+8+r}")
        a(f"v_lshlrev_b32 v{32+m}, 16, v{32+m}")
        round_bf16_pair(a, b, b + 1, 4)
        round_bf16_pair(a, b + 2, b + 3, 5)
        for r in range(4):
            a(f"v_add_f32 v{b+r}, v{b+r}, v{32+m}")
        round_bf16_pair(a, b, b + 1, 4)
        round_bf16_pair(a, b + 2, b + 3, 5)
        a(f"v_lshlrev_b32 v{b+4}, 16, v{20+2*m}")
        a(f"v_and_b32 v{b+5}, 0xffff0000, v{20+2*m}")
        a(f"v_lshlrev_b32 v{b+6}, 16, v{21+2*m}")
        a(f"v_and_b32 v{b+7}, 0xffff0000, v{21+2*m}")
    a("s_barrier")
    for m in range(6):
        a(f"ds_read_b128 v[{40+4*m}:{43+4*m}], v15 offset:{RB + 3072*m}")
    a("s_waitcnt lgkmcnt(0)")
    rstamp(a, 6)
    for m in range(6):
        b = PB + 16 * m
        for r in range(4):
            a(f"v_add_f32 v{b+4+r}, v{b+4+r}, v{40+4*m+r}")
        round_bf16_pair(a, b + 4, b + 5, 4)
        round_bf16_pair(a, b + 6, b + 7, 5)
        for r in range(4):
            a(f"v_add_f32 v{b+r}, v{b+r}, v{b+4+r}")
        a(f"v_cvt_pk_bf16_f32 v{b+8}, v{b}, v{b+1}")
        a(f"v_cvt_pk_bf16_f32 v{b+9}, v{b+2}, v{b+3}")
        a(f"s_add_u32 s35, s34, {m*1536}")
        a(f"buffer_store_dwordx2 v[{b+8}:{b+9}], v9, s[24:27], s35 offen")

KNAME = "parallel_sum__spectral_gfnet__mixer_token_mlp__prompt_kernel"
def gen_k2(a):
    name = KNAME
    kernel_begin(a, name)
    rstamp(a, 0)
    a("s_cmp_ge_u32 s2, 256")
    a("s_cbranch_scc1 L_k2_end")
    a("s_load_dwordx2 s[8:9], s[0:1], 80")
    a("v_lshrrev_b32 v1, 6, v0")
    a("v_and_b32 v2, 63, v0")
    a("s_nop 0")
    a("v_readfirstlane_b32 s33, v1")
    a("s_waitcnt lgkmcnt(0)")
    srd(a, 56, 8, FL_OFF, FL_SZ)
    phase_a(a)
    a.label("L_phA_done")
    a("s_waitcnt vmcnt(0)")
    a.label("L_phA_done2")
    a("s_load_dwordx2 s[4:5], s[0:1], 32")
    a("s_load_dwordx2 s[6:7], s[0:1], 40")
    a("s_load_dwordx2 s[42:43], s[0:1], 72")
    set_flag(a, 56, 0, novm=True)
    rstamp(a, 1)
    a("s_cmp_lg_u32 s33, 7")
    a("s_cbranch_scc1 L_b_go")
    srd(a, 44, 42, 0, 256)
    a("v_mov_b32 v245, 0")
    a("s_mov_b32 s50, 400000")
    a.label("L_poll_z0")
    a("buffer_load_dword v244, v245, s[44:47], 0 offen sc0 sc1")
    a("s_waitcnt vmcnt(0)")
    a("v_readfirstlane_b32 s51, v244")
    a("s_sub_u32 s50, s50, 1")
    a("s_cmp_eq_u32 s50, 0")
    a("s_cbranch_scc1 L_pollx_z0")
    a("s_cmp_ge_u32 s51, 256")
    a("s_cbranch_scc1 L_pollx_z0")
    a("s_sleep 2")
    a("s_branch L_poll_z0")
    a.label("L_pollx_z0")
    for i in range(4): a(f"v_mov_b32 v{252+i}, 0")
    poll_flags(a, "a", 56, 0, None, nld=[0, 1, 2, 3])
    a.label("L_b_go")
    a("s_barrier")
    rstamp(a, 2)
    a("s_cmp_ge_u32 s2, 253")
    a("s_cbranch_scc1 L_phB_done")
    a("s_cmp_ge_u32 s2, 216")
    a("s_cbranch_scc1 L_k2_fft")
    gen_gemm1(a)
    a.label("L_k2_fft")
    gen_colfft(a)
    a.label("L_phB_done")
    a("s_waitcnt vmcnt(0)")
    a.label("L_phB_done2")
    rstamp(a, 3)
    a("s_load_dwordx2 s[4:5], s[0:1], 48")
    set_flag(a, 56, 32768, novm=True)
    phase_c2(a)
    a.label("L_phC_done")
    rstamp(a, 4)
    phase_d(a)
    rstamp(a, 7)
    if "stamp" in DBG:
        a("s_waitcnt vmcnt(0) lgkmcnt(0)")
        a("s_cmp_lg_u32 s40, 7")
        a("s_cbranch_scc1 L_k2_end")
        a("s_mov_b64 exec, 1")
        stamp_flush(a, 8, 8, 0)
    a.label("L_k2_end")
    a("s_endpgm")
    return name, 256

def main(out):
    a = Asm()
    hdr = open("parallel_sum__spectral_gfnet__mixer_token_mlp__prompt.s.ref").read().split("\n")
    for l in hdr:
        if l.startswith("; @launch"):
            break
        a.raw(l)
    a.raw("; @launch grid=(256,1,1) block=(512,1,1) lds=156672")
    a.raw('.amdgcn_target "amdgcn-amd-amdhsa--gfx950"')
    a.raw(".text")
    ks = [gen_k2(a)]
    a.raw('.section .rodata,"a"')
    for n, v in ks:
        kd(a, n, v)
    open(out, "w").write(a.text())

if __name__ == "__main__":
    for x in sys.argv[2:]: DBG.add(x)
    main(sys.argv[1] if len(sys.argv) > 1 else "parallel_sum__spectral_gfnet__mixer_token_mlp__prompt.s")
```

```python
import math, sys
from fftlib import Pool, FG

S, D, F = 2048, 576, 4608
DF = 289
HT_OFF = 0;                 HT_SZ = 256 * 576 * 16
U_OFF = 0x400000;           U_SZ = 576 * 576 * 16
PART_OFF = 0x1000000;       PART_SZ = 4 * 2048 * 576 * 4
PT_OFF = 0x3000000;         PBLK = 290 * 64; PT_SZ = 256 * PBLK
WT_OFF = 0x3800000;         WT_SZ = 289 * 2048 * 4
ZT_OFF = 0x4000000;         ZBLK = 290 * 128; ZT_SZ = 128 * ZBLK
YA_OFF = 0x4800000;         YA_SZ = 2048 * 576 * 2
FL_OFF = 0x5000000;         FL_SZ = 3 * 256 * 128

class Asm:
    def __init__(self):
        self.lines = []
        self.lab = 0
    def __call__(self, s):
        for l in s.strip("\n").split("\n"):
            self.lines.append("    " + l.strip())
    def label(self, name):
        self.lines.append(name + ":")
    def newlabel(self, p="L"):
        self.lab += 1
        return f"{p}_{self.lab}"
    def raw(self, s):
        self.lines.append(s)
    def text(self):
        return "\n".join(self.lines) + "\n"

def f32bits(x):
    import struct
    return struct.unpack("<I", struct.pack("<f", x))[0]
def fl(x):
    return "0x%08x" % f32bits(x)

def srd(a, sd, sbase, off, size):
    if off:
        a(f"s_add_u32 s{sd}, s{sbase}, {off}")
        a(f"s_addc_u32 s{sd+1}, s{sbase+1}, 0")
    else:
        a(f"s_mov_b32 s{sd}, s{sbase}")
        a(f"s_mov_b32 s{sd+1}, s{sbase+1}")
    a(f"s_mov_b32 s{sd+2}, {size}")
    a(f"s_mov_b32 s{sd+3}, 0x00020000")

def kernel_begin(a, name):
    a.raw(f".globl {name}")
    a.raw(".p2align 8")
    a.raw(f".type {name},@function")
    a.label(name)

def kd(a, name, vgpr, sgpr=102):
    acc = (vgpr + 3) // 4 * 4
    a.raw(".p2align 6")
    a.raw(f".amdhsa_kernel {name}")
    a.raw(f"  .amdhsa_next_free_vgpr {vgpr}")
    a.raw(f"  .amdhsa_next_free_sgpr {sgpr}")
    a.raw(f"  .amdhsa_accum_offset {acc}")
    a.raw("  .amdhsa_group_segment_fixed_size 0")
    a.raw("  .amdhsa_kernarg_size 88")
    a.raw("  .amdhsa_user_sgpr_count 2")
    a.raw("  .amdhsa_user_sgpr_kernarg_segment_ptr 1")
    a.raw("  .amdhsa_system_sgpr_workgroup_id_x 1")
    a.raw(".end_amdhsa_kernel")

def wave_reduce(a, vregs, sregs):
    for ctrl in ["row_shr:1", "row_shr:2", "row_shr:4", "row_shr:8"]:
        for v in vregs:
            a(f"v_add_f32_dpp v{v}, v{v}, v{v} {ctrl} row_mask:0xf bank_mask:0xf bound_ctrl:0")
        if len(vregs) < 3:
            a("s_nop 1")
    for v in vregs:
        a(f"v_add_f32_dpp v{v}, v{v}, v{v} row_bcast:15 row_mask:0xa bank_mask:0xf")
    if len(vregs) < 3:
        a("s_nop 1")
    for v in vregs:
        a(f"v_add_f32_dpp v{v}, v{v}, v{v} row_bcast:31 row_mask:0xc bank_mask:0xf")
    a("s_nop 1")
    for v, s in zip(vregs, sregs):
        a(f"v_readlane_b32 s{s}, v{v}, 63")

def round_bf16_pair(a, va, vb, vt):
    a(f"v_cvt_pk_bf16_f32 v{vt}, v{va}, v{vb}")
    a(f"v_lshlrev_b32 v{va}, 16, v{vt}")
    a(f"v_and_b32 v{vb}, 0xffff0000, v{vt}")

def layernorm_pair(a, xa, xb, oa, ob, t0, sbase):
    T = [t0 + i for i in range(12)]
    s0, s1, s2, s3 = sbase, sbase + 1, sbase + 2, sbase + 3
    a(f"v_add_f32 v{T[0]}, v{xa[0]}, v{xa[1]}")
    a(f"v_add_f32 v{T[1]}, v{xb[0]}, v{xb[1]}")
    for i in range(2, 9):
        a(f"v_add_f32 v{T[0]}, v{T[0]}, v{xa[i]}")
        a(f"v_add_f32 v{T[1]}, v{T[1]}, v{xb[i]}")
    a("s_nop 1")
    wave_reduce(a, [T[0], T[1]], [s0, s1])
    a("s_nop 1")
    c576 = fl(1.0 / 576.0)
    a(f"v_mov_b32 v{T[10]}, {c576}")
    a(f"v_mul_f32 v{T[2]}, s{s0}, v{T[10]}")
    a(f"v_mul_f32 v{T[3]}, s{s1}, v{T[10]}")
    a(f"v_sub_f32 v{T[4]}, v{xa[0]}, v{T[2]}")
    a(f"v_sub_f32 v{T[5]}, v{xb[0]}, v{T[3]}")
    a(f"v_mul_f32 v{T[0]}, v{T[4]}, v{T[4]}")
    a(f"v_mul_f32 v{T[1]}, v{T[5]}, v{T[5]}")
    for i in range(1, 9):
        a(f"v_sub_f32 v{T[4]}, v{xa[i]}, v{T[2]}")
        a(f"v_sub_f32 v{T[5]}, v{xb[i]}, v{T[3]}")
        a(f"v_fmac_f32 v{T[0]}, v{T[4]}, v{T[4]}")
        a(f"v_fmac_f32 v{T[1]}, v{T[5]}, v{T[5]}")
    a("s_nop 1")
    wave_reduce(a, [T[0], T[1]], [s2, s3])
    a("s_nop 1")
    a(f"v_mul_f32 v{T[6]}, s{s2}, v{T[10]}")
    a(f"v_mul_f32 v{T[7]}, s{s3}, v{T[10]}")
    round_bf16_pair(a, T[6], T[7], T[8])
    round_bf16_pair(a, T[2], T[3], T[9])
    eps = fl(1e-5)
    a(f"v_add_f32 v{T[6]}, {eps}, v{T[6]}")
    a(f"v_add_f32 v{T[7]}, {eps}, v{T[7]}")
    round_bf16_pair(a, T[6], T[7], T[8])
    a(f"v_sqrt_f32 v{T[6]}, v{T[6]}")
    a(f"v_sqrt_f32 v{T[7]}, v{T[7]}")
    a("s_nop 0")
    round_bf16_pair(a, T[6], T[7], T[8])
    a(f"v_rcp_f32 v{T[6]}, v{T[6]}")
    a(f"v_rcp_f32 v{T[7]}, v{T[7]}")
    for i in range(9):
        a(f"v_sub_f32 v{oa[i]}, v{xa[i]}, v{T[2]}")
        a(f"v_sub_f32 v{ob[i]}, v{xb[i]}, v{T[3]}")
        round_bf16_pair(a, oa[i], ob[i], T[8] if i % 2 == 0 else T[9])
        a(f"v_mul_f32 v{oa[i]}, v{oa[i]}, v{T[6]}")
        a(f"v_mul_f32 v{ob[i]}, v{ob[i]}, v{T[7]}")
        round_bf16_pair(a, oa[i], ob[i], T[4] if i % 2 == 0 else T[5])

K1_NWT = 64
K1_NPF = 64
import os
PFROWS = int(os.environ.get('PFROWS', '2048'))
W2PF_FFT = False
W2PF_GEMM = False
import os
K1PF = True
CODEPF = int(os.environ.get('CODEPF', '0'))
W2TAIL = int(os.environ.get('W2TAIL', '0'))
KROT = int(os.environ.get('KROT', '1'))
KROT3 = int(os.environ.get('KROT3', '1'))
PF_LEAD1 = 12
PF_LEAD2 = 10
K1_DUMMY = 0
class P2(Pool):
    def release(self, r):
        if r < self.lo or r >= self.hi: return
        Pool.release(self, r)

def phase_a(a):
    WTL = 51200
    a("s_load_dwordx2 s[4:5], s[0:1], 0")
    a("s_load_dwordx4 s[36:39], s[0:1], 8")
    a("s_load_dwordx2 s[40:41], s[0:1], 32")
    a("s_load_dwordx2 s[42:43], s[0:1], 72")
    a("s_cmp_ge_u32 s33, 5")
    a("s_cbranch_scc1 L_a_aux")
    E1 = 9216; E2 = E1 + 20736; QS = 5184; E3 = E1; QS3 = 4672
    a("v_mul_u32_u24 v3, 911, v0")
    a("v_lshrrev_b32 v3, 16, v3")
    a("v_mul_u32_u24 v4, 72, v3")
    a("v_sub_u32 v4, v0, v4")
    a("v_lshrrev_b32 v5, 3, v4")
    a("v_and_b32 v6, 7, v4")
    a(f"v_mul_u32_u24 v7, {QS}, v3")
    a("v_mul_u32_u24 v8, 576, v5")
    a("v_add_u32 v7, v7, v8")
    a("s_lshl_b32 s21, s2, 3")
    a("s_lshl_b32 s22, s33, 1")
    a("s_add_u32 s21, s21, s22")
    a("s_mul_i32 s21, s21, 1152")
    a("v_lshlrev_b32 v9, 1, v2")
    a("s_waitcnt lgkmcnt(0)")
    srd(a, 12, 4, 0, S * D * 2)
    srd(a, 16, 8, HT_OFF, HT_SZ)
    srd(a, 24, 8, PT_OFF, PT_SZ)
    a("s_cmp_ge_u32 s33, 4")
    a("s_cbranch_scc1 L_a_skipln")
    XA = list(range(10, 19)); XB = list(range(20, 29))
    for i in range(9):
        a(f"buffer_load_ushort v{XA[i]}, v9, s[12:15], s21 offen offset:{128*i}")
        a(f"buffer_load_ushort v{XB[i]}, v9, s[12:15], s21 offen offset:{1152+128*i}")
    a("v_cvt_f32_u32 v60, v2")
    for k1 in range(1, 9):
        a(f"v_mul_f32 v61, {fl(-k1/576.0)}, v60")
        a(f"v_cos_f32 v{80+2*k1}, v61")
        a(f"v_sin_f32 v{81+2*k1}, v61")
    a("s_waitcnt vmcnt(0)")
    for i in range(9):
        a(f"v_lshlrev_b32 v{XA[i]}, 16, v{XA[i]}")
        a(f"v_lshlrev_b32 v{XB[i]}, 16, v{XB[i]}")
    NA = [30 + 2*i for i in range(9)]; NB = [31 + 2*i for i in range(9)]
    layernorm_pair(a, XA, XB, NA, NB, 60, 44)
    HA = list(range(10, 19)); HB = list(range(20, 29))
    layernorm_pair(a, NA, NB, HA, HB, 60, 44)
    a("v_lshlrev_b32 v9, 4, v2")
    a("s_lshl_b32 s22, s33, 2")
    a("v_add_u32 v9, s22, v9")
    for i in range(9):
        a(f"v_cvt_pk_bf16_f32 v{50+i}, v{HA[i]}, v{HB[i]}")
    for i in range(9):
        a(f"ds_write_b32 v9, v{50+i} offset:{1024*i}")
    pool = P2(98, 128); g = FG(a, pool)
    xs = [((NA[i], 1), (NB[i], 1)) for i in range(9)]
    ys = g.dft(xs, -1)
    a(f"s_mul_i32 s22, s33, {QS}")
    a("v_lshlrev_b32 v9, 3, v2")
    a("v_add_u32 v9, s22, v9")
    for k1 in range(9):
        d = 60 + 2 * k1
        if k1 == 0:
            g.mov(ys[0][0], d); g.mov(ys[0][1], d + 1); g.frc(ys[0])
        else:
            g.cmul(ys[k1], 80 + 2*k1, 81 + 2*k1, dst=d)
    for k1 in range(9):
        d = 60 + 2 * k1
        a(f"ds_write_b64 v9, v[{d}:{d+1}] offset:{E1 + 576*k1}")
    a.label("L_a_skipln")
    a("v_cvt_f32_u32 v60, v6")
    for c in range(1, 8):
        a(f"v_mul_f32 v61, {fl(-c/64.0)}, v60")
        a(f"v_cos_f32 v{80+2*c}, v61")
        a(f"v_sin_f32 v{81+2*c}, v61")
    a("s_waitcnt lgkmcnt(0)")
    a("s_barrier")
    a("v_cmp_gt_u32 vcc, 288, v0")
    a("s_and_saveexec_b64 s[30:31], vcc")
    a("v_lshlrev_b32 v9, 4, v0")
    a("ds_read_b128 v[10:13], v9")
    a("ds_read_b128 v[14:17], v9 offset:4608")
    a("v_lshlrev_b32 v20, 3, v6")
    a("v_add_u32 v20, v7, v20")
    for b in range(8):
        a(f"ds_read_b64 v[{30+2*b}:{31+2*b}], v20 offset:{E1 + 64*b}")
    a(f"s_mul_i32 s23, s2, {576*16}")
    a("s_waitcnt lgkmcnt(8)")
    a("buffer_store_dwordx4 v[10:13], v9, s[16:19], s23 offen sc0 sc1")
    a("v_add_u32 v21, 4608, v9")
    a("buffer_store_dwordx4 v[14:17], v21, s[16:19], s23 offen sc0 sc1")
    a("s_waitcnt lgkmcnt(0)")
    pool = P2(98, 128); g = FG(a, pool)
    ys = g.dft([((30+2*b, 1), (31+2*b, 1)) for b in range(8)], -1)
    a("v_mul_u32_u24 v22, 72, v6")
    a("v_add_u32 v22, v7, v22")
    for c in range(8):
        d = 60 + 2 * c
        if c == 0:
            g.mov(ys[0][0], d); g.mov(ys[0][1], d + 1); g.frc(ys[0])
        else:
            g.cmul(ys[c], 80 + 2*c, 81 + 2*c, dst=d)
    for c in range(8):
        d = 60 + 2 * c
        a(f"ds_write_b64 v22, v[{d}:{d+1}] offset:{E2 + 8*c}")
    a("s_waitcnt lgkmcnt(0)")
    a("s_barrier")
    for aa in range(8):
        a(f"ds_read_b64 v[{30+2*aa}:{31+2*aa}], v20 offset:{E2 + 72*aa}")
    a("s_waitcnt lgkmcnt(0)")
    pool = P2(98, 128); g = FG(a, pool)
    g.dft([((30+2*b, 1), (31+2*b, 1)) for b in range(8)], -1, [60 + 2*e for e in range(8)])
    a(f"v_mul_u32_u24 v22, {QS3}, v3")
    a("v_mul_u32_u24 v23, 9, v6")
    a("v_add_u32 v23, v23, v5")
    a("v_lshlrev_b32 v23, 3, v23")
    a("v_add_u32 v22, v22, v23")
    for e in range(8):
        d = 60 + 2 * e
        a(f"ds_write_b64 v22, v[{d}:{d+1}] offset:{E3 + 576*e}")
    a("s_mov_b64 exec, s[30:31]")
    a("s_waitcnt lgkmcnt(0)")
    a("s_barrier")
    a(f"s_mul_i32 s23, s2, {PBLK}")
    for rnd in range(4):
        a(f"v_add_u32 v10, {320*rnd}, v0")
        if rnd == 3:
            a("v_cmp_gt_u32 vcc, 1156, v10")
            a("s_and_saveexec_b64 s[30:31], vcc")
            a("s_cbranch_execz L_a_unp_done")
        a("v_lshrrev_b32 v11, 2, v10")
        a("v_and_b32 v12, 3, v10")
        a(f"v_mul_u32_u24 v13, {QS3}, v12")
        a("v_sub_u32 v14, 576, v11")
        a("v_cmp_eq_u32 vcc, 0, v11")
        a("v_lshlrev_b32 v15, 3, v11")
        a("v_add_u32 v15, v15, v13")
        a("v_cndmask_b32 v14, v14, v11, vcc")
        a("v_lshlrev_b32 v14, 3, v14")
        a("v_add_u32 v14, v14, v13")
        b = 30 + 8 * rnd
        a(f"ds_read_b64 v[{b}:{b+1}], v15 offset:{E3}")
        a(f"ds_read_b64 v[{b+2}:{b+3}], v14 offset:{E3}")
        a(f"v_lshlrev_b32 v{70+rnd}, 4, v10")
        a("s_waitcnt lgkmcnt(0)")
        a(f"v_add_f32 v{b+4}, v{b}, v{b+2}")
        a(f"v_sub_f32 v{b+5}, v{b+1}, v{b+3}")
        a(f"v_add_f32 v{b+6}, v{b+1}, v{b+3}")
        a(f"v_sub_f32 v{b+7}, v{b+2}, v{b}")
        a(f"buffer_store_dwordx4 v[{b+4}:{b+7}], v{70+rnd}, s[24:27], s23 offen sc0 sc1")
    a.label("L_a_unp_done")
    a("s_mov_b64 exec, s[30:31]")
    a("s_branch L_phA_done")
    a.label("L_a_aux")
    a("v_subrev_u32 v1, 320, v0")
    a("s_waitcnt lgkmcnt(0)")
    a("s_cmp_lg_u32 s33, 7")
    a("s_cbranch_scc1 L_a_aux2")
    srd(a, 44, 42, 0, 256)
    a("s_lshl_b32 s21, s2, 7")
    a("v_mov_b32 v9, 0")
    a("v_lshlrev_b32 v10, 15, v2")
    a("buffer_store_dword v9, v10, s[56:59], s21 offen sc0 sc1")
    a("s_waitcnt vmcnt(0)")
    a("v_mov_b32 v9, 1")
    a("v_mov_b32 v10, 0")
    a("s_mov_b64 s[30:31], exec")
    a("s_mov_b64 exec, 1")
    a("buffer_atomic_add v9, v10, s[44:47], 0 offen sc1")
    a("s_mov_b64 exec, s[30:31]")
    a.label("L_a_aux2")
    a("s_cmp_lt_u32 s2, 64")
    a("s_cbranch_scc1 L_a_wt")
    if CODEPF:
        a("s_lshr_b32 s22, s2, 3")
        a("s_cmp_lg_u32 s22, 8")
        a("s_cbranch_scc1 L_a_nocode")
        a("s_getpc_b64 s[12:13]")
        a.label("L_a_pc")
        a("s_mov_b32 s14, L_k2_end-L_a_pc")
        a("s_mov_b32 s15, 0x00020000")
        a("v_lshlrev_b32 v10, 7, v1")
        for i in range(3):
            a(f"buffer_load_dword v76, v10, s[12:15], 0 offen")
            a(f"v_add_u32 v10, {192*128}, v10")
        a.label("L_a_nocode")
    srd(a, 12, 40, 0, S * F * 2)
    a("s_and_b32 s22, s2, 7")
    a("s_mul_i32 s22, s22, 1152")
    a("s_lshr_b32 s23, s2, 3")
    a("s_sub_u32 s23, s23, 8")
    a("s_mul_i32 s23, s23, 192")
    a("s_mov_b32 s24, 9216")
    nper = (PFROWS * 9 + 24 * 192 - 1) // (24 * 192)
    for i in range(nper):
        a(f"v_add_u32 v10, {i * 24 * 192}, v1")
        a("v_add_u32 v10, s23, v10")
        a("v_mul_hi_u32 v11, v10, v121") if False else None
        a("v_mul_u32_u24 v11, 7282, v10") if False else None
        a("s_mov_b32 s25, 0x1c71c71d")
        a("v_mul_hi_u32 v11, v10, s25")
        a("v_mul_u32_u24 v12, 9, v11")
        a("v_sub_u32 v12, v10, v12")
        a("v_mul_lo_u32 v11, v11, s24")
        a("v_lshlrev_b32 v12, 7, v12")
        a("v_add_u32 v11, v11, v12")
        a(f"buffer_load_dword v76, v11, s[12:15], s22 offen")
    a("s_barrier"); a("s_barrier"); a("s_barrier")
    a("s_branch L_phA_done2")
    a.label("L_a_wt")
    srd(a, 12, 36, 0, S * DF * 2)
    srd(a, 16, 38, 0, S * DF * 2)
    srd(a, 24, 8, WT_OFF, WT_SZ)
    a("s_mul_i32 s22, s2, 18496")
    a("v_lshlrev_b32 v9, 4, v1")
    for rnd in range(7):
        a(f"v_add_u32 v10, {192*16*rnd}, v9")
        if rnd == 6:
            a("v_cmp_gt_u32 vcc, 18496, v10")
            a("s_and_saveexec_b64 s[30:31], vcc")
        a(f"buffer_load_dwordx4 v[{20+8*rnd}:{23+8*rnd}], v10, s[12:15], s22 offen")
        a(f"buffer_load_dwordx4 v[{24+8*rnd}:{27+8*rnd}], v10, s[16:19], s22 offen")
    a("s_mov_b64 exec, s[30:31]")
    a("s_waitcnt vmcnt(0)")
    for rnd in range(7):
        a(f"v_add_u32 v10, {192*16*rnd}, v9")
        if rnd == 6:
            a("v_cmp_gt_u32 vcc, 18496, v10")
            a("s_and_saveexec_b64 s[30:31], vcc")
        a(f"ds_write_b128 v10, v[{20+8*rnd}:{23+8*rnd}] offset:{WTL}")
        a(f"v_add_u32 v11, {WTL + 18496}, v10")
        a(f"ds_write_b128 v11, v[{24+8*rnd}:{27+8*rnd}]")
    a("s_mov_b64 exec, s[30:31]")
    a("s_waitcnt lgkmcnt(0)")
    a("s_barrier")
    a("s_lshl_b32 s23, s2, 7")
    a("v_and_b32 v11, 7, v1")
    a("v_mul_u32_u24 v12, 2312, v11")
    a("v_lshrrev_b32 v13, 3, v1")
    a("v_lshlrev_b32 v14, 1, v13")
    a("v_add_u32 v12, v12, v14")
    a(f"v_add_u32 v12, {WTL}, v12")
    a(f"v_add_u32 v16, 18496, v12")
    a("v_lshlrev_b32 v14, 13, v13")
    a("v_lshlrev_b32 v15, 4, v11")
    a("v_add_u32 v14, v14, v15")
    def wt_round(rnd, slot):
        r0 = 20 + 12 * slot
        for k in range(4):
            a(f"ds_read_u16 v{r0+2*k}, v12 offset:{48*rnd + 578*k}")
            a(f"ds_read_u16 v{r0+2*k+1}, v16 offset:{48*rnd + 578*k}")
    def wt_store(rnd, slot):
        r0 = 20 + 12 * slot
        for k in range(4):
            a(f"v_lshl_or_b32 v{r0+8+k}, v{r0+2*k+1}, 16, v{r0+2*k}")
        a(f"s_add_u32 s36, s23, {rnd*24*8192}")
        a(f"buffer_store_dwordx4 v[{r0+8}:{r0+11}], v14, s[24:27], s36 offen sc0 sc1")
    for grp in range(3):
        rr = list(range(4 * grp, 4 * grp + 4))
        for i, rnd in enumerate(rr): wt_round(rnd, i)
        a("s_waitcnt lgkmcnt(0)")
        for i, rnd in enumerate(rr): wt_store(rnd, i)
        if grp < 2: a("s_barrier")
    a("v_cmp_gt_u32 vcc, 8, v1")
    a("s_and_saveexec_b64 s[30:31], vcc")
    a("s_cbranch_execz L_a_wt_done")
    wt_round(12, 0)
    a("s_waitcnt lgkmcnt(0)")
    wt_store(12, 0)
    a.label("L_a_wt_done")
    a("s_mov_b64 exec, s[30:31]")

DBG = set()
STAMP_OFF = 0x8000000
def stamp(a, idx):
    if "stamp" in DBG:
        a(f"s_memtime s[{60+2*idx}:{61+2*idx}]")
def stamp_flush(a, n, wsbase, slot):
    if "stamp" not in DBG: return
    a("s_waitcnt lgkmcnt(0)")
    srd(a, 56, wsbase, STAMP_OFF + slot * 0x10000, 0x10000)
    a("s_lshl_b32 s55, s2, 6")
    for i in range(n):
        a(f"v_mov_b32 v121, s{60+2*i}")
        a(f"v_mov_b32 v120, {4*i}")
        a(f"buffer_store_dword v121, v120, s[56:59], s55 offen")
def interleave(a, mf, other, per=2):
    if "nomfma" in DBG: mf = []
    if "noread" in DBG: other = []
    j = 0
    for i, m in enumerate(mf):
        a(m)
        k = min(len(other), (i + 1) * per)
        while j < k:
            a(other[j]); j += 1
    while j < len(other):
        a(other[j]); j += 1

def ring_loader(a, tag, R, NS, SZ, n, dma, pf=None, done=None, split=None):
    nst = NS - R
    lab = f"L_{tag}_ld"
    peel = 0
    if split is None:
        for st in range(R):
            a(f"s_mov_b32 s40, {st*SZ}")
            for x in dma(40): a(x)
        a(f"s_waitcnt vmcnt({(R-1)*n})")
    else:
        dma_w, dma_u, nW, nU, mid = split
        for st in range(R):
            a(f"s_mov_b32 s40, {st*SZ}")
            for x in dma_w(40): a(x)
        mid()
        for st in range(R):
            a(f"s_mov_b32 s40, {st*SZ}")
            for x in dma_u(40): a(x)
        a(f"s_waitcnt vmcnt({(R-1)*nU})")
        peel = R - 2
    a("s_barrier")
    a("s_mov_b32 s40, 0")
    def adv():
        a(f"s_add_u32 s40, s40, {SZ}")
        a(f"s_cmp_eq_u32 s40, {R*SZ}")
        a("s_cselect_b32 s40, 0, s40")
    for i in range(peel):
        a(f"s_waitcnt vmcnt({(R-2-i)*nU + i*n})")
        a("s_barrier")
        for x in dma(40): a(x)
        adv()
    a(f"s_mov_b32 s45, {nst - peel}")
    a.label(lab)
    a(f"s_waitcnt vmcnt({(R-2)*n})")
    a("s_barrier")
    for x in dma(40): a(x)
    adv()
    a("s_sub_u32 s45, s45, 1")
    a("s_cmp_lg_u32 s45, 0")
    a(f"s_cbranch_scc1 {lab}")
    for i in range(nst, NS):
        vm = max(0, NS - 1 - (i + 1)) * n
        a(f"s_waitcnt vmcnt({vm})")
        a("s_barrier")
    if done is None: a("s_endpgm")
    else: a(f"s_branch {done}")

def ring_compute(a, tag, R, NS, SZ, mfmas, reads, addr_upd, hook=None, mid=False):
    if mid: a("s_barrier")
    a("s_barrier")
    a("s_mov_b32 s41, 0")
    for x in addr_upd(41): a(x)
    for x in reads(0, 0): a(x)
    a(f"s_mov_b32 s45, {NS-1}")
    lab = f"L_{tag}_cp"
    a.label(lab)
    for h in (hook or []):
        if h.endswith(":"): a.label(h[:-1])
        else: a(h)
    a("s_waitcnt lgkmcnt(0)")
    interleave(a, mfmas(0), reads(1, 1))
    a(f"s_add_u32 s41, s41, {SZ}")
    a(f"s_cmp_eq_u32 s41, {R*SZ}")
    a("s_cselect_b32 s41, 0, s41")
    for x in addr_upd(41): a(x)
    a("s_waitcnt lgkmcnt(0)")
    a("s_barrier")
    interleave(a, mfmas(1), reads(0, 0))
    a("s_sub_u32 s45, s45, 1")
    a("s_cmp_lg_u32 s45, 0")
    a(f"s_cbranch_scc1 {lab}")
    a("s_waitcnt lgkmcnt(0)")
    interleave(a, mfmas(0), reads(1, 1))
    a("s_waitcnt lgkmcnt(0)")
    a("s_barrier")
    interleave(a, mfmas(1), [])

def poll_flags(a, tag, sfl, phase_off, vmask_gen, nld=4, vtmp=244, maxspin=400000):
    a(f"v_lshlrev_b32 v{vtmp+4}, 7, v2")
    a(f"s_mov_b32 s50, {maxspin}")
    a.label(f"L_poll_{tag}")
    for i in nld:
        a(f"s_mov_b32 s51, {phase_off + i*64*128}")
        a(f"buffer_load_dword v{vtmp+i}, v{vtmp+4}, s[{sfl}:{sfl+3}], s51 offen sc0 sc1")
    a("s_waitcnt vmcnt(0)")
    first = True
    for i in nld:
        a(f"v_or_b32 v{vtmp+i}, v{vtmp+i}, v{vtmp+8+i}")
        if not first: a(f"v_min_u32 v{vtmp+nld[0]}, v{vtmp+nld[0]}, v{vtmp+i}")
        first = False
    a(f"v_cmp_eq_u32 vcc, 0, v{vtmp+nld[0]}")
    a("s_sub_u32 s50, s50, 1")
    a("s_cmp_eq_u32 s50, 0")
    a(f"s_cbranch_scc1 L_pollx_{tag}")
    a("s_cmp_eq_u64 vcc, 0")
    a(f"s_cbranch_scc1 L_pollx_{tag}")
    a("s_sleep 2")
    a(f"s_branch L_poll_{tag}")
    a.label(f"L_pollx_{tag}")

def set_flag(a, sfl, phase_off, novm=False):
    a("s_waitcnt lgkmcnt(0)" if novm else "s_waitcnt vmcnt(0) lgkmcnt(0)")
    a("s_barrier")
    lab = a.newlabel("L_nf")
    a("s_cmp_lg_u32 s33, 0")
    a(f"s_cbranch_scc1 {lab}")
    a("s_lshl_b32 s51, s2, 7")
    a(f"s_add_u32 s51, s51, {phase_off}")
    a("v_mov_b32 v244, 1")
    a("v_mov_b32 v245, 0")
    a("s_mov_b64 s[30:31], exec")
    a("s_mov_b64 exec, 1")
    a(f"buffer_store_dword v244, v245, s[{sfl}:{sfl+3}], s51 offen sc0 sc1")
    a("s_mov_b64 exec, s[30:31]")
    a.label(lab)

def sync_a(a, tag):
    a("s_cmp_lg_u32 s33, 7")
    a(f"s_cbranch_scc1 L_b_go_{tag}")
    a("s_load_dwordx2 s[90:91], s[0:1], 72")
    a("s_waitcnt lgkmcnt(0)")
    srd(a, 92, 90, 0, 256)
    a("v_mov_b32 v245, 0")
    a("s_mov_b32 s50, 400000")
    a.label(f"L_poll_z0_{tag}")
    a("buffer_load_dword v244, v245, s[92:95], 0 offen sc0 sc1")
    a("s_waitcnt vmcnt(0)")
    a("v_readfirstlane_b32 s51, v244")
    a("s_sub_u32 s50, s50, 1")
    a("s_cmp_eq_u32 s50, 0")
    a(f"s_cbranch_scc1 L_pollx_z0_{tag}")
    a("s_cmp_ge_u32 s51, 256")
    a(f"s_cbranch_scc1 L_pollx_z0_{tag}")
    a("s_sleep 2")
    a(f"s_branch L_poll_z0_{tag}")
    a.label(f"L_pollx_z0_{tag}")
    for i in range(4): a(f"v_mov_b32 v{252+i}, 0")
    poll_flags(a, f"a_{tag}", 56, 0, None, nld=[0, 1, 2, 3])
    a.label(f"L_b_go_{tag}")
    a("s_barrier")

def gen_gemm1(a):
    R = 5; NS = 32; SZ = 28672
    srd(a, 12, 4, 0, S * F * 2)
    srd(a, 16, 8, HT_OFF, HT_SZ)
    srd(a, 20, 8, U_OFF, U_SZ)
    srd(a, 24, 6, 0, F * 2)
    a("s_and_b32 s28, s2, 7")
    a("s_lshr_b32 s29, s2, 3")
    a("s_mul_i32 s28, s28, 27")
    a("s_add_u32 s28, s28, s29")
    a("s_mul_i32 s29, s28, 171")
    a("s_lshr_b32 s29, s29, 10")
    a("s_mul_i32 s30, s29, 6")
    a("s_sub_u32 s30, s28, s30")
    a("s_lshl_b32 s31, s29, 8")
    a("s_mul_i32 s32, s30, 1536")
    a("s_and_b32 s34, s33, 3")
    a("s_lshr_b32 s35, s33, 2")
    a("s_and_b32 s36, s34, 1")
    a("s_lshr_b32 s37, s34, 1")
    a("v_lshrrev_b32 v3, 4, v2")
    a("v_and_b32 v4, 15, v2")
    a("v_lshrrev_b32 v5, 2, v4")
    a("v_and_b32 v6, 3, v4")
    a("s_cmp_eq_u32 s35, 0")
    a("s_cbranch_scc1 L_g1_compute")
    a("s_lshl_b32 s38, s34, 4")
    a("v_add_u32 v9, s38, v3")
    a("s_mov_b32 s39, 9216")
    a("v_mul_lo_u32 v9, v9, s39")
    a("v_add_u32 v9, s31, v9")
    a("v_lshlrev_b32 v10, 1, v3")
    a("v_xor_b32 v11, v10, v4")
    a("v_lshlrev_b32 v11, 4, v11")
    a("v_add_u32 v20, v9, v11")
    a("v_xor_b32 v11, 8, v10")
    a("v_xor_b32 v11, v11, v4")
    a("v_lshlrev_b32 v11, 4, v11")
    a("v_add_u32 v21, v9, v11")
    for i in range(3):
        a("s_mul_i32 s38, s34, 192")
        a(f"s_add_u32 s38, s38, {64*i}")
        a("v_add_u32 v9, s38, v2")
        a("v_mul_u32_u24 v10, 683, v9")
        a("v_lshrrev_b32 v10, 16, v10")
        a("v_mul_u32_u24 v11, 96, v10")
        a("v_sub_u32 v11, v9, v11")
        a("v_mul_u32_u24 v10, 9216, v10")
        a("v_lshlrev_b32 v11, 4, v11")
        a("v_add_u32 v10, v10, v11")
        a(f"s_sub_u32 s38, s32, {1024*i}") if i else a("s_mov_b32 s38, s32")
        a(f"v_add_u32 v{22+i}, s38, v10")
    a("s_lshl_b32 s43, s34, 12")
    a("s_mul_i32 s46, s34, 3072")
    a("s_add_u32 s46, s46, 16384")
    a("s_mov_b32 s47, 0")
    a("s_mov_b32 s42, 0")
    if KROT:
        a("s_lshl_b32 s38, s30, 5")
        a("s_mul_i32 s38, s38, 171")
        a("s_lshr_b32 s38, s38, 10")
        a(f"s_mul_i32 s42, s38, {64*9216}")
        a(f"s_mul_i32 s47, s38, {8*9216}")
    def dma_w(wr):
        out = [f"s_add_u32 m0, s{wr}, s43"]
        for i in range(4):
            out.append(f"s_add_u32 s44, s42, {i*(4*9216-1024)}")
            out.append(f"buffer_load_dwordx4 v{20 + (i>>1)}, s[12:15], s44 offen offset:{1024*i} lds")
        out.append(f"s_add_u32 s42, s42, {64*9216}")
        out += [f"s_cmp_eq_u32 s42, {NS*64*9216}", "s_cselect_b32 s42, 0, s42"]
        return out
    def dma_h(wr):
        out = [f"s_add_u32 m0, s{wr}, s46", "s_nop 0"]
        for i in range(3):
            out.append(f"buffer_load_dwordx4 v{22+i}, s[16:19], s47 offen offset:{1024*i} lds")
        out.append(f"s_add_u32 s47, s47, {8*9216}")
        out += [f"s_cmp_eq_u32 s47, {NS*8*9216}", "s_cselect_b32 s47, 0, s47"]
        return out
    def dma(wr): return dma_w(wr) + dma_h(wr)
    def mid():
        sync_a(a, "g1")
    ring_loader(a, "g1", R, NS, SZ, 7, dma, done="L_g1_epi_ld", split=(dma_w, dma_h, 4, 3, mid))
    a.label("L_g1_compute")
    hook = None
    VW = [100, 101, 102, 103]; VH = 104
    VWc = [105, 106, 107, 108]; VHc = 109
    a("v_and_b32 v7, 1, v3")
    a("v_lshlrev_b32 v7, 2, v7")
    a("v_or_b32 v7, v7, v5")
    a("v_lshlrev_b32 v8, 3, v3")
    a("v_add_u32 v8, v8, v5")
    a("v_lshlrev_b32 v8, 8, v8")
    a("v_lshlrev_b32 v9, 3, v6")
    a("v_add_u32 v8, v8, v9")
    a("s_lshl_b32 s38, s36, 2")
    for fbk in range(4):
        a(f"s_add_u32 s39, s38, {fbk}")
        a(f"v_xor_b32 v9, s39, v7")
        a(f"v_lshlrev_b32 v9, 5, v9")
        a(f"v_add_u32 v{VW[fbk]}, v8, v9")
    a("v_mul_u32_u24 v9, 96, v3")
    a("s_mul_i32 s38, s37, 48")
    a("v_add_u32 v9, s38, v9")
    a("v_add_u32 v9, v9, v4")
    a("v_lshlrev_b32 v9, 4, v9")
    a(f"v_add_u32 v{VH}, 16384, v9")
    ACC = 16
    for i in range(48):
        a(f"v_mov_b32 v{ACC+i}, 0")
    FR = [112, 140]
    def acc(fbk, dbk):
        b = ACC + (fbk * 3 + dbk) * 4
        return f"v[{b}:{b+3}]"
    def mfmas(st):
        out = []
        for dbk in range(3):
            for fbk in range(4):
                w = FR[st] + 4 * fbk; h = FR[st] + 16 + 4 * dbk
                out.append(f"v_mfma_f32_16x16x32_bf16 {acc(fbk,dbk)}, v[{w}:{w+3}], v[{h}:{h+3}], {acc(fbk,dbk)}")
        return out
    def reads(st, sub):
        out = []
        for fbk in range(4):
            w = FR[st] + 4 * fbk
            out.append(f"ds_read_b64_tr_b16 v[{w}:{w+1}], v{VWc[fbk]} offset:{sub*8192}")
            out.append(f"ds_read_b64_tr_b16 v[{w+2}:{w+3}], v{VWc[fbk]} offset:{sub*8192+1024}")
        for dbk in range(3):
            h = FR[st] + 16 + 4 * dbk
            out.append(f"ds_read_b128 v[{h}:{h+3}], v{VHc} offset:{sub*6144+256*dbk}")
        return out
    def addr_upd(sreg):
        out = [f"v_add_u32 v{VWc[k]}, s{sreg}, v{VW[k]}" for k in range(4)]
        out.append(f"v_add_u32 v{VHc}, s{sreg}, v{VH}")
        return out
    ring_compute(a, "g1", R, NS, SZ, mfmas, reads, addr_upd, hook, mid=True)
    a("v_lshlrev_b32 v9, 4, v2")
    a("s_mul_i32 s38, s34, 6144")
    a("v_add_u32 v10, s38, v9")
    a("s_nop 4")
    for j in range(6):
        b = ACC + (6 + j) * 4
        a(f"ds_write_b128 v10, v[{b}:{b+3}] offset:{1024*j}")
    a("s_branch L_g1_epi")
    a.label("L_g1_epi_ld")
    a("v_lshlrev_b32 v9, 4, v2")
    a("s_mul_i32 s38, s34, 6144")
    a("v_add_u32 v10, s38, v9")
    a.label("L_g1_epi")
    a("s_lshl_b32 s38, s36, 7")
    a("s_add_u32 s38, s38, s31")
    a("s_lshl_b32 s39, s35, 6")
    a("s_add_u32 s38, s38, s39")
    a("v_lshlrev_b32 v12, 3, v3")
    for k in range(2):
        a(f"buffer_load_dwordx2 v[{64+2*k}:{65+2*k}], v12, s[24:27], s38 offen offset:{32*k}")
    k0 = -2.0 * math.log2(math.e) * math.sqrt(2.0 / math.pi)
    k1 = k0 * 0.044715
    a(f"s_mov_b32 s46, {fl(k0)}")
    a(f"s_mov_b32 s47, {fl(k1)}")
    a("v_mov_b32 v102, s46")
    a("s_lshl_b32 s38, s29, 4")
    a("s_lshl_b32 s39, s36, 3")
    a("s_add_u32 s38, s38, s39")
    a("s_lshl_b32 s39, s35, 2")
    a("s_add_u32 s38, s38, s39")
    a("v_lshrrev_b32 v12, 1, v3")
    a("v_add_u32 v12, s38, v12")
    a("v_mul_u32_u24 v12, 576, v12")
    a("s_mul_i32 s38, s37, 48")
    a("v_add_u32 v12, s38, v12")
    a("v_add_u32 v12, v12, v4")
    a("v_lshlrev_b32 v12, 4, v12")
    a("v_add_u32 v12, s32, v12")
    a("v_and_b32 v13, 1, v3")
    a("v_lshlrev_b32 v13, 3, v13")
    a("v_add_u32 v12, v12, v13")
    a("s_waitcnt lgkmcnt(0)")
    a("s_barrier")
    a("s_cmp_eq_u32 s35, 0")
    a("s_cbranch_scc1 L_g1_epi2")
    for j in range(6):
        b = ACC + j * 4
        a(f"ds_read_b128 v[{b}:{b+3}], v10 offset:{1024*j}")
    a.label("L_g1_epi2")
    a("s_waitcnt vmcnt(0) lgkmcnt(0)")
    for k in range(2):
        a(f"v_lshlrev_b32 v{80+4*k}, 16, v{64+2*k}")
        a(f"v_and_b32 v{81+4*k}, 0xffff0000, v{64+2*k}")
        a(f"v_lshlrev_b32 v{82+4*k}, 16, v{65+2*k}")
        a(f"v_and_b32 v{83+4*k}, 0xffff0000, v{65+2*k}")
    cnt = 0
    for k in range(2):
        for dbk in range(3):
            b = ACC + (k * 3 + dbk) * 4
            for r in (0, 2):
                round_bf16_pair(a, b + r, b + r + 1, 64)
                a(f"v_add_f32 v{b+r}, v{b+r}, v{80+4*k+r}")
                a(f"v_add_f32 v{b+r+1}, v{b+r+1}, v{80+4*k+r+1}")
                round_bf16_pair(a, b + r, b + r + 1, 65)
            for r in range(4):
                t = 66 + r
                a(f"v_mul_f32 v{t}, v{b+r}, v{b+r}")
                a(f"v_fma_f32 v{t}, v{t}, s47, v102")
                a(f"v_mul_f32 v{t}, v{t}, v{b+r}")
                a(f"v_exp_f32 v{t}, v{t}")
            for r in range(4):
                t = 66 + r
                a(f"v_add_f32 v{t}, 1.0, v{t}")
                a(f"v_rcp_f32 v{t}, v{t}")
            a("s_nop 0")
            for r in range(4):
                t = 66 + r
                a(f"v_mul_f32 v{t}, v{t}, v{b+r}")
            o = 70 + 2 * (cnt % 4); cnt += 1
            a(f"v_cvt_pk_bf16_f32 v{o}, v66, v67")
            a(f"v_cvt_pk_bf16_f32 v{o+1}, v68, v69")
            a(f"s_mov_b32 s38, {k*18432}")
            a(f"buffer_store_dwordx2 v[{o}:{o+1}], v12, s[20:23], s38 offen offset:{256*dbk} sc0 sc1")
    if not W2TAIL:
        a("s_branch L_phB_done")
    a("s_load_dwordx2 s[88:89], s[0:1], 48")
    a("s_and_b32 s48, s2, 7")
    a("s_lshr_b32 s49, s48, 1")
    a("s_mul_i32 s49, s49, 1152")
    a("s_and_b32 s48, s48, 1")
    a("s_lshl_b32 s48, s48, 11")
    a("s_lshr_b32 s50, s2, 3")
    a("s_lshl_b32 s50, s50, 3")
    a("s_add_u32 s50, s50, s33")
    a("s_lshl_b32 s51, s50, 2")
    a("s_add_u32 s49, s49, s51")
    a("v_add_u32 v30, s49, v3")
    a("v_lshlrev_b32 v30, 12, v30")
    a("v_lshlrev_b32 v31, 7, v4")
    a("v_add_u32 v30, v30, v31")
    a("v_add_u32 v30, s48, v30")
    a("s_waitcnt lgkmcnt(0)")
    srd(a, 92, 88, 0, S * F * 2)
    a("buffer_load_dword v110, v30, s[92:95], 0 offen")
    a("s_mov_b32 s52, 0x7f000000")
    a("s_cmp_lt_u32 s50, 72")
    a(f"s_cselect_b32 s51, {864*4096}, s52")
    a("buffer_load_dword v110, v30, s[92:95], s51 offen")
    a("s_waitcnt vmcnt(2)")
    a("s_branch L_phB_done2")

TB1 = 139264; TB2 = TB1 + 16384
def gen_colfft(a):
    srd(a, 12, 8, PT_OFF, PT_SZ)
    srd(a, 16, 8, WT_OFF, WT_SZ)
    srd(a, 20, 8, ZT_OFF, ZT_SZ)
    a("s_sub_u32 s28, s2, 216")
    a("s_lshl_b32 s28, s28, 3")
    a("s_add_u32 s28, s28, s33")
    a("s_lshl_b32 s29, s28, 6")
    a("v_lshrrev_b32 v14, 2, v2")
    a(f"v_mul_u32_u24 v14, {PBLK}, v14")
    a("v_and_b32 v15, 3, v2")
    a("v_lshlrev_b32 v15, 4, v15")
    a("v_add_u32 v14, v14, v15")
    a("s_lshl_b32 s30, s28, 13")
    a("v_lshlrev_b32 v3, 4, v2")
    a("v_lshlrev_b32 v4, 2, v2")
    DQ = [16 + 4*i for i in range(16)]
    for aa in range(16):
        a(f"s_add_u32 s31, s29, {16*PBLK*aa}")
        a(f"buffer_load_dwordx4 v[{DQ[aa]}:{DQ[aa]+3}], v14, s[12:15], s31 offen")
    WR = 80
    for m in range(4):
        for kc in range(8):
            a(f"buffer_load_dword v{WR + 8*m + kc}, v4, s[16:19], s30 offen offset:{256*m + 1024*kc}") if 256*m + 1024*kc < 4096 else None
            if 256*m + 1024*kc >= 4096:
                a(f"s_add_u32 s31, s30, {1024*kc}")
                a(f"buffer_load_dword v{WR + 8*m + kc}, v4, s[16:19], s31 offen offset:{256*m}")
    for i in range(4):
        a(f"v_add_u32 v5, {512*i}, v0")
        a("v_lshrrev_b32 v6, 7, v5")
        a("v_and_b32 v7, 127, v5")
        a("v_mul_u32_u24 v6, v6, v7")
        a("v_cvt_f32_u32 v6, v6")
        a(f"v_mul_f32 v6, {fl(-1.0/2048)}, v6")
        a("v_cos_f32 v8, v6")
        a("v_sin_f32 v9, v6")
        a("v_lshlrev_b32 v5, 3, v5")
        a(f"v_add_u32 v5, {TB1}, v5")
        a("ds_write_b64 v5, v[8:9]")
    a("v_cmp_gt_u32 vcc, 128, v0")
    a("s_and_saveexec_b64 s[34:35], vcc")
    a("v_lshrrev_b32 v6, 3, v0")
    a("v_and_b32 v7, 7, v0")
    a("v_mul_u32_u24 v6, v6, v7")
    a("v_cvt_f32_u32 v6, v6")
    a(f"v_mul_f32 v6, {fl(-1.0/128)}, v6")
    a("v_cos_f32 v8, v6")
    a("v_sin_f32 v9, v6")
    a("v_lshlrev_b32 v5, 3, v0")
    a(f"v_add_u32 v5, {TB2}, v5")
    a("ds_write_b64 v5, v[8:9]")
    a("s_mov_b64 exec, s[34:35]")
    a("s_waitcnt lgkmcnt(0)")
    a("s_barrier")
    a("s_cmp_ge_u32 s28, 289")
    a("s_cbranch_scc1 L_phB_done")
    a("s_mul_i32 s32, s33, 17408")
    a("v_add_u32 v5, s32, v3")
    a("v_lshrrev_b32 v10, 2, v2")
    a("v_and_b32 v11, 3, v2")
    a("v_mul_u32_u24 v6, 1088, v10")
    a("v_lshlrev_b32 v12, 4, v11")
    a("v_add_u32 v6, v6, v12")
    a("v_add_u32 v6, s32, v6")
    a("v_mul_u32_u24 v7, 4128, v11")
    a("v_lshlrev_b32 v13, 4, v10")
    a("v_add_u32 v7, v7, v13")
    a("v_add_u32 v7, s32, v7")
    a(f"v_add_u32 v8, {TB1}, v3")
    a(f"v_add_u32 v9, {TB2}, v12")
    TW = 112
    def tw_reads(vaddr, stride):
        for i in range(1, 16):
            a(f"ds_read_b128 v[{TW+4*i}:{TW+4*i+3}], v{vaddr} offset:{stride*i}")
    pool = P2(176, 256)
    g = FG(a, pool)
    def quads_to_c(h):
        return [((DQ[i] + 2*h, 1), (DQ[i] + 2*h + 1, 1)) for i in range(16)]
    tw_reads(8, 1024)
    a("s_waitcnt vmcnt(32)")
    def dft16_both(sgn):
        return [g.dft(quads_to_c(h), sgn) for h in range(2)]
    outs = dft16_both(-1)
    a("s_waitcnt lgkmcnt(0)")
    for k in range(16):
        for h in range(2):
            d = DQ[k] + 2*h
            if k == 0:
                g.mov(outs[h][0][0], d); g.mov(outs[h][0][1], d + 1); g.frc(outs[h][0])
            else:
                g.cmul(outs[h][k], TW + 4*k + 2*h, TW + 4*k + 2*h + 1, dst=d)
        a(f"ds_write_b128 v5, v[{DQ[k]}:{DQ[k]+3}] offset:{1088*k}")
    for b in range(16):
        a(f"ds_read_b128 v[{DQ[b]}:{DQ[b]+3}], v6 offset:{64*b}")
    tw_reads(9, 64)
    a("s_waitcnt lgkmcnt(15)")
    outs = dft16_both(-1)
    a("s_waitcnt lgkmcnt(0)")
    for k in range(16):
        for h in range(2):
            d = DQ[k] + 2*h
            if k == 0:
                g.mov(outs[h][0][0], d); g.mov(outs[h][0][1], d + 1); g.frc(outs[h][0])
            else:
                g.cmul(outs[h][k], TW + 4*k + 2*h, TW + 4*k + 2*h + 1, dst=d)
        a(f"ds_write_b128 v7, v[{DQ[k]}:{DQ[k]+3}] offset:{256*k}")
    for m in range(4):
        for cp in range(4):
            q = DQ[4*m + cp]
            a(f"ds_read_b128 v[{q}:{q+3}], v5 offset:{4128*cp + 1024*m}")
    a("s_waitcnt vmcnt(0) lgkmcnt(0)")
    if W2PF_FFT:
        a("s_load_dwordx2 s[88:89], s[0:1], 48")
        a("s_and_b32 s48, s2, 7")
        a("s_lshr_b32 s49, s48, 1")
        a("s_mul_i32 s49, s49, 1152")
        a("s_and_b32 s48, s48, 1")
        a("s_lshl_b32 s48, s48, 11")
        a("s_sub_u32 s50, s2, 216")
        a("s_lshr_b32 s50, s50, 3")
        a("s_lshl_b32 s50, s50, 3")
        a("s_add_u32 s50, s50, s33")
        a("s_lshl_b32 s50, s50, 5")
        a("s_add_u32 s49, s49, s50")
        a("v_lshrrev_b32 v10, 4, v2")
        a("v_add_u32 v10, s49, v10")
        a("v_lshlrev_b32 v10, 12, v10")
        a("v_and_b32 v11, 15, v2")
        a("v_lshlrev_b32 v11, 7, v11")
        a("v_add_u32 v10, v10, v11")
        a("v_add_u32 v10, s48, v10")
        a("s_waitcnt lgkmcnt(0)")
        srd(a, 92, 88, 0, S * F * 2)
        a("s_cmp_ge_u32 s50, 1152")
        a("s_cbranch_scc1 L_cf_nopf")
        for i in range(8):
            a(f"s_mov_b32 s51, {i*4*4096}")
            a(f"buffer_load_dword v13, v10, s[92:95], s51 offen")
        a.label("L_cf_nopf")
    for m in range(4):
        xs = []
        for c in range(8):
            q = DQ[4*m + (c >> 1)] + 2*(c & 1)
            xs.append(((q, 1), (q + 1, 1)))
        X = g.dft(xs, -1)
        Y = []
        for kc in range(8):
            w = WR + 8*m + kc
            wr = pool.alloc(); wi = pool.alloc()
            a(f"v_lshlrev_b32 v{wr}, 16, v{w}")
            a(f"v_and_b32 v{wi}, 0xffff0000, v{w}")
            Y.append(g.cmul(X[kc], wr, wi))
            pool.release(wr); pool.release(wi)
        dsts = [DQ[4*m + (c >> 1)] + 2*(c & 1) for c in range(8)]
        g.dft(Y, 1, dsts)
        for cp in range(4):
            q = DQ[4*m + cp]
            a(f"ds_write_b128 v5, v[{q}:{q+3}] offset:{4128*cp + 1024*m}")
    for kb in range(16):
        a(f"ds_read_b128 v[{DQ[kb]}:{DQ[kb]+3}], v7 offset:{256*kb}")
    a("s_waitcnt lgkmcnt(0)")
    def twiddle_in(conj):
        res = [[], []]
        for k in range(16):
            for h in range(2):
                q = DQ[k] + 2*h
                x = ((q, 1), (q + 1, 1))
                if k == 0: res[h].append(x)
                else: res[h].append(g.cmul(x, TW + 4*k + 2*h, TW + 4*k + 2*h + 1, conj=conj))
        return res
    xin = twiddle_in(True)
    tw_reads(8, 1024)
    for h in range(2):
        g.dft(xin[h], 1, [DQ[b] + 2*h for b in range(16)])
    for b in range(16):
        a(f"ds_write_b128 v6, v[{DQ[b]}:{DQ[b]+3}] offset:{64*b}")
    for ka in range(16):
        a(f"ds_read_b128 v[{DQ[ka]}:{DQ[ka]+3}], v5 offset:{1088*ka}")
    a("s_waitcnt lgkmcnt(0)")
    xin = twiddle_in(True)
    for h in range(2):
        g.dft(xin[h], 1, [DQ[aa] + 2*h for aa in range(16)])
    a("v_lshrrev_b32 v15, 3, v2")
    a(f"v_mul_u32_u24 v15, {ZBLK}, v15")
    a("v_and_b32 v13, 7, v2")
    a("v_lshlrev_b32 v13, 4, v13")
    a("v_add_u32 v15, v15, v13")
    a("s_lshl_b32 s38, s28, 7")
    for aa in range(16):
        a(f"s_add_u32 s31, s38, {8*ZBLK*aa}")
        a(f"buffer_store_dwordx4 v[{DQ[aa]}:{DQ[aa]+3}], v15, s[20:23], s31 offen sc0 sc1")
    a("s_branch L_phB_done")

def rstamp(a, i):
    if "stamp" in DBG:
        a(f"s_memrealtime s[{60+2*i}:{61+2*i}]")

def phase_c2(a):
    R = 4; NS = 18; SZ = 34816
    a("s_and_b32 s28, s2, 7")
    a("s_lshr_b32 s29, s2, 3")
    a("s_lshr_b32 s30, s28, 1")
    a("s_and_b32 s31, s28, 1")
    a("s_lshl_b32 s31, s31, 3")
    a("s_lshr_b32 s32, s29, 2")
    a("s_add_u32 s31, s31, s32")
    a("s_and_b32 s32, s29, 3")
    a("s_and_b32 s34, s33, 3")
    a("s_lshr_b32 s35, s33, 2")
    a("v_lshrrev_b32 v3, 4, v2")
    a("v_and_b32 v4, 15, v2")
    a("v_lshrrev_b32 v5, 2, v4")
    a("v_and_b32 v6, 3, v4")
    srd(a, 12, 4, 0, S * F * 2)
    srd(a, 16, 8, U_OFF, U_SZ)
    srd(a, 20, 8, PART_OFF, PART_SZ)
    a("s_cmp_eq_u32 s35, 0")
    a("s_cbranch_scc1 L_g2_compute")
    a("s_mul_i32 s38, s30, 1152")
    a("s_lshl_b32 s39, s34, 4")
    a("s_add_u32 s38, s38, s39")
    a("v_add_u32 v9, s38, v3")
    a("v_lshlrev_b32 v9, 12, v9")
    a("s_lshl_b32 s39, s31, 8")
    a("v_add_u32 v9, s39, v9")
    a("v_lshlrev_b32 v10, 1, v3")
    a("v_xor_b32 v11, v10, v4")
    a("v_lshlrev_b32 v11, 4, v11")
    a("v_add_u32 v20, v9, v11")
    a("v_xor_b32 v11, 8, v10")
    a("v_xor_b32 v11, v11, v4")
    a("v_lshlrev_b32 v11, 4, v11")
    a("v_add_u32 v21, v9, v11")
    a("s_lshl_b32 s43, s34, 12")
    a("s_mov_b32 s42, 0")
    a("s_mov_b32 s47, 0")
    if KROT3:
        a("s_mul_i32 s38, s32, 9")
        a("s_lshr_b32 s38, s38, 1")
        a(f"s_mul_i32 s42, s38, {64*4096}")
        a(f"s_mul_i32 s47, s38, {8*9216}")
    a("s_cmp_lt_u32 s34, 2")
    a("s_cbranch_scc1 L_g2_v1")
    a("s_branch L_g2_v2")
    for var in (1, 2):
        a.label(f"L_g2_v{var}")
        n = 5 if var == 1 else 4
        for i in range(n):
            if var == 1:
                a("s_mul_i32 s38, s34, 320")
                a(f"s_add_u32 s38, s38, {64*i}")
            else:
                a("s_lshl_b32 s38, s34, 8")
                a(f"s_add_u32 s38, s38, {640 - 512 + 64*i}")
            a("v_add_u32 v9, s38, v2")
            a("v_mul_u32_u24 v10, 3641, v9")
            a("v_lshrrev_b32 v10, 19, v10")
            a("v_mul_u32_u24 v11, 144, v10")
            a("v_sub_u32 v11, v9, v11")
            a("v_mul_u32_u24 v10, 9216, v10")
            a("v_lshlrev_b32 v11, 4, v11")
            a("v_add_u32 v10, v10, v11")
            a(f"s_mul_i32 s38, s30, {144*9216}")
            a("s_mul_i32 s39, s32, 2304")
            a("s_add_u32 s38, s38, s39")
            if i & 3:
                a(f"s_sub_u32 s38, s38, {1024*(i&3)}")
            a(f"v_add_u32 v{22+i}, s38, v10")
        if var == 1:
            a("s_mul_i32 s46, s34, 5120")
            a("s_add_u32 s46, s46, 16384")
        else:
            a("s_lshl_b32 s46, s34, 12")
            a(f"s_add_u32 s46, s46, {16384 + 10240 - 8192}")
        def dma_w(wr):
            out = [f"s_add_u32 m0, s{wr}, s43"]
            for i in range(4):
                out.append(f"s_add_u32 s44, s42, {i*(4*4096-1024)}")
                out.append(f"buffer_load_dwordx4 v{20 + (i>>1)}, s[12:15], s44 offen offset:{1024*i} lds")
            out.append(f"s_add_u32 s42, s42, {64*4096}")
            out += [f"s_cmp_eq_u32 s42, {NS*64*4096}", "s_cselect_b32 s42, 0, s42"]
            return out
        def dma_u(wr, n=n):
            out = [f"s_add_u32 m0, s{wr}, s46", "s_nop 0"]
            for i in range(n):
                if i == 4:
                    out.append("s_add_u32 m0, m0, 4096")
                    out.append("s_nop 0")
                out.append(f"buffer_load_dwordx4 v{22+i}, s[16:19], s47 offen offset:{1024*(i&3)} lds")
            out.append(f"s_add_u32 s47, s47, {8*9216}")
            out += [f"s_cmp_eq_u32 s47, {NS*8*9216}", "s_cselect_b32 s47, 0, s47"]
            return out
        def dma(wr): return dma_w(wr) + dma_u(wr)
        def mid(var=var):
            if var == 2:
                a("s_cmp_lg_u32 s33, 7")
                a("s_cbranch_scc1 L_c2_go")
                for i in range(3): a(f"v_mov_b32 v{252+i}, 0")
                a("v_cmp_le_u32 vcc, 24, v2")
                a("s_nop 1")
                a("v_cndmask_b32 v255, 0, 1, vcc")
                poll_flags(a, "u", 56, 32768, None, nld=[0, 1, 2, 3])
                a.label("L_c2_go")
            a("s_barrier")
        ring_loader(a, f"g2v{var}", R, NS, SZ, 4 + n, dma, done="L_phC_done", split=(dma_w, dma_u, 4, n, mid))
    a.label("L_g2_compute")
    VW = [100, 101]; VU = 102; VWc = [103, 104]; VUc = 105
    a("v_and_b32 v7, 1, v3")
    a("v_lshlrev_b32 v7, 2, v7")
    a("v_or_b32 v7, v7, v5")
    a("v_lshlrev_b32 v8, 3, v3")
    a("v_add_u32 v8, v8, v5")
    a("v_lshlrev_b32 v8, 8, v8")
    a("v_lshlrev_b32 v9, 3, v6")
    a("v_add_u32 v8, v8, v9")
    a("s_lshl_b32 s38, s34, 1")
    for sbk in range(2):
        a(f"s_add_u32 s39, s38, {sbk}")
        a(f"v_xor_b32 v9, s39, v7")
        a(f"v_lshlrev_b32 v9, 5, v9")
        a(f"v_add_u32 v{VW[sbk]}, v8, v9")
    a("v_mul_u32_u24 v9, 144, v3")
    a("v_add_u32 v9, v9, v4")
    a("v_lshlrev_b32 v9, 4, v9")
    a(f"v_add_u32 v{VU}, 16384, v9")
    ACC = 16
    for i in range(72):
        a(f"v_mov_b32 v{ACC+i}, 0")
    FR = [112, 156]
    def acc(dbk, sbk):
        b = ACC + (dbk * 2 + sbk) * 4
        return f"v[{b}:{b+3}]"
    def mfmas(st):
        out = []
        for dbk in range(9):
            for sbk in range(2):
                w = FR[st] + 4 * sbk; u = FR[st] + 8 + 4 * dbk
                out.append(f"v_mfma_f32_16x16x32_bf16 {acc(dbk,sbk)}, v[{u}:{u+3}], v[{w}:{w+3}], {acc(dbk,sbk)}")
        return out
    def reads(st, sub):
        out = []
        for sbk in range(2):
            w = FR[st] + 4 * sbk
            out.append(f"ds_read_b64_tr_b16 v[{w}:{w+1}], v{VWc[sbk]} offset:{sub*8192}")
            out.append(f"ds_read_b64_tr_b16 v[{w+2}:{w+3}], v{VWc[sbk]} offset:{sub*8192+1024}")
        for dbk in range(9):
            u = FR[st] + 8 + 4 * dbk
            out.append(f"ds_read_b128 v[{u}:{u+3}], v{VUc} offset:{sub*9216+256*dbk}")
        return out
    def addr_upd(sreg):
        out = [f"v_add_u32 v{VWc[k]}, s{sreg}, v{VW[k]}" for k in range(2)]
        out.append(f"v_add_u32 v{VUc}, s{sreg}, v{VU}")
        return out
    ring_compute(a, "g2", R, NS, SZ, mfmas, reads, addr_upd, mid=True)
    a("s_lshl_b32 s38, s30, 11")
    a("s_lshl_b32 s39, s31, 7")
    a("s_add_u32 s38, s38, s39")
    a("s_lshl_b32 s39, s34, 5")
    a("s_add_u32 s38, s38, s39")
    a("v_add_u32 v12, s38, v4")
    a("s_mov_b32 s39, 2304")
    a("v_mul_lo_u32 v12, v12, s39")
    a("s_mul_i32 s38, s32, 576")
    a("v_add_u32 v12, s38, v12")
    a("v_lshlrev_b32 v13, 4, v3")
    a("v_add_u32 v12, v12, v13")
    a(f"s_mov_b32 s39, {16*2304}")
    a("s_nop 3")
    for dbk in range(9):
        for sbk in range(2):
            b = ACC + (dbk * 2 + sbk) * 4
            so = "s39" if sbk else "0"
            a(f"buffer_store_dwordx4 v[{b}:{b+3}], v12, s[20:23], {so} offen offset:{64*dbk} sc0 sc1")

def phase_d(a):
    RA = 0; RB = 20736; RY = 41472; QS = 5184; QS3 = 4672
    a("s_mov_b32 s40, s33")
    a("s_load_dwordx2 s[4:5], s[0:1], 0")
    a("s_load_dwordx2 s[6:7], s[0:1], 56")
    a("s_load_dwordx2 s[10:11], s[0:1], 64")
    srd(a, 36, 8, ZT_OFF, ZT_SZ)
    srd(a, 20, 8, PART_OFF, PART_SZ)
    a("v_mul_u32_u24 v3, 911, v0")
    a("v_lshrrev_b32 v3, 16, v3")
    a("v_mul_u32_u24 v4, 72, v3")
    a("v_sub_u32 v4, v0, v4")
    a("v_lshrrev_b32 v5, 3, v4")
    a("v_and_b32 v6, 7, v4")
    a(f"v_mul_u32_u24 v7, {QS}, v3")
    a("v_mul_u32_u24 v8, 576, v5")
    a("v_add_u32 v7, v7, v8")
    a("s_cmp_lg_u32 s33, 7")
    a("s_cbranch_scc1 L_d_go")
    a("v_add_u32 v255, 192, v2")
    a("v_subrev_u32 v255, 216, v255")
    a("v_cmp_lt_u32 vcc, 36, v255")
    a("s_nop 1")
    a("v_cndmask_b32 v255, 0, 1, vcc")
    poll_flags(a, "z", 56, 32768, None, nld=[3])
    a.label("L_d_go")
    a("s_barrier")
    a("s_lshr_b32 s42, s2, 1")
    a(f"s_mul_i32 s42, s42, {ZBLK}")
    a("s_and_b32 s43, s2, 1")
    a("s_lshl_b32 s43, s43, 6")
    a("s_add_u32 s42, s42, s43")
    for rnd in range(3):
        a(f"v_add_u32 v10, {512*rnd}, v0")
        a("v_lshrrev_b32 v11, 2, v10")
        a("v_lshlrev_b32 v11, 7, v11")
        a("v_and_b32 v12, 3, v10")
        a("v_lshlrev_b32 v12, 4, v12")
        a("v_add_u32 v13, v11, v12")
        a(f"buffer_load_dwordx4 v[{100+4*rnd}:{103+4*rnd}], v13, s[36:39], s42 offen")
    a("v_cvt_f32_u32 v60, v6")
    for c in range(1, 8):
        a(f"v_mul_f32 v61, {fl(c/64.0)}, v60")
        a(f"v_cos_f32 v{80+2*c}, v61")
        a(f"v_sin_f32 v{81+2*c}, v61")
    a("s_waitcnt vmcnt(0) lgkmcnt(0)")
    srd(a, 12, 4, 0, S * D * 2)
    srd(a, 16, 6, 0, S * 2)
    srd(a, 24, 10, 0, S * D * 2)
    for rnd in range(3):
        b = 100 + 4 * rnd
        a(f"v_add_u32 v10, {512*rnd}, v0")
        if rnd == 2:
            a("v_cmp_gt_u32 vcc, 1156, v10")
            a("s_and_saveexec_b64 s[30:31], vcc")
        a("v_lshrrev_b32 v11, 2, v10")
        a("v_and_b32 v12, 3, v10")
        a(f"v_mul_u32_u24 v13, {QS3}, v12")
        a("v_cmp_eq_u32 vcc, 0, v11")
        a("v_mov_b32 v17, 288")
        a("v_cmp_eq_u32 s[28:29], v17, v11")
        a("s_or_b64 vcc, vcc, s[28:29]")
        a("v_sub_u32 v14, 576, v11")
        a("v_lshlrev_b32 v18, 3, v11")
        a("v_cndmask_b32_e64 v%d, v%d, 0, vcc" % (b+1, b+1))
        a("v_cndmask_b32_e64 v%d, v%d, 0, vcc" % (b+3, b+3))
        a("v_add_u32 v18, v18, v13")
        a("v_lshlrev_b32 v14, 3, v14")
        a("v_add_u32 v14, v14, v13")
        a(f"v_sub_f32 v20, v{b}, v{b+3}")
        a(f"v_add_f32 v21, v{b+1}, v{b+2}")
        a(f"v_add_f32 v22, v{b}, v{b+3}")
        a(f"v_sub_f32 v23, v{b+2}, v{b+1}")
        a(f"ds_write_b64 v18, v[20:21] offset:{RA}")
        a(f"ds_write_b64 v14, v[22:23] offset:{RA}")
    a("s_mov_b64 exec, s[30:31]")
    a("s_waitcnt lgkmcnt(0)")
    a("s_barrier")
    rstamp(a, 5)
    a("s_cmp_ge_u32 s33, 5")
    a("s_cbranch_scc1 L_d_red")
    a("v_cmp_gt_u32 vcc, 288, v0")
    a("s_and_saveexec_b64 s[30:31], vcc")
    a(f"v_mul_u32_u24 v22, {QS3}, v3")
    a("v_mul_u32_u24 v23, 9, v6")
    a("v_add_u32 v23, v23, v5")
    a("v_lshlrev_b32 v23, 3, v23")
    a("v_add_u32 v22, v22, v23")
    for e in range(8):
        a(f"ds_read_b64 v[{30+2*e}:{31+2*e}], v22 offset:{RA + 576*e}")
    a("v_lshlrev_b32 v20, 3, v6")
    a("v_add_u32 v20, v7, v20")
    a("v_mul_u32_u24 v21, 72, v6")
    a("v_add_u32 v21, v7, v21")
    a("s_waitcnt lgkmcnt(0)")
    pool = P2(200, 244); g = FG(a, pool)
    ys = g.dft([((30+2*b, 1), (31+2*b, 1)) for b in range(8)], 1)
    for aa in range(8):
        d = 60 + 2 * aa
        if aa == 0:
            g.mov(ys[0][0], d); g.mov(ys[0][1], d + 1); g.frc(ys[0])
        else:
            g.cmul(ys[aa], 80 + 2*aa, 81 + 2*aa, dst=d)
    for aa in range(8):
        d = 60 + 2 * aa
        a(f"ds_write_b64 v20, v[{d}:{d+1}] offset:{RB + 72*aa}")
    a("s_waitcnt lgkmcnt(0)")
    a("s_barrier")
    for c in range(8):
        a(f"ds_read_b64 v[{30+2*c}:{31+2*c}], v21 offset:{RB + 8*c}")
    a("s_waitcnt lgkmcnt(0)")
    pool = P2(200, 244); g = FG(a, pool)
    g.dft([((30+2*b, 1), (31+2*b, 1)) for b in range(8)], 1, [60 + 2*b for b in range(8)])
    for b in range(8):
        d = 60 + 2 * b
        a(f"ds_write_b64 v20, v[{d}:{d+1}] offset:{RA + 64*b}")
    a("s_mov_b64 exec, s[30:31]")
    a("v_cvt_f32_u32 v60, v2")
    for k1 in range(1, 9):
        a(f"v_mul_f32 v61, {fl(k1/576.0)}, v60")
        a(f"v_cos_f32 v{80+2*k1}, v61")
        a(f"v_sin_f32 v{81+2*k1}, v61")
    a("s_waitcnt lgkmcnt(0)")
    a("s_barrier")
    a("s_cmp_ge_u32 s40, 4")
    a("s_cbranch_scc1 L_d_skip1")
    a(f"s_mul_i32 s43, s40, {QS}")
    a("v_lshlrev_b32 v10, 3, v2")
    a("v_add_u32 v10, s43, v10")
    for k1 in range(9):
        a(f"ds_read_b64 v[{30+2*k1}:{31+2*k1}], v10 offset:{RA + 576*k1}")
    a("s_waitcnt lgkmcnt(0)")
    pool = P2(200, 244); g = FG(a, pool)
    xs = []
    for k1 in range(9):
        x = ((30+2*k1, 1), (31+2*k1, 1))
        xs.append(x if k1 == 0 else g.cmul(x, 80 + 2*k1, 81 + 2*k1))
    g.dft(xs, 1, [60 + 2*n for n in range(9)])
    sc = fl(1.0 / (2.0 * 2048 * 576))
    for n in range(9):
        a(f"v_mul_f32 v{60+2*n}, {sc}, v{60+2*n}")
        a(f"v_mul_f32 v{61+2*n}, {sc}, v{61+2*n}")
        round_bf16_pair(a, 60 + 2*n, 61 + 2*n, 17 + (n & 1))
    a("s_mul_i32 s43, s40, 4608")
    a("v_lshlrev_b32 v10, 2, v2")
    a("v_add_u32 v10, s43, v10")
    for n in range(9):
        a(f"ds_write_b32 v10, v{60+2*n} offset:{RB + 256*n}")
        a(f"ds_write_b32 v10, v{61+2*n} offset:{RB + 2304 + 256*n}")
    a.label("L_d_skip1")
    a("s_waitcnt lgkmcnt(0)")
    a("s_barrier")
    a("s_branch L_k2_end")
    a.label("L_d_red")
    a("s_cmp_lg_u32 s33, 7")
    a("s_cbranch_scc1 L_d_red2")
    a("s_lshl_b32 s51, s2, 7")
    a("s_add_u32 s51, s51, 65536")
    a("v_mov_b32 v244, 1")
    a("v_mov_b32 v245, 0")
    a("s_mov_b64 s[30:31], exec")
    a("s_mov_b64 exec, 1")
    a("buffer_store_dword v244, v245, s[56:59], s51 offen sc0 sc1")
    a("s_mov_b64 exec, s[30:31]")
    a.label("L_d_red2")
    a("s_lshr_b32 s52, s2, 4")
    a("v_lshrrev_b32 v240, 2, v2")
    a("v_lshlrev_b32 v240, 1, v240")
    a("s_lshr_b32 s53, s52, 3")
    a("v_add_u32 v240, s53, v240")
    a("s_and_b32 s53, s52, 7")
    a("s_lshl_b32 s53, s53, 2")
    a("v_and_b32 v241, 3, v2")
    a("v_add_u32 v241, s53, v241")
    a("v_lshlrev_b32 v241, 3, v241")
    a("v_add_u32 v240, v240, v241")
    a("v_lshlrev_b32 v240, 7, v240")
    a("v_cmp_le_u32 vcc, 16, v2")
    a("s_nop 1")
    a("v_cndmask_b32 v242, 0, 1, vcc")
    a("v_subrev_u32 v1, 320, v0")
    a(f"s_mul_i32 s32, s2, {4608*4}")
    a(f"s_mul_i32 s34, s2, {4608*2}")
    a("v_lshlrev_b32 v15, 4, v1")
    a("v_lshlrev_b32 v9, 3, v1")
    for m in range(6):
        a(f"s_add_u32 s35, s34, {m*1536}")
        a(f"buffer_load_dwordx2 v[{20+2*m}:{21+2*m}], v9, s[12:15], s35 offen")
        a(f"v_add_u32 v10, {192*m}, v1")
        a("v_mul_u32_u24 v10, 3641, v10")
        a("v_lshrrev_b32 v10, 19, v10")
        a("v_lshlrev_b32 v10, 1, v10")
        a("s_lshl_b32 s35, s2, 4")
        a(f"buffer_load_ushort v{32+m}, v10, s[16:19], s35 offen")
    a("s_barrier")
    a("s_barrier")
    a("s_mov_b32 s50, 400000")
    a("s_mov_b32 s51, 65536")
    a.label("L_poll_d")
    a("buffer_load_dword v243, v240, s[56:59], s51 offen sc0 sc1")
    a("s_waitcnt vmcnt(0)")
    a("v_or_b32 v243, v243, v242")
    a("v_cmp_eq_u32 vcc, 0, v243")
    a("s_sub_u32 s50, s50, 1")
    a("s_cmp_eq_u32 s50, 0")
    a("s_cbranch_scc1 L_pollx_d")
    a("s_cmp_eq_u64 vcc, 0")
    a("s_cbranch_scc1 L_pollx_d")
    a("s_sleep 2")
    a("s_branch L_poll_d")
    a.label("L_pollx_d")
    PB = 100
    for m in range(6):
        for ks in range(4):
            a(f"s_add_u32 s35, s32, {ks*2048*2304 + m*3072}")
            a(f"buffer_load_dwordx4 v[{PB+16*m+4*ks}:{PB+3+16*m+4*ks}], v15, s[20:23], s35 offen")
    a("s_waitcnt vmcnt(0)")
    for m in range(6):
        b = PB + 16 * m
        for r in range(4):
            a(f"v_add_f32 v{b+r}, v{b+r}, v{b+4+r}")
            a(f"v_add_f32 v{b+8+r}, v{b+8+r}, v{b+12+r}")
            a(f"v_add_f32 v{b+r}, v{b+r}, v{b+8+r}")
        a(f"v_lshlrev_b32 v{32+m}, 16, v{32+m}")
        round_bf16_pair(a, b, b + 1, 4)
        round_bf16_pair(a, b + 2, b + 3, 5)
        for r in range(4):
            a(f"v_add_f32 v{b+r}, v{b+r}, v{32+m}")
        round_bf16_pair(a, b, b + 1, 4)
        round_bf16_pair(a, b + 2, b + 3, 5)
        a(f"v_lshlrev_b32 v{b+4}, 16, v{20+2*m}")
        a(f"v_and_b32 v{b+5}, 0xffff0000, v{20+2*m}")
        a(f"v_lshlrev_b32 v{b+6}, 16, v{21+2*m}")
        a(f"v_and_b32 v{b+7}, 0xffff0000, v{21+2*m}")
    a("s_barrier")
    for m in range(6):
        a(f"ds_read_b128 v[{40+4*m}:{43+4*m}], v15 offset:{RB + 3072*m}")
    a("s_waitcnt lgkmcnt(0)")
    rstamp(a, 6)
    for m in range(6):
        b = PB + 16 * m
        for r in range(4):
            a(f"v_add_f32 v{b+4+r}, v{b+4+r}, v{40+4*m+r}")
        round_bf16_pair(a, b + 4, b + 5, 4)
        round_bf16_pair(a, b + 6, b + 7, 5)
        for r in range(4):
            a(f"v_add_f32 v{b+r}, v{b+r}, v{b+4+r}")
        a(f"v_cvt_pk_bf16_f32 v{b+8}, v{b}, v{b+1}")
        a(f"v_cvt_pk_bf16_f32 v{b+9}, v{b+2}, v{b+3}")
        a(f"s_add_u32 s35, s34, {m*1536}")
        a(f"buffer_store_dwordx2 v[{b+8}:{b+9}], v9, s[24:27], s35 offen")

KNAME = "parallel_sum__spectral_gfnet__mixer_token_mlp__prompt_kernel"
def gen_k2(a):
    name = KNAME
    kernel_begin(a, name)
    rstamp(a, 0)
    a("s_cmp_ge_u32 s2, 256")
    a("s_cbranch_scc1 L_k2_end")
    a("s_load_dwordx2 s[8:9], s[0:1], 80")
    a("v_lshrrev_b32 v1, 6, v0")
    a("v_and_b32 v2, 63, v0")
    a("s_nop 0")
    a("v_readfirstlane_b32 s33, v1")
    a("s_waitcnt lgkmcnt(0)")
    srd(a, 56, 8, FL_OFF, FL_SZ)
    phase_a(a)
    a.label("L_phA_done")
    a("s_waitcnt vmcnt(0)")
    a.label("L_phA_done2")
    a("s_load_dwordx2 s[4:5], s[0:1], 32")
    a("s_load_dwordx2 s[6:7], s[0:1], 40")
    a("s_load_dwordx2 s[42:43], s[0:1], 72")
    set_flag(a, 56, 0, novm=True)
    rstamp(a, 1)
    a("s_cmp_ge_u32 s2, 253")
    a("s_cbranch_scc1 L_phB_done")
    a("s_cmp_ge_u32 s2, 216")
    a("s_cbranch_scc1 L_k2_fft")
    gen_gemm1(a)
    a.label("L_k2_fft")
    sync_a(a, "f")
    rstamp(a, 2)
    gen_colfft(a)
    a.label("L_phB_done")
    a("s_waitcnt vmcnt(0)")
    a.label("L_phB_done2")
    rstamp(a, 3)
    a("s_load_dwordx2 s[4:5], s[0:1], 48")
    set_flag(a, 56, 32768, novm=True)
    phase_c2(a)
    a.label("L_phC_done")
    rstamp(a, 4)
    phase_d(a)
    rstamp(a, 7)
    if "stamp" in DBG:
        a("s_waitcnt vmcnt(0) lgkmcnt(0)")
        a("s_cmp_lg_u32 s40, 7")
        a("s_cbranch_scc1 L_k2_end")
        a("s_mov_b64 exec, 1")
        stamp_flush(a, 8, 8, 0)
    a.label("L_k2_end")
    a("s_endpgm")
    return name, 256

def main(out):
    a = Asm()
    hdr = open("parallel_sum__spectral_gfnet__mixer_token_mlp__prompt.s.ref").read().split("\n")
    for l in hdr:
        if l.startswith("; @launch"):
            break
        a.raw(l)
    a.raw("; @launch grid=(256,1,1) block=(512,1,1) lds=156672")
    a.raw('.amdgcn_target "amdgcn-amd-amdhsa--gfx950"')
    a.raw(".text")
    ks = [gen_k2(a)]
    a.raw('.section .rodata,"a"')
    for n, v in ks:
        kd(a, n, v)
    open(out, "w").write(a.text())

if __name__ == "__main__":
    for x in sys.argv[2:]: DBG.add(x)
    main(sys.argv[1] if len(sys.argv) > 1 else "parallel_sum__spectral_gfnet__mixer_token_mlp__prompt.s")
```

```python
import math, sys
from fftlib import Pool, FG

S, D, F = 2048, 576, 4608
DF = 289
HT_OFF = 0;                 HT_SZ = 256 * 576 * 16
U_OFF = 0x400000;           U_SZ = 576 * 576 * 16
PART_OFF = 0x1000000;       PART_SZ = 4 * 2048 * 576 * 4
PT_OFF = 0x3000000;         PBLK = 290 * 64; PT_SZ = 256 * PBLK
WT_OFF = 0x3800000;         WT_SZ = 289 * 2048 * 4
ZT_OFF = 0x4000000;         ZBLK = 290 * 128; ZT_SZ = 128 * ZBLK
YA_OFF = 0x4800000;         YA_SZ = 2048 * 576 * 2
FL_OFF = 0x5000000;         FL_SZ = 3 * 256 * 128

class Asm:
    def __init__(self):
        self.lines = []
        self.lab = 0
    def __call__(self, s):
        for l in s.strip("\n").split("\n"):
            self.lines.append("    " + l.strip())
    def label(self, name):
        self.lines.append(name + ":")
    def newlabel(self, p="L"):
        self.lab += 1
        return f"{p}_{self.lab}"
    def raw(self, s):
        self.lines.append(s)
    def text(self):
        return "\n".join(self.lines) + "\n"

def f32bits(x):
    import struct
    return struct.unpack("<I", struct.pack("<f", x))[0]
def fl(x):
    return "0x%08x" % f32bits(x)

def srd(a, sd, sbase, off, size):
    if off:
        a(f"s_add_u32 s{sd}, s{sbase}, {off}")
        a(f"s_addc_u32 s{sd+1}, s{sbase+1}, 0")
    else:
        a(f"s_mov_b32 s{sd}, s{sbase}")
        a(f"s_mov_b32 s{sd+1}, s{sbase+1}")
    a(f"s_mov_b32 s{sd+2}, {size}")
    a(f"s_mov_b32 s{sd+3}, 0x00020000")

def kernel_begin(a, name):
    a.raw(f".globl {name}")
    a.raw(".p2align 8")
    a.raw(f".type {name},@function")
    a.label(name)

def kd(a, name, vgpr, sgpr=102):
    acc = (vgpr + 3) // 4 * 4
    a.raw(".p2align 6")
    a.raw(f".amdhsa_kernel {name}")
    a.raw(f"  .amdhsa_next_free_vgpr {vgpr}")
    a.raw(f"  .amdhsa_next_free_sgpr {sgpr}")
    a.raw(f"  .amdhsa_accum_offset {acc}")
    a.raw("  .amdhsa_group_segment_fixed_size 0")
    a.raw("  .amdhsa_kernarg_size 88")
    a.raw("  .amdhsa_user_sgpr_count 2")
    a.raw("  .amdhsa_user_sgpr_kernarg_segment_ptr 1")
    a.raw("  .amdhsa_system_sgpr_workgroup_id_x 1")
    a.raw(".end_amdhsa_kernel")

def wave_reduce(a, vregs, sregs):
    for ctrl in ["row_shr:1", "row_shr:2", "row_shr:4", "row_shr:8"]:
        for v in vregs:
            a(f"v_add_f32_dpp v{v}, v{v}, v{v} {ctrl} row_mask:0xf bank_mask:0xf bound_ctrl:0")
        if len(vregs) < 3:
            a("s_nop 1")
    for v in vregs:
        a(f"v_add_f32_dpp v{v}, v{v}, v{v} row_bcast:15 row_mask:0xa bank_mask:0xf")
    if len(vregs) < 3:
        a("s_nop 1")
    for v in vregs:
        a(f"v_add_f32_dpp v{v}, v{v}, v{v} row_bcast:31 row_mask:0xc bank_mask:0xf")
    a("s_nop 1")
    for v, s in zip(vregs, sregs):
        a(f"v_readlane_b32 s{s}, v{v}, 63")

def round_bf16_pair(a, va, vb, vt):
    a(f"v_cvt_pk_bf16_f32 v{vt}, v{va}, v{vb}")
    a(f"v_lshlrev_b32 v{va}, 16, v{vt}")
    a(f"v_and_b32 v{vb}, 0xffff0000, v{vt}")

def layernorm_pair(a, xa, xb, oa, ob, t0, sbase):
    T = [t0 + i for i in range(12)]
    s0, s1, s2, s3 = sbase, sbase + 1, sbase + 2, sbase + 3
    a(f"v_add_f32 v{T[0]}, v{xa[0]}, v{xa[1]}")
    a(f"v_add_f32 v{T[1]}, v{xb[0]}, v{xb[1]}")
    for i in range(2, 9):
        a(f"v_add_f32 v{T[0]}, v{T[0]}, v{xa[i]}")
        a(f"v_add_f32 v{T[1]}, v{T[1]}, v{xb[i]}")
    a("s_nop 1")
    wave_reduce(a, [T[0], T[1]], [s0, s1])
    a("s_nop 1")
    c576 = fl(1.0 / 576.0)
    a(f"v_mov_b32 v{T[10]}, {c576}")
    a(f"v_mul_f32 v{T[2]}, s{s0}, v{T[10]}")
    a(f"v_mul_f32 v{T[3]}, s{s1}, v{T[10]}")
    a(f"v_sub_f32 v{T[4]}, v{xa[0]}, v{T[2]}")
    a(f"v_sub_f32 v{T[5]}, v{xb[0]}, v{T[3]}")
    a(f"v_mul_f32 v{T[0]}, v{T[4]}, v{T[4]}")
    a(f"v_mul_f32 v{T[1]}, v{T[5]}, v{T[5]}")
    for i in range(1, 9):
        a(f"v_sub_f32 v{T[4]}, v{xa[i]}, v{T[2]}")
        a(f"v_sub_f32 v{T[5]}, v{xb[i]}, v{T[3]}")
        a(f"v_fmac_f32 v{T[0]}, v{T[4]}, v{T[4]}")
        a(f"v_fmac_f32 v{T[1]}, v{T[5]}, v{T[5]}")
    a("s_nop 1")
    wave_reduce(a, [T[0], T[1]], [s2, s3])
    a("s_nop 1")
    a(f"v_mul_f32 v{T[6]}, s{s2}, v{T[10]}")
    a(f"v_mul_f32 v{T[7]}, s{s3}, v{T[10]}")
    round_bf16_pair(a, T[6], T[7], T[8])
    round_bf16_pair(a, T[2], T[3], T[9])
    eps = fl(1e-5)
    a(f"v_add_f32 v{T[6]}, {eps}, v{T[6]}")
    a(f"v_add_f32 v{T[7]}, {eps}, v{T[7]}")
    round_bf16_pair(a, T[6], T[7], T[8])
    a(f"v_sqrt_f32 v{T[6]}, v{T[6]}")
    a(f"v_sqrt_f32 v{T[7]}, v{T[7]}")
    a("s_nop 0")
    round_bf16_pair(a, T[6], T[7], T[8])
    a(f"v_rcp_f32 v{T[6]}, v{T[6]}")
    a(f"v_rcp_f32 v{T[7]}, v{T[7]}")
    for i in range(9):
        a(f"v_sub_f32 v{oa[i]}, v{xa[i]}, v{T[2]}")
        a(f"v_sub_f32 v{ob[i]}, v{xb[i]}, v{T[3]}")
        round_bf16_pair(a, oa[i], ob[i], T[8] if i % 2 == 0 else T[9])
        a(f"v_mul_f32 v{oa[i]}, v{oa[i]}, v{T[6]}")
        a(f"v_mul_f32 v{ob[i]}, v{ob[i]}, v{T[7]}")
        round_bf16_pair(a, oa[i], ob[i], T[4] if i % 2 == 0 else T[5])

K1_NWT = 64
K1_NPF = 64
import os
PFROWS = int(os.environ.get('PFROWS', '2048'))
W2PF_FFT = False
W2PF_GEMM = False
import os
K1PF = True
CODEPF = int(os.environ.get('CODEPF', '0'))
W2TAIL = int(os.environ.get('W2TAIL', '0'))
KROT = int(os.environ.get('KROT', '1'))
KROT3 = int(os.environ.get('KROT3', '1'))
PF_LEAD1 = 12
PF_LEAD2 = 10
K1_DUMMY = 0
class P2(Pool):
    def release(self, r):
        if r < self.lo or r >= self.hi: return
        Pool.release(self, r)

def phase_a(a):
    WTL = 51200
    a("s_load_dwordx2 s[4:5], s[0:1], 0")
    a("s_load_dwordx4 s[36:39], s[0:1], 8")
    a("s_load_dwordx2 s[40:41], s[0:1], 32")
    a("s_load_dwordx2 s[42:43], s[0:1], 72")
    a("s_cmp_ge_u32 s33, 5")
    a("s_cbranch_scc1 L_a_aux")
    E1 = 9216; E2 = E1 + 20736; QS = 5184; E3 = E1; QS3 = 4672
    a("v_mul_u32_u24 v3, 911, v0")
    a("v_lshrrev_b32 v3, 16, v3")
    a("v_mul_u32_u24 v4, 72, v3")
    a("v_sub_u32 v4, v0, v4")
    a("v_lshrrev_b32 v5, 3, v4")
    a("v_and_b32 v6, 7, v4")
    a(f"v_mul_u32_u24 v7, {QS}, v3")
    a("v_mul_u32_u24 v8, 576, v5")
    a("v_add_u32 v7, v7, v8")
    a("s_lshl_b32 s21, s2, 3")
    a("s_lshl_b32 s22, s33, 1")
    a("s_add_u32 s21, s21, s22")
    a("s_mul_i32 s21, s21, 1152")
    a("v_lshlrev_b32 v9, 1, v2")
    a("s_waitcnt lgkmcnt(0)")
    srd(a, 12, 4, 0, S * D * 2)
    srd(a, 16, 8, HT_OFF, HT_SZ)
    srd(a, 24, 8, PT_OFF, PT_SZ)
    a("s_cmp_ge_u32 s33, 4")
    a("s_cbranch_scc1 L_a_skipln")
    XA = list(range(10, 19)); XB = list(range(20, 29))
    for i in range(9):
        a(f"buffer_load_ushort v{XA[i]}, v9, s[12:15], s21 offen offset:{128*i}")
        a(f"buffer_load_ushort v{XB[i]}, v9, s[12:15], s21 offen offset:{1152+128*i}")
    a("v_cvt_f32_u32 v60, v2")
    for k1 in range(1, 9):
        a(f"v_mul_f32 v61, {fl(-k1/576.0)}, v60")
        a(f"v_cos_f32 v{80+2*k1}, v61")
        a(f"v_sin_f32 v{81+2*k1}, v61")
    a("s_waitcnt vmcnt(0)")
    for i in range(9):
        a(f"v_lshlrev_b32 v{XA[i]}, 16, v{XA[i]}")
        a(f"v_lshlrev_b32 v{XB[i]}, 16, v{XB[i]}")
    NA = [30 + 2*i for i in range(9)]; NB = [31 + 2*i for i in range(9)]
    layernorm_pair(a, XA, XB, NA, NB, 60, 44)
    HA = list(range(10, 19)); HB = list(range(20, 29))
    layernorm_pair(a, NA, NB, HA, HB, 60, 44)
    a("v_lshlrev_b32 v9, 4, v2")
    a("s_lshl_b32 s22, s33, 2")
    a("v_add_u32 v9, s22, v9")
    for i in range(9):
        a(f"v_cvt_pk_bf16_f32 v{50+i}, v{HA[i]}, v{HB[i]}")
    for i in range(9):
        a(f"ds_write_b32 v9, v{50+i} offset:{1024*i}")
    pool = P2(98, 128); g = FG(a, pool)
    xs = [((NA[i], 1), (NB[i], 1)) for i in range(9)]
    ys = g.dft(xs, -1)
    a(f"s_mul_i32 s22, s33, {QS}")
    a("v_lshlrev_b32 v9, 3, v2")
    a("v_add_u32 v9, s22, v9")
    for k1 in range(9):
        d = 60 + 2 * k1
        if k1 == 0:
            g.mov(ys[0][0], d); g.mov(ys[0][1], d + 1); g.frc(ys[0])
        else:
            g.cmul(ys[k1], 80 + 2*k1, 81 + 2*k1, dst=d)
    for k1 in range(9):
        d = 60 + 2 * k1
        a(f"ds_write_b64 v9, v[{d}:{d+1}] offset:{E1 + 576*k1}")
    a.label("L_a_skipln")
    a("v_cvt_f32_u32 v60, v6")
    for c in range(1, 8):
        a(f"v_mul_f32 v61, {fl(-c/64.0)}, v60")
        a(f"v_cos_f32 v{80+2*c}, v61")
        a(f"v_sin_f32 v{81+2*c}, v61")
    a("s_waitcnt lgkmcnt(0)")
    a("s_barrier")
    a("v_cmp_gt_u32 vcc, 288, v0")
    a("s_and_saveexec_b64 s[30:31], vcc")
    a("v_lshlrev_b32 v9, 4, v0")
    a("ds_read_b128 v[10:13], v9")
    a("ds_read_b128 v[14:17], v9 offset:4608")
    a("v_lshlrev_b32 v20, 3, v6")
    a("v_add_u32 v20, v7, v20")
    for b in range(8):
        a(f"ds_read_b64 v[{30+2*b}:{31+2*b}], v20 offset:{E1 + 64*b}")
    a(f"s_mul_i32 s23, s2, {576*16}")
    a("s_waitcnt lgkmcnt(8)")
    a("buffer_store_dwordx4 v[10:13], v9, s[16:19], s23 offen sc0 sc1")
    a("v_add_u32 v21, 4608, v9")
    a("buffer_store_dwordx4 v[14:17], v21, s[16:19], s23 offen sc0 sc1")
    a("s_waitcnt lgkmcnt(0)")
    pool = P2(98, 128); g = FG(a, pool)
    ys = g.dft([((30+2*b, 1), (31+2*b, 1)) for b in range(8)], -1)
    a("v_mul_u32_u24 v22, 72, v6")
    a("v_add_u32 v22, v7, v22")
    for c in range(8):
        d = 60 + 2 * c
        if c == 0:
            g.mov(ys[0][0], d); g.mov(ys[0][1], d + 1); g.frc(ys[0])
        else:
            g.cmul(ys[c], 80 + 2*c, 81 + 2*c, dst=d)
    for c in range(8):
        d = 60 + 2 * c
        a(f"ds_write_b64 v22, v[{d}:{d+1}] offset:{E2 + 8*c}")
    a("s_waitcnt lgkmcnt(0)")
    a("s_barrier")
    for aa in range(8):
        a(f"ds_read_b64 v[{30+2*aa}:{31+2*aa}], v20 offset:{E2 + 72*aa}")
    a("s_waitcnt lgkmcnt(0)")
    pool = P2(98, 128); g = FG(a, pool)
    g.dft([((30+2*b, 1), (31+2*b, 1)) for b in range(8)], -1, [60 + 2*e for e in range(8)])
    a(f"v_mul_u32_u24 v22, {QS3}, v3")
    a("v_mul_u32_u24 v23, 9, v6")
    a("v_add_u32 v23, v23, v5")
    a("v_lshlrev_b32 v23, 3, v23")
    a("v_add_u32 v22, v22, v23")
    for e in range(8):
        d = 60 + 2 * e
        a(f"ds_write_b64 v22, v[{d}:{d+1}] offset:{E3 + 576*e}")
    a("s_mov_b64 exec, s[30:31]")
    a("s_waitcnt lgkmcnt(0)")
    a("s_barrier")
    a(f"s_mul_i32 s23, s2, {PBLK}")
    for rnd in range(4):
        a(f"v_add_u32 v10, {320*rnd}, v0")
        if rnd == 3:
            a("v_cmp_gt_u32 vcc, 1156, v10")
            a("s_and_saveexec_b64 s[30:31], vcc")
            a("s_cbranch_execz L_a_unp_done")
        a("v_lshrrev_b32 v11, 2, v10")
        a("v_and_b32 v12, 3, v10")
        a(f"v_mul_u32_u24 v13, {QS3}, v12")
        a("v_sub_u32 v14, 576, v11")
        a("v_cmp_eq_u32 vcc, 0, v11")
        a("v_lshlrev_b32 v15, 3, v11")
        a("v_add_u32 v15, v15, v13")
        a("v_cndmask_b32 v14, v14, v11, vcc")
        a("v_lshlrev_b32 v14, 3, v14")
        a("v_add_u32 v14, v14, v13")
        b = 30 + 8 * rnd
        a(f"ds_read_b64 v[{b}:{b+1}], v15 offset:{E3}")
        a(f"ds_read_b64 v[{b+2}:{b+3}], v14 offset:{E3}")
        a(f"v_lshlrev_b32 v{70+rnd}, 4, v10")
        a("s_waitcnt lgkmcnt(0)")
        a(f"v_add_f32 v{b+4}, v{b}, v{b+2}")
        a(f"v_sub_f32 v{b+5}, v{b+1}, v{b+3}")
        a(f"v_add_f32 v{b+6}, v{b+1}, v{b+3}")
        a(f"v_sub_f32 v{b+7}, v{b+2}, v{b}")
        a(f"buffer_store_dwordx4 v[{b+4}:{b+7}], v{70+rnd}, s[24:27], s23 offen sc0 sc1")
    a.label("L_a_unp_done")
    a("s_mov_b64 exec, s[30:31]")
    a("s_branch L_phA_done")
    a.label("L_a_aux")
    a("v_subrev_u32 v1, 320, v0")
    a("s_waitcnt lgkmcnt(0)")
    a("s_cmp_lg_u32 s33, 7")
    a("s_cbranch_scc1 L_a_aux2")
    srd(a, 44, 42, 0, 256)
    a("s_lshl_b32 s21, s2, 7")
    a("v_mov_b32 v9, 0")
    a("v_lshlrev_b32 v10, 15, v2")
    a("buffer_store_dword v9, v10, s[56:59], s21 offen sc0 sc1")
    a("s_waitcnt vmcnt(0)")
    a("v_mov_b32 v9, 1")
    a("v_mov_b32 v10, 0")
    a("s_mov_b64 s[30:31], exec")
    a("s_mov_b64 exec, 1")
    a("buffer_atomic_add v9, v10, s[44:47], 0 offen sc1")
    a("s_mov_b64 exec, s[30:31]")
    a.label("L_a_aux2")
    a("s_cmp_lt_u32 s2, 64")
    a("s_cbranch_scc1 L_a_wt")
    if CODEPF:
        a("s_lshr_b32 s22, s2, 3")
        a("s_cmp_lg_u32 s22, 8")
        a("s_cbranch_scc1 L_a_nocode")
        a("s_getpc_b64 s[12:13]")
        a.label("L_a_pc")
        a("s_mov_b32 s14, L_k2_end-L_a_pc")
        a("s_mov_b32 s15, 0x00020000")
        a("v_lshlrev_b32 v10, 7, v1")
        for i in range(3):
            a(f"buffer_load_dword v76, v10, s[12:15], 0 offen")
            a(f"v_add_u32 v10, {192*128}, v10")
        a.label("L_a_nocode")
    srd(a, 12, 40, 0, S * F * 2)
    a("s_and_b32 s22, s2, 7")
    a("s_mul_i32 s22, s22, 1152")
    a("s_lshr_b32 s23, s2, 3")
    a("s_sub_u32 s23, s23, 8")
    a("s_mul_i32 s23, s23, 192")
    a("s_mov_b32 s24, 9216")
    nper = (PFROWS * 9 + 24 * 192 - 1) // (24 * 192)
    for i in range(nper):
        a(f"v_add_u32 v10, {i * 24 * 192}, v1")
        a("v_add_u32 v10, s23, v10")
        a("v_mul_hi_u32 v11, v10, v121") if False else None
        a("v_mul_u32_u24 v11, 7282, v10") if False else None
        a("s_mov_b32 s25, 0x1c71c71d")
        a("v_mul_hi_u32 v11, v10, s25")
        a("v_mul_u32_u24 v12, 9, v11")
        a("v_sub_u32 v12, v10, v12")
        a("v_mul_lo_u32 v11, v11, s24")
        a("v_lshlrev_b32 v12, 7, v12")
        a("v_add_u32 v11, v11, v12")
        a(f"buffer_load_dword v76, v11, s[12:15], s22 offen")
    a("s_barrier"); a("s_barrier"); a("s_barrier")
    a("s_branch L_phA_done2")
    a.label("L_a_wt")
    srd(a, 12, 36, 0, S * DF * 2)
    srd(a, 16, 38, 0, S * DF * 2)
    srd(a, 24, 8, WT_OFF, WT_SZ)
    a("s_mul_i32 s22, s2, 18496")
    a("v_lshlrev_b32 v9, 4, v1")
    for rnd in range(7):
        a(f"v_add_u32 v10, {192*16*rnd}, v9")
        if rnd == 6:
            a("v_cmp_gt_u32 vcc, 18496, v10")
            a("s_and_saveexec_b64 s[30:31], vcc")
        a(f"buffer_load_dwordx4 v[{20+8*rnd}:{23+8*rnd}], v10, s[12:15], s22 offen")
        a(f"buffer_load_dwordx4 v[{24+8*rnd}:{27+8*rnd}], v10, s[16:19], s22 offen")
    a("s_mov_b64 exec, s[30:31]")
    a("s_waitcnt vmcnt(0)")
    for rnd in range(7):
        a(f"v_add_u32 v10, {192*16*rnd}, v9")
        if rnd == 6:
            a("v_cmp_gt_u32 vcc, 18496, v10")
            a("s_and_saveexec_b64 s[30:31], vcc")
        a(f"ds_write_b128 v10, v[{20+8*rnd}:{23+8*rnd}] offset:{WTL}")
        a(f"v_add_u32 v11, {WTL + 18496}, v10")
        a(f"ds_write_b128 v11, v[{24+8*rnd}:{27+8*rnd}]")
    a("s_mov_b64 exec, s[30:31]")
    a("s_waitcnt lgkmcnt(0)")
    a("s_barrier")
    a("s_lshl_b32 s23, s2, 7")
    a("v_and_b32 v11, 7, v1")
    a("v_mul_u32_u24 v12, 2312, v11")
    a("v_lshrrev_b32 v13, 3, v1")
    a("v_lshlrev_b32 v14, 1, v13")
    a("v_add_u32 v12, v12, v14")
    a(f"v_add_u32 v12, {WTL}, v12")
    a(f"v_add_u32 v16, 18496, v12")
    a("v_lshlrev_b32 v14, 13, v13")
    a("v_lshlrev_b32 v15, 4, v11")
    a("v_add_u32 v14, v14, v15")
    def wt_round(rnd, slot):
        r0 = 20 + 12 * slot
        for k in range(4):
            a(f"ds_read_u16 v{r0+2*k}, v12 offset:{48*rnd + 578*k}")
            a(f"ds_read_u16 v{r0+2*k+1}, v16 offset:{48*rnd + 578*k}")
    def wt_store(rnd, slot):
        r0 = 20 + 12 * slot
        for k in range(4):
            a(f"v_lshl_or_b32 v{r0+8+k}, v{r0+2*k+1}, 16, v{r0+2*k}")
        a(f"s_add_u32 s36, s23, {rnd*24*8192}")
        a(f"buffer_store_dwordx4 v[{r0+8}:{r0+11}], v14, s[24:27], s36 offen sc0 sc1")
    for grp in range(3):
        rr = list(range(4 * grp, 4 * grp + 4))
        for i, rnd in enumerate(rr): wt_round(rnd, i)
        a("s_waitcnt lgkmcnt(0)")
        for i, rnd in enumerate(rr): wt_store(rnd, i)
        if grp < 2: a("s_barrier")
    a("v_cmp_gt_u32 vcc, 8, v1")
    a("s_and_saveexec_b64 s[30:31], vcc")
    a("s_cbranch_execz L_a_wt_done")
    wt_round(12, 0)
    a("s_waitcnt lgkmcnt(0)")
    wt_store(12, 0)
    a.label("L_a_wt_done")
    a("s_mov_b64 exec, s[30:31]")

DBG = set()
STAMP_OFF = 0x8000000
def stamp(a, idx):
    if "stamp" in DBG:
        a(f"s_memtime s[{60+2*idx}:{61+2*idx}]")
def stamp_flush(a, n, wsbase, slot):
    if "stamp" not in DBG: return
    a("s_waitcnt lgkmcnt(0)")
    srd(a, 56, wsbase, STAMP_OFF + slot * 0x10000, 0x10000)
    a("s_lshl_b32 s55, s2, 6")
    for i in range(n):
        a(f"v_mov_b32 v121, s{60+2*i}")
        a(f"v_mov_b32 v120, {4*i}")
        a(f"buffer_store_dword v121, v120, s[56:59], s55 offen")
def interleave(a, mf, other, per=2):
    if "nomfma" in DBG: mf = []
    if "noread" in DBG: other = []
    j = 0
    for i, m in enumerate(mf):
        a(m)
        k = min(len(other), (i + 1) * per)
        while j < k:
            a(other[j]); j += 1
    while j < len(other):
        a(other[j]); j += 1

def ring_loader(a, tag, R, NS, SZ, n, dma, pf=None, done=None, split=None):
    nst = NS - R
    lab = f"L_{tag}_ld"
    peel = 0
    if split is None:
        for st in range(R):
            a(f"s_mov_b32 s40, {st*SZ}")
            for x in dma(40): a(x)
        a(f"s_waitcnt vmcnt({(R-1)*n})")
    else:
        dma_w, dma_u, nW, nU, mid = split
        for st in range(R):
            a(f"s_mov_b32 s40, {st*SZ}")
            for x in dma_w(40): a(x)
        mid()
        for st in range(R):
            a(f"s_mov_b32 s40, {st*SZ}")
            for x in dma_u(40): a(x)
        a(f"s_waitcnt vmcnt({(R-1)*nU})")
        peel = R - 2
    a("s_barrier")
    a("s_mov_b32 s40, 0")
    def adv():
        a(f"s_add_u32 s40, s40, {SZ}")
        a(f"s_cmp_eq_u32 s40, {R*SZ}")
        a("s_cselect_b32 s40, 0, s40")
    for i in range(peel):
        a(f"s_waitcnt vmcnt({(R-2-i)*nU + i*n})")
        a("s_barrier")
        for x in dma(40): a(x)
        adv()
    a(f"s_mov_b32 s45, {nst - peel}")
    a.label(lab)
    a(f"s_waitcnt vmcnt({(R-2)*n})")
    a("s_barrier")
    for x in dma(40): a(x)
    adv()
    a("s_sub_u32 s45, s45, 1")
    a("s_cmp_lg_u32 s45, 0")
    a(f"s_cbranch_scc1 {lab}")
    for i in range(nst, NS):
        vm = max(0, NS - 1 - (i + 1)) * n
        a(f"s_waitcnt vmcnt({vm})")
        a("s_barrier")
    if done is None: a("s_endpgm")
    else: a(f"s_branch {done}")

def ring_compute(a, tag, R, NS, SZ, mfmas, reads, addr_upd, hook=None, mid=False):
    if mid: a("s_barrier")
    a("s_barrier")
    a("s_mov_b32 s41, 0")
    for x in addr_upd(41): a(x)
    for x in reads(0, 0): a(x)
    a(f"s_mov_b32 s45, {NS-1}")
    lab = f"L_{tag}_cp"
    a.label(lab)
    for h in (hook or []):
        if h.endswith(":"): a.label(h[:-1])
        else: a(h)
    a("s_waitcnt lgkmcnt(0)")
    interleave(a, mfmas(0), reads(1, 1))
    a(f"s_add_u32 s41, s41, {SZ}")
    a(f"s_cmp_eq_u32 s41, {R*SZ}")
    a("s_cselect_b32 s41, 0, s41")
    for x in addr_upd(41): a(x)
    a("s_waitcnt lgkmcnt(0)")
    a("s_barrier")
    interleave(a, mfmas(1), reads(0, 0))
    a("s_sub_u32 s45, s45, 1")
    a("s_cmp_lg_u32 s45, 0")
    a(f"s_cbranch_scc1 {lab}")
    a("s_waitcnt lgkmcnt(0)")
    interleave(a, mfmas(0), reads(1, 1))
    a("s_waitcnt lgkmcnt(0)")
    a("s_barrier")
    interleave(a, mfmas(1), [])

def poll_flags(a, tag, sfl, phase_off, vmask_gen, nld=4, vtmp=244, maxspin=400000):
    a(f"v_lshlrev_b32 v{vtmp+4}, 7, v2")
    a(f"s_mov_b32 s50, {maxspin}")
    a.label(f"L_poll_{tag}")
    for i in nld:
        a(f"s_mov_b32 s51, {phase_off + i*64*128}")
        a(f"buffer_load_dword v{vtmp+i}, v{vtmp+4}, s[{sfl}:{sfl+3}], s51 offen sc0 sc1")
    a("s_waitcnt vmcnt(0)")
    first = True
    for i in nld:
        a(f"v_or_b32 v{vtmp+i}, v{vtmp+i}, v{vtmp+8+i}")
        if not first: a(f"v_min_u32 v{vtmp+nld[0]}, v{vtmp+nld[0]}, v{vtmp+i}")
        first = False
    a(f"v_cmp_eq_u32 vcc, 0, v{vtmp+nld[0]}")
    a("s_sub_u32 s50, s50, 1")
    a("s_cmp_eq_u32 s50, 0")
    a(f"s_cbranch_scc1 L_pollx_{tag}")
    a("s_cmp_eq_u64 vcc, 0")
    a(f"s_cbranch_scc1 L_pollx_{tag}")
    a("s_sleep 2")
    a(f"s_branch L_poll_{tag}")
    a.label(f"L_pollx_{tag}")

def set_flag(a, sfl, phase_off, novm=False):
    a("s_waitcnt lgkmcnt(0)" if novm else "s_waitcnt vmcnt(0) lgkmcnt(0)")
    a("s_barrier")
    lab = a.newlabel("L_nf")
    a("s_cmp_lg_u32 s33, 0")
    a(f"s_cbranch_scc1 {lab}")
    a("s_lshl_b32 s51, s2, 7")
    a(f"s_add_u32 s51, s51, {phase_off}")
    a("v_mov_b32 v244, 1")
    a("v_mov_b32 v245, 0")
    a("s_mov_b64 s[30:31], exec")
    a("s_mov_b64 exec, 1")
    a(f"buffer_store_dword v244, v245, s[{sfl}:{sfl+3}], s51 offen sc0 sc1")
    a("s_mov_b64 exec, s[30:31]")
    a.label(lab)

def sync_a(a, tag):
    a("s_cmp_lg_u32 s33, 7")
    a(f"s_cbranch_scc1 L_b_go_{tag}")
    a("s_load_dwordx2 s[90:91], s[0:1], 72")
    a("s_waitcnt lgkmcnt(0)")
    srd(a, 92, 90, 0, 256)
    a("v_mov_b32 v245, 0")
    a("s_mov_b32 s50, 400000")
    a.label(f"L_poll_z0_{tag}")
    a("buffer_load_dword v244, v245, s[92:95], 0 offen sc0 sc1")
    a("s_waitcnt vmcnt(0)")
    a("v_readfirstlane_b32 s51, v244")
    a("s_sub_u32 s50, s50, 1")
    a("s_cmp_eq_u32 s50, 0")
    a(f"s_cbranch_scc1 L_pollx_z0_{tag}")
    a("s_cmp_ge_u32 s51, 256")
    a(f"s_cbranch_scc1 L_pollx_z0_{tag}")
    a("s_sleep 2")
    a(f"s_branch L_poll_z0_{tag}")
    a.label(f"L_pollx_z0_{tag}")
    for i in range(4): a(f"v_mov_b32 v{252+i}, 0")
    poll_flags(a, f"a_{tag}", 56, 0, None, nld=[0, 1, 2, 3])
    a.label(f"L_b_go_{tag}")
    a("s_barrier")

def gen_gemm1(a):
    R = 5; NS = 32; SZ = 28672
    srd(a, 12, 4, 0, S * F * 2)
    srd(a, 16, 8, HT_OFF, HT_SZ)
    srd(a, 20, 8, U_OFF, U_SZ)
    srd(a, 24, 6, 0, F * 2)
    a("s_and_b32 s28, s2, 7")
    a("s_lshr_b32 s29, s2, 3")
    a("s_mul_i32 s28, s28, 27")
    a("s_add_u32 s28, s28, s29")
    a("s_mul_i32 s29, s28, 171")
    a("s_lshr_b32 s29, s29, 10")
    a("s_mul_i32 s30, s29, 6")
    a("s_sub_u32 s30, s28, s30")
    a("s_lshl_b32 s31, s29, 8")
    a("s_mul_i32 s32, s30, 1536")
    a("s_and_b32 s34, s33, 3")
    a("s_lshr_b32 s35, s33, 2")
    a("s_and_b32 s36, s34, 1")
    a("s_lshr_b32 s37, s34, 1")
    a("v_lshrrev_b32 v3, 4, v2")
    a("v_and_b32 v4, 15, v2")
    a("v_lshrrev_b32 v5, 2, v4")
    a("v_and_b32 v6, 3, v4")
    a("s_cmp_eq_u32 s35, 0")
    a("s_cbranch_scc1 L_g1_compute")
    a("s_lshl_b32 s38, s34, 4")
    a("v_add_u32 v9, s38, v3")
    a("s_mov_b32 s39, 9216")
    a("v_mul_lo_u32 v9, v9, s39")
    a("v_add_u32 v9, s31, v9")
    a("v_lshlrev_b32 v10, 1, v3")
    a("v_xor_b32 v11, v10, v4")
    a("v_lshlrev_b32 v11, 4, v11")
    a("v_add_u32 v20, v9, v11")
    a("v_xor_b32 v11, 8, v10")
    a("v_xor_b32 v11, v11, v4")
    a("v_lshlrev_b32 v11, 4, v11")
    a("v_add_u32 v21, v9, v11")
    for i in range(3):
        a("s_mul_i32 s38, s34, 192")
        a(f"s_add_u32 s38, s38, {64*i}")
        a("v_add_u32 v9, s38, v2")
        a("v_mul_u32_u24 v10, 683, v9")
        a("v_lshrrev_b32 v10, 16, v10")
        a("v_mul_u32_u24 v11, 96, v10")
        a("v_sub_u32 v11, v9, v11")
        a("v_mul_u32_u24 v10, 9216, v10")
        a("v_lshlrev_b32 v11, 4, v11")
        a("v_add_u32 v10, v10, v11")
        a(f"s_sub_u32 s38, s32, {1024*i}") if i else a("s_mov_b32 s38, s32")
        a(f"v_add_u32 v{22+i}, s38, v10")
    a("s_lshl_b32 s43, s34, 12")
    a("s_mul_i32 s46, s34, 3072")
    a("s_add_u32 s46, s46, 16384")
    a("s_mov_b32 s47, 0")
    a("s_mov_b32 s42, 0")
    if KROT:
        a("s_lshl_b32 s38, s30, 5")
        a("s_mul_i32 s38, s38, 171")
        a("s_lshr_b32 s38, s38, 10")
        a(f"s_mul_i32 s42, s38, {64*9216}")
        a(f"s_mul_i32 s47, s38, {8*9216}")
    def dma_w(wr):
        out = [f"s_add_u32 m0, s{wr}, s43"]
        for i in range(4):
            out.append(f"s_add_u32 s44, s42, {i*(4*9216-1024)}")
            out.append(f"buffer_load_dwordx4 v{20 + (i>>1)}, s[12:15], s44 offen offset:{1024*i} lds")
        out.append(f"s_add_u32 s42, s42, {64*9216}")
        out += [f"s_cmp_eq_u32 s42, {NS*64*9216}", "s_cselect_b32 s42, 0, s42"]
        return out
    def dma_h(wr):
        out = [f"s_add_u32 m0, s{wr}, s46", "s_nop 0"]
        for i in range(3):
            out.append(f"buffer_load_dwordx4 v{22+i}, s[16:19], s47 offen offset:{1024*i} lds")
        out.append(f"s_add_u32 s47, s47, {8*9216}")
        out += [f"s_cmp_eq_u32 s47, {NS*8*9216}", "s_cselect_b32 s47, 0, s47"]
        return out
    def dma(wr): return dma_w(wr) + dma_h(wr)
    def mid():
        sync_a(a, "g1")
    ring_loader(a, "g1", R, NS, SZ, 7, dma, done="L_g1_epi_ld", split=(dma_w, dma_h, 4, 3, mid))
    a.label("L_g1_compute")
    hook = None
    VW = [100, 101, 102, 103]; VH = 104
    VWc = [105, 106, 107, 108]; VHc = 109
    a("v_and_b32 v7, 1, v3")
    a("v_lshlrev_b32 v7, 2, v7")
    a("v_or_b32 v7, v7, v5")
    a("v_lshlrev_b32 v8, 3, v3")
    a("v_add_u32 v8, v8, v5")
    a("v_lshlrev_b32 v8, 8, v8")
    a("v_lshlrev_b32 v9, 3, v6")
    a("v_add_u32 v8, v8, v9")
    a("s_lshl_b32 s38, s36, 2")
    for fbk in range(4):
        a(f"s_add_u32 s39, s38, {fbk}")
        a(f"v_xor_b32 v9, s39, v7")
        a(f"v_lshlrev_b32 v9, 5, v9")
        a(f"v_add_u32 v{VW[fbk]}, v8, v9")
    a("v_mul_u32_u24 v9, 96, v3")
    a("s_mul_i32 s38, s37, 48")
    a("v_add_u32 v9, s38, v9")
    a("v_add_u32 v9, v9, v4")
    a("v_lshlrev_b32 v9, 4, v9")
    a(f"v_add_u32 v{VH}, 16384, v9")
    ACC = 16
    for i in range(48):
        a(f"v_mov_b32 v{ACC+i}, 0")
    FR = [112, 140]
    def acc(fbk, dbk):
        b = ACC + (fbk * 3 + dbk) * 4
        return f"v[{b}:{b+3}]"
    def mfmas(st):
        out = []
        for dbk in range(3):
            for fbk in range(4):
                w = FR[st] + 4 * fbk; h = FR[st] + 16 + 4 * dbk
                out.append(f"v_mfma_f32_16x16x32_bf16 {acc(fbk,dbk)}, v[{w}:{w+3}], v[{h}:{h+3}], {acc(fbk,dbk)}")
        return out
    def reads(st, sub):
        out = []
        for fbk in range(4):
            w = FR[st] + 4 * fbk
            out.append(f"ds_read_b64_tr_b16 v[{w}:{w+1}], v{VWc[fbk]} offset:{sub*8192}")
            out.append(f"ds_read_b64_tr_b16 v[{w+2}:{w+3}], v{VWc[fbk]} offset:{sub*8192+1024}")
        for dbk in range(3):
            h = FR[st] + 16 + 4 * dbk
            out.append(f"ds_read_b128 v[{h}:{h+3}], v{VHc} offset:{sub*6144+256*dbk}")
        return out
    def addr_upd(sreg):
        out = [f"v_add_u32 v{VWc[k]}, s{sreg}, v{VW[k]}" for k in range(4)]
        out.append(f"v_add_u32 v{VHc}, s{sreg}, v{VH}")
        return out
    ring_compute(a, "g1", R, NS, SZ, mfmas, reads, addr_upd, hook, mid=True)
    a("v_lshlrev_b32 v9, 4, v2")
    a("s_mul_i32 s38, s34, 6144")
    a("v_add_u32 v10, s38, v9")
    a("s_nop 4")
    for j in range(6):
        b = ACC + (6 + j) * 4
        a(f"ds_write_b128 v10, v[{b}:{b+3}] offset:{1024*j}")
    a("s_branch L_g1_epi")
    a.label("L_g1_epi_ld")
    a("v_lshlrev_b32 v9, 4, v2")
    a("s_mul_i32 s38, s34, 6144")
    a("v_add_u32 v10, s38, v9")
    a.label("L_g1_epi")
    a("s_lshl_b32 s38, s36, 7")
    a("s_add_u32 s38, s38, s31")
    a("s_lshl_b32 s39, s35, 6")
    a("s_add_u32 s38, s38, s39")
    a("v_lshlrev_b32 v12, 3, v3")
    for k in range(2):
        a(f"buffer_load_dwordx2 v[{64+2*k}:{65+2*k}], v12, s[24:27], s38 offen offset:{32*k}")
    k0 = -2.0 * math.log2(math.e) * math.sqrt(2.0 / math.pi)
    k1 = k0 * 0.044715
    a(f"s_mov_b32 s46, {fl(k0)}")
    a(f"s_mov_b32 s47, {fl(k1)}")
    a("v_mov_b32 v102, s46")
    a("s_lshl_b32 s38, s29, 4")
    a("s_lshl_b32 s39, s36, 3")
    a("s_add_u32 s38, s38, s39")
    a("s_lshl_b32 s39, s35, 2")
    a("s_add_u32 s38, s38, s39")
    a("v_lshrrev_b32 v12, 1, v3")
    a("v_add_u32 v12, s38, v12")
    a("v_mul_u32_u24 v12, 576, v12")
    a("s_mul_i32 s38, s37, 48")
    a("v_add_u32 v12, s38, v12")
    a("v_add_u32 v12, v12, v4")
    a("v_lshlrev_b32 v12, 4, v12")
    a("v_add_u32 v12, s32, v12")
    a("v_and_b32 v13, 1, v3")
    a("v_lshlrev_b32 v13, 3, v13")
    a("v_add_u32 v12, v12, v13")
    a("s_waitcnt lgkmcnt(0)")
    a("s_barrier")
    a("s_cmp_eq_u32 s35, 0")
    a("s_cbranch_scc1 L_g1_epi2")
    for j in range(6):
        b = ACC + j * 4
        a(f"ds_read_b128 v[{b}:{b+3}], v10 offset:{1024*j}")
    a.label("L_g1_epi2")
    a("s_waitcnt vmcnt(0) lgkmcnt(0)")
    for k in range(2):
        a(f"v_lshlrev_b32 v{80+4*k}, 16, v{64+2*k}")
        a(f"v_and_b32 v{81+4*k}, 0xffff0000, v{64+2*k}")
        a(f"v_lshlrev_b32 v{82+4*k}, 16, v{65+2*k}")
        a(f"v_and_b32 v{83+4*k}, 0xffff0000, v{65+2*k}")
    cnt = 0
    for k in range(2):
        for dbk in range(3):
            b = ACC + (k * 3 + dbk) * 4
            for r in (0, 2):
                round_bf16_pair(a, b + r, b + r + 1, 64)
                a(f"v_add_f32 v{b+r}, v{b+r}, v{80+4*k+r}")
                a(f"v_add_f32 v{b+r+1}, v{b+r+1}, v{80+4*k+r+1}")
                round_bf16_pair(a, b + r, b + r + 1, 65)
            for r in range(4):
                t = 66 + r
                a(f"v_mul_f32 v{t}, v{b+r}, v{b+r}")
                a(f"v_fma_f32 v{t}, v{t}, s47, v102")
                a(f"v_mul_f32 v{t}, v{t}, v{b+r}")
                a(f"v_exp_f32 v{t}, v{t}")
            for r in range(4):
                t = 66 + r
                a(f"v_add_f32 v{t}, 1.0, v{t}")
                a(f"v_rcp_f32 v{t}, v{t}")
            a("s_nop 0")
            for r in range(4):
                t = 66 + r
                a(f"v_mul_f32 v{t}, v{t}, v{b+r}")
            o = 70 + 2 * (cnt % 4); cnt += 1
            a(f"v_cvt_pk_bf16_f32 v{o}, v66, v67")
            a(f"v_cvt_pk_bf16_f32 v{o+1}, v68, v69")
            a(f"s_mov_b32 s38, {k*18432}")
            a(f"buffer_store_dwordx2 v[{o}:{o+1}], v12, s[20:23], s38 offen offset:{256*dbk} sc0 sc1")
    if not W2TAIL:
        a("s_branch L_phB_done")
    a("s_load_dwordx2 s[88:89], s[0:1], 48")
    a("s_and_b32 s48, s2, 7")
    a("s_lshr_b32 s49, s48, 1")
    a("s_mul_i32 s49, s49, 1152")
    a("s_and_b32 s48, s48, 1")
    a("s_lshl_b32 s48, s48, 11")
    a("s_lshr_b32 s50, s2, 3")
    a("s_lshl_b32 s50, s50, 3")
    a("s_add_u32 s50, s50, s33")
    a("s_lshl_b32 s51, s50, 2")
    a("s_add_u32 s49, s49, s51")
    a("v_add_u32 v30, s49, v3")
    a("v_lshlrev_b32 v30, 12, v30")
    a("v_lshlrev_b32 v31, 7, v4")
    a("v_add_u32 v30, v30, v31")
    a("v_add_u32 v30, s48, v30")
    a("s_waitcnt lgkmcnt(0)")
    srd(a, 92, 88, 0, S * F * 2)
    a("buffer_load_dword v110, v30, s[92:95], 0 offen")
    a("s_mov_b32 s52, 0x7f000000")
    a("s_cmp_lt_u32 s50, 72")
    a(f"s_cselect_b32 s51, {864*4096}, s52")
    a("buffer_load_dword v110, v30, s[92:95], s51 offen")
    a("s_waitcnt vmcnt(2)")
    a("s_branch L_phB_done2")

TB1 = 139264; TB2 = TB1 + 16384
def gen_colfft(a):
    srd(a, 12, 8, PT_OFF, PT_SZ)
    srd(a, 16, 8, WT_OFF, WT_SZ)
    srd(a, 20, 8, ZT_OFF, ZT_SZ)
    a("s_sub_u32 s28, s2, 216")
    a("s_lshl_b32 s28, s28, 3")
    a("s_add_u32 s28, s28, s33")
    a("s_lshl_b32 s29, s28, 6")
    a("v_lshrrev_b32 v14, 2, v2")
    a(f"v_mul_u32_u24 v14, {PBLK}, v14")
    a("v_and_b32 v15, 3, v2")
    a("v_lshlrev_b32 v15, 4, v15")
    a("v_add_u32 v14, v14, v15")
    a("s_lshl_b32 s30, s28, 13")
    a("v_lshlrev_b32 v3, 4, v2")
    a("v_lshlrev_b32 v4, 2, v2")
    for i in range(4):
        a(f"v_add_u32 v5, {512*i}, v0")
        a("v_lshrrev_b32 v6, 7, v5")
        a("v_and_b32 v7, 127, v5")
        a("v_mul_u32_u24 v6, v6, v7")
        a("v_cvt_f32_u32 v6, v6")
        a(f"v_mul_f32 v6, {fl(-1.0/2048)}, v6")
        a("v_cos_f32 v8, v6")
        a("v_sin_f32 v9, v6")
        a("v_lshlrev_b32 v5, 3, v5")
        a(f"v_add_u32 v5, {TB1}, v5")
        a("ds_write_b64 v5, v[8:9]")
    a("v_cmp_gt_u32 vcc, 128, v0")
    a("s_and_saveexec_b64 s[34:35], vcc")
    a("v_lshrrev_b32 v6, 3, v0")
    a("v_and_b32 v7, 7, v0")
    a("v_mul_u32_u24 v6, v6, v7")
    a("v_cvt_f32_u32 v6, v6")
    a(f"v_mul_f32 v6, {fl(-1.0/128)}, v6")
    a("v_cos_f32 v8, v6")
    a("v_sin_f32 v9, v6")
    a("v_lshlrev_b32 v5, 3, v0")
    a(f"v_add_u32 v5, {TB2}, v5")
    a("ds_write_b64 v5, v[8:9]")
    a("s_mov_b64 exec, s[34:35]")
    a("s_waitcnt lgkmcnt(0)")
    sync_a(a, "f")
    rstamp(a, 2)
    DQ = [16 + 4*i for i in range(16)]
    for aa in range(16):
        a(f"s_add_u32 s31, s29, {16*PBLK*aa}")
        a(f"buffer_load_dwordx4 v[{DQ[aa]}:{DQ[aa]+3}], v14, s[12:15], s31 offen")
    WR = 80
    for m in range(4):
        for kc in range(8):
            a(f"buffer_load_dword v{WR + 8*m + kc}, v4, s[16:19], s30 offen offset:{256*m + 1024*kc}") if 256*m + 1024*kc < 4096 else None
            if 256*m + 1024*kc >= 4096:
                a(f"s_add_u32 s31, s30, {1024*kc}")
                a(f"buffer_load_dword v{WR + 8*m + kc}, v4, s[16:19], s31 offen offset:{256*m}")
    a("s_cmp_ge_u32 s28, 289")
    a("s_cbranch_scc1 L_phB_done")
    a("s_mul_i32 s32, s33, 17408")
    a("v_add_u32 v5, s32, v3")
    a("v_lshrrev_b32 v10, 2, v2")
    a("v_and_b32 v11, 3, v2")
    a("v_mul_u32_u24 v6, 1088, v10")
    a("v_lshlrev_b32 v12, 4, v11")
    a("v_add_u32 v6, v6, v12")
    a("v_add_u32 v6, s32, v6")
    a("v_mul_u32_u24 v7, 4128, v11")
    a("v_lshlrev_b32 v13, 4, v10")
    a("v_add_u32 v7, v7, v13")
    a("v_add_u32 v7, s32, v7")
    a(f"v_add_u32 v8, {TB1}, v3")
    a(f"v_add_u32 v9, {TB2}, v12")
    TW = 112
    def tw_reads(vaddr, stride):
        for i in range(1, 16):
            a(f"ds_read_b128 v[{TW+4*i}:{TW+4*i+3}], v{vaddr} offset:{stride*i}")
    pool = P2(176, 256)
    g = FG(a, pool)
    def quads_to_c(h):
        return [((DQ[i] + 2*h, 1), (DQ[i] + 2*h + 1, 1)) for i in range(16)]
    tw_reads(8, 1024)
    a("s_waitcnt vmcnt(32)")
    def dft16_both(sgn):
        return [g.dft(quads_to_c(h), sgn) for h in range(2)]
    outs = dft16_both(-1)
    a("s_waitcnt lgkmcnt(0)")
    for k in range(16):
        for h in range(2):
            d = DQ[k] + 2*h
            if k == 0:
                g.mov(outs[h][0][0], d); g.mov(outs[h][0][1], d + 1); g.frc(outs[h][0])
            else:
                g.cmul(outs[h][k], TW + 4*k + 2*h, TW + 4*k + 2*h + 1, dst=d)
        a(f"ds_write_b128 v5, v[{DQ[k]}:{DQ[k]+3}] offset:{1088*k}")
    for b in range(16):
        a(f"ds_read_b128 v[{DQ[b]}:{DQ[b]+3}], v6 offset:{64*b}")
    tw_reads(9, 64)
    a("s_waitcnt lgkmcnt(15)")
    outs = dft16_both(-1)
    a("s_waitcnt lgkmcnt(0)")
    for k in range(16):
        for h in range(2):
            d = DQ[k] + 2*h
            if k == 0:
                g.mov(outs[h][0][0], d); g.mov(outs[h][0][1], d + 1); g.frc(outs[h][0])
            else:
                g.cmul(outs[h][k], TW + 4*k + 2*h, TW + 4*k + 2*h + 1, dst=d)
        a(f"ds_write_b128 v7, v[{DQ[k]}:{DQ[k]+3}] offset:{256*k}")
    for m in range(4):
        for cp in range(4):
            q = DQ[4*m + cp]
            a(f"ds_read_b128 v[{q}:{q+3}], v5 offset:{4128*cp + 1024*m}")
    a("s_waitcnt vmcnt(0) lgkmcnt(0)")
    if W2PF_FFT:
        a("s_load_dwordx2 s[88:89], s[0:1], 48")
        a("s_and_b32 s48, s2, 7")
        a("s_lshr_b32 s49, s48, 1")
        a("s_mul_i32 s49, s49, 1152")
        a("s_and_b32 s48, s48, 1")
        a("s_lshl_b32 s48, s48, 11")
        a("s_sub_u32 s50, s2, 216")
        a("s_lshr_b32 s50, s50, 3")
        a("s_lshl_b32 s50, s50, 3")
        a("s_add_u32 s50, s50, s33")
        a("s_lshl_b32 s50, s50, 5")
        a("s_add_u32 s49, s49, s50")
        a("v_lshrrev_b32 v10, 4, v2")
        a("v_add_u32 v10, s49, v10")
        a("v_lshlrev_b32 v10, 12, v10")
        a("v_and_b32 v11, 15, v2")
        a("v_lshlrev_b32 v11, 7, v11")
        a("v_add_u32 v10, v10, v11")
        a("v_add_u32 v10, s48, v10")
        a("s_waitcnt lgkmcnt(0)")
        srd(a, 92, 88, 0, S * F * 2)
        a("s_cmp_ge_u32 s50, 1152")
        a("s_cbranch_scc1 L_cf_nopf")
        for i in range(8):
            a(f"s_mov_b32 s51, {i*4*4096}")
            a(f"buffer_load_dword v13, v10, s[92:95], s51 offen")
        a.label("L_cf_nopf")
    for m in range(4):
        xs = []
        for c in range(8):
            q = DQ[4*m + (c >> 1)] + 2*(c & 1)
            xs.append(((q, 1), (q + 1, 1)))
        X = g.dft(xs, -1)
        Y = []
        for kc in range(8):
            w = WR + 8*m + kc
            wr = pool.alloc(); wi = pool.alloc()
            a(f"v_lshlrev_b32 v{wr}, 16, v{w}")
            a(f"v_and_b32 v{wi}, 0xffff0000, v{w}")
            Y.append(g.cmul(X[kc], wr, wi))
            pool.release(wr); pool.release(wi)
        dsts = [DQ[4*m + (c >> 1)] + 2*(c & 1) for c in range(8)]
        g.dft(Y, 1, dsts)
        for cp in range(4):
            q = DQ[4*m + cp]
            a(f"ds_write_b128 v5, v[{q}:{q+3}] offset:{4128*cp + 1024*m}")
    for kb in range(16):
        a(f"ds_read_b128 v[{DQ[kb]}:{DQ[kb]+3}], v7 offset:{256*kb}")
    a("s_waitcnt lgkmcnt(0)")
    def twiddle_in(conj):
        res = [[], []]
        for k in range(16):
            for h in range(2):
                q = DQ[k] + 2*h
                x = ((q, 1), (q + 1, 1))
                if k == 0: res[h].append(x)
                else: res[h].append(g.cmul(x, TW + 4*k + 2*h, TW + 4*k + 2*h + 1, conj=conj))
        return res
    xin = twiddle_in(True)
    tw_reads(8, 1024)
    for h in range(2):
        g.dft(xin[h], 1, [DQ[b] + 2*h for b in range(16)])
    for b in range(16):
        a(f"ds_write_b128 v6, v[{DQ[b]}:{DQ[b]+3}] offset:{64*b}")
    for ka in range(16):
        a(f"ds_read_b128 v[{DQ[ka]}:{DQ[ka]+3}], v5 offset:{1088*ka}")
    a("s_waitcnt lgkmcnt(0)")
    xin = twiddle_in(True)
    for h in range(2):
        g.dft(xin[h], 1, [DQ[aa] + 2*h for aa in range(16)])
    a("v_lshrrev_b32 v15, 3, v2")
    a(f"v_mul_u32_u24 v15, {ZBLK}, v15")
    a("v_and_b32 v13, 7, v2")
    a("v_lshlrev_b32 v13, 4, v13")
    a("v_add_u32 v15, v15, v13")
    a("s_lshl_b32 s38, s28, 7")
    for aa in range(16):
        a(f"s_add_u32 s31, s38, {8*ZBLK*aa}")
        a(f"buffer_store_dwordx4 v[{DQ[aa]}:{DQ[aa]+3}], v15, s[20:23], s31 offen sc0 sc1")
    a("s_branch L_phB_done")

def rstamp(a, i):
    if "stamp" in DBG:
        a(f"s_memrealtime s[{60+2*i}:{61+2*i}]")

def phase_c2(a):
    R = 4; NS = 18; SZ = 34816
    a("s_and_b32 s28, s2, 7")
    a("s_lshr_b32 s29, s2, 3")
    a("s_lshr_b32 s30, s28, 1")
    a("s_and_b32 s31, s28, 1")
    a("s_lshl_b32 s31, s31, 3")
    a("s_lshr_b32 s32, s29, 2")
    a("s_add_u32 s31, s31, s32")
    a("s_and_b32 s32, s29, 3")
    a("s_and_b32 s34, s33, 3")
    a("s_lshr_b32 s35, s33, 2")
    a("v_lshrrev_b32 v3, 4, v2")
    a("v_and_b32 v4, 15, v2")
    a("v_lshrrev_b32 v5, 2, v4")
    a("v_and_b32 v6, 3, v4")
    srd(a, 12, 4, 0, S * F * 2)
    srd(a, 16, 8, U_OFF, U_SZ)
    srd(a, 20, 8, PART_OFF, PART_SZ)
    a("s_cmp_eq_u32 s35, 0")
    a("s_cbranch_scc1 L_g2_compute")
    a("s_mul_i32 s38, s30, 1152")
    a("s_lshl_b32 s39, s34, 4")
    a("s_add_u32 s38, s38, s39")
    a("v_add_u32 v9, s38, v3")
    a("v_lshlrev_b32 v9, 12, v9")
    a("s_lshl_b32 s39, s31, 8")
    a("v_add_u32 v9, s39, v9")
    a("v_lshlrev_b32 v10, 1, v3")
    a("v_xor_b32 v11, v10, v4")
    a("v_lshlrev_b32 v11, 4, v11")
    a("v_add_u32 v20, v9, v11")
    a("v_xor_b32 v11, 8, v10")
    a("v_xor_b32 v11, v11, v4")
    a("v_lshlrev_b32 v11, 4, v11")
    a("v_add_u32 v21, v9, v11")
    a("s_lshl_b32 s43, s34, 12")
    a("s_mov_b32 s42, 0")
    a("s_mov_b32 s47, 0")
    if KROT3:
        a("s_mul_i32 s38, s32, 9")
        a("s_lshr_b32 s38, s38, 1")
        a(f"s_mul_i32 s42, s38, {64*4096}")
        a(f"s_mul_i32 s47, s38, {8*9216}")
    a("s_cmp_lt_u32 s34, 2")
    a("s_cbranch_scc1 L_g2_v1")
    a("s_branch L_g2_v2")
    for var in (1, 2):
        a.label(f"L_g2_v{var}")
        n = 5 if var == 1 else 4
        for i in range(n):
            if var == 1:
                a("s_mul_i32 s38, s34, 320")
                a(f"s_add_u32 s38, s38, {64*i}")
            else:
                a("s_lshl_b32 s38, s34, 8")
                a(f"s_add_u32 s38, s38, {640 - 512 + 64*i}")
            a("v_add_u32 v9, s38, v2")
            a("v_mul_u32_u24 v10, 3641, v9")
            a("v_lshrrev_b32 v10, 19, v10")
            a("v_mul_u32_u24 v11, 144, v10")
            a("v_sub_u32 v11, v9, v11")
            a("v_mul_u32_u24 v10, 9216, v10")
            a("v_lshlrev_b32 v11, 4, v11")
            a("v_add_u32 v10, v10, v11")
            a(f"s_mul_i32 s38, s30, {144*9216}")
            a("s_mul_i32 s39, s32, 2304")
            a("s_add_u32 s38, s38, s39")
            if i & 3:
                a(f"s_sub_u32 s38, s38, {1024*(i&3)}")
            a(f"v_add_u32 v{22+i}, s38, v10")
        if var == 1:
            a("s_mul_i32 s46, s34, 5120")
            a("s_add_u32 s46, s46, 16384")
        else:
            a("s_lshl_b32 s46, s34, 12")
            a(f"s_add_u32 s46, s46, {16384 + 10240 - 8192}")
        def dma_w(wr):
            out = [f"s_add_u32 m0, s{wr}, s43"]
            for i in range(4):
                out.append(f"s_add_u32 s44, s42, {i*(4*4096-1024)}")
                out.append(f"buffer_load_dwordx4 v{20 + (i>>1)}, s[12:15], s44 offen offset:{1024*i} lds")
            out.append(f"s_add_u32 s42, s42, {64*4096}")
            out += [f"s_cmp_eq_u32 s42, {NS*64*4096}", "s_cselect_b32 s42, 0, s42"]
            return out
        def dma_u(wr, n=n):
            out = [f"s_add_u32 m0, s{wr}, s46", "s_nop 0"]
            for i in range(n):
                if i == 4:
                    out.append("s_add_u32 m0, m0, 4096")
                    out.append("s_nop 0")
                out.append(f"buffer_load_dwordx4 v{22+i}, s[16:19], s47 offen offset:{1024*(i&3)} lds")
            out.append(f"s_add_u32 s47, s47, {8*9216}")
            out += [f"s_cmp_eq_u32 s47, {NS*8*9216}", "s_cselect_b32 s47, 0, s47"]
            return out
        def dma(wr): return dma_w(wr) + dma_u(wr)
        def mid(var=var):
            if var == 2:
                a("s_cmp_lg_u32 s33, 7")
                a("s_cbranch_scc1 L_c2_go")
                for i in range(3): a(f"v_mov_b32 v{252+i}, 0")
                a("v_cmp_le_u32 vcc, 24, v2")
                a("s_nop 1")
                a("v_cndmask_b32 v255, 0, 1, vcc")
                poll_flags(a, "u", 56, 32768, None, nld=[0, 1, 2, 3])
                a.label("L_c2_go")
            a("s_barrier")
        ring_loader(a, f"g2v{var}", R, NS, SZ, 4 + n, dma, done="L_phC_done", split=(dma_w, dma_u, 4, n, mid))
    a.label("L_g2_compute")
    VW = [100, 101]; VU = 102; VWc = [103, 104]; VUc = 105
    a("v_and_b32 v7, 1, v3")
    a("v_lshlrev_b32 v7, 2, v7")
    a("v_or_b32 v7, v7, v5")
    a("v_lshlrev_b32 v8, 3, v3")
    a("v_add_u32 v8, v8, v5")
    a("v_lshlrev_b32 v8, 8, v8")
    a("v_lshlrev_b32 v9, 3, v6")
    a("v_add_u32 v8, v8, v9")
    a("s_lshl_b32 s38, s34, 1")
    for sbk in range(2):
        a(f"s_add_u32 s39, s38, {sbk}")
        a(f"v_xor_b32 v9, s39, v7")
        a(f"v_lshlrev_b32 v9, 5, v9")
        a(f"v_add_u32 v{VW[sbk]}, v8, v9")
    a("v_mul_u32_u24 v9, 144, v3")
    a("v_add_u32 v9, v9, v4")
    a("v_lshlrev_b32 v9, 4, v9")
    a(f"v_add_u32 v{VU}, 16384, v9")
    ACC = 16
    for i in range(72):
        a(f"v_mov_b32 v{ACC+i}, 0")
    FR = [112, 156]
    def acc(dbk, sbk):
        b = ACC + (dbk * 2 + sbk) * 4
        return f"v[{b}:{b+3}]"
    def mfmas(st):
        out = []
        for dbk in range(9):
            for sbk in range(2):
                w = FR[st] + 4 * sbk; u = FR[st] + 8 + 4 * dbk
                out.append(f"v_mfma_f32_16x16x32_bf16 {acc(dbk,sbk)}, v[{u}:{u+3}], v[{w}:{w+3}], {acc(dbk,sbk)}")
        return out
    def reads(st, sub):
        out = []
        for sbk in range(2):
            w = FR[st] + 4 * sbk
            out.append(f"ds_read_b64_tr_b16 v[{w}:{w+1}], v{VWc[sbk]} offset:{sub*8192}")
            out.append(f"ds_read_b64_tr_b16 v[{w+2}:{w+3}], v{VWc[sbk]} offset:{sub*8192+1024}")
        for dbk in range(9):
            u = FR[st] + 8 + 4 * dbk
            out.append(f"ds_read_b128 v[{u}:{u+3}], v{VUc} offset:{sub*9216+256*dbk}")
        return out
    def addr_upd(sreg):
        out = [f"v_add_u32 v{VWc[k]}, s{sreg}, v{VW[k]}" for k in range(2)]
        out.append(f"v_add_u32 v{VUc}, s{sreg}, v{VU}")
        return out
    ring_compute(a, "g2", R, NS, SZ, mfmas, reads, addr_upd, mid=True)
    a("s_lshl_b32 s38, s30, 11")
    a("s_lshl_b32 s39, s31, 7")
    a("s_add_u32 s38, s38, s39")
    a("s_lshl_b32 s39, s34, 5")
    a("s_add_u32 s38, s38, s39")
    a("v_add_u32 v12, s38, v4")
    a("s_mov_b32 s39, 2304")
    a("v_mul_lo_u32 v12, v12, s39")
    a("s_mul_i32 s38, s32, 576")
    a("v_add_u32 v12, s38, v12")
    a("v_lshlrev_b32 v13, 4, v3")
    a("v_add_u32 v12, v12, v13")
    a(f"s_mov_b32 s39, {16*2304}")
    a("s_nop 3")
    for dbk in range(9):
        for sbk in range(2):
            b = ACC + (dbk * 2 + sbk) * 4
            so = "s39" if sbk else "0"
            a(f"buffer_store_dwordx4 v[{b}:{b+3}], v12, s[20:23], {so} offen offset:{64*dbk} sc0 sc1")

def phase_d(a):
    RA = 0; RB = 20736; RY = 41472; QS = 5184; QS3 = 4672
    a("s_mov_b32 s40, s33")
    a("s_load_dwordx2 s[4:5], s[0:1], 0")
    a("s_load_dwordx2 s[6:7], s[0:1], 56")
    a("s_load_dwordx2 s[10:11], s[0:1], 64")
    srd(a, 36, 8, ZT_OFF, ZT_SZ)
    srd(a, 20, 8, PART_OFF, PART_SZ)
    a("v_mul_u32_u24 v3, 911, v0")
    a("v_lshrrev_b32 v3, 16, v3")
    a("v_mul_u32_u24 v4, 72, v3")
    a("v_sub_u32 v4, v0, v4")
    a("v_lshrrev_b32 v5, 3, v4")
    a("v_and_b32 v6, 7, v4")
    a(f"v_mul_u32_u24 v7, {QS}, v3")
    a("v_mul_u32_u24 v8, 576, v5")
    a("v_add_u32 v7, v7, v8")
    a("s_cmp_lg_u32 s33, 7")
    a("s_cbranch_scc1 L_d_go")
    a("v_add_u32 v255, 192, v2")
    a("v_subrev_u32 v255, 216, v255")
    a("v_cmp_lt_u32 vcc, 36, v255")
    a("s_nop 1")
    a("v_cndmask_b32 v255, 0, 1, vcc")
    poll_flags(a, "z", 56, 32768, None, nld=[3])
    a.label("L_d_go")
    a("s_barrier")
    a("s_lshr_b32 s42, s2, 1")
    a(f"s_mul_i32 s42, s42, {ZBLK}")
    a("s_and_b32 s43, s2, 1")
    a("s_lshl_b32 s43, s43, 6")
    a("s_add_u32 s42, s42, s43")
    for rnd in range(3):
        a(f"v_add_u32 v10, {512*rnd}, v0")
        a("v_lshrrev_b32 v11, 2, v10")
        a("v_lshlrev_b32 v11, 7, v11")
        a("v_and_b32 v12, 3, v10")
        a("v_lshlrev_b32 v12, 4, v12")
        a("v_add_u32 v13, v11, v12")
        a(f"buffer_load_dwordx4 v[{100+4*rnd}:{103+4*rnd}], v13, s[36:39], s42 offen")
    a("v_cvt_f32_u32 v60, v6")
    for c in range(1, 8):
        a(f"v_mul_f32 v61, {fl(c/64.0)}, v60")
        a(f"v_cos_f32 v{80+2*c}, v61")
        a(f"v_sin_f32 v{81+2*c}, v61")
    a("s_waitcnt vmcnt(0) lgkmcnt(0)")
    srd(a, 12, 4, 0, S * D * 2)
    srd(a, 16, 6, 0, S * 2)
    srd(a, 24, 10, 0, S * D * 2)
    for rnd in range(3):
        b = 100 + 4 * rnd
        a(f"v_add_u32 v10, {512*rnd}, v0")
        if rnd == 2:
            a("v_cmp_gt_u32 vcc, 1156, v10")
            a("s_and_saveexec_b64 s[30:31], vcc")
        a("v_lshrrev_b32 v11, 2, v10")
        a("v_and_b32 v12, 3, v10")
        a(f"v_mul_u32_u24 v13, {QS3}, v12")
        a("v_cmp_eq_u32 vcc, 0, v11")
        a("v_mov_b32 v17, 288")
        a("v_cmp_eq_u32 s[28:29], v17, v11")
        a("s_or_b64 vcc, vcc, s[28:29]")
        a("v_sub_u32 v14, 576, v11")
        a("v_lshlrev_b32 v18, 3, v11")
        a("v_cndmask_b32_e64 v%d, v%d, 0, vcc" % (b+1, b+1))
        a("v_cndmask_b32_e64 v%d, v%d, 0, vcc" % (b+3, b+3))
        a("v_add_u32 v18, v18, v13")
        a("v_lshlrev_b32 v14, 3, v14")
        a("v_add_u32 v14, v14, v13")
        a(f"v_sub_f32 v20, v{b}, v{b+3}")
        a(f"v_add_f32 v21, v{b+1}, v{b+2}")
        a(f"v_add_f32 v22, v{b}, v{b+3}")
        a(f"v_sub_f32 v23, v{b+2}, v{b+1}")
        a(f"ds_write_b64 v18, v[20:21] offset:{RA}")
        a(f"ds_write_b64 v14, v[22:23] offset:{RA}")
    a("s_mov_b64 exec, s[30:31]")
    a("s_waitcnt lgkmcnt(0)")
    a("s_barrier")
    rstamp(a, 5)
    a("s_cmp_ge_u32 s33, 5")
    a("s_cbranch_scc1 L_d_red")
    a("v_cmp_gt_u32 vcc, 288, v0")
    a("s_and_saveexec_b64 s[30:31], vcc")
    a(f"v_mul_u32_u24 v22, {QS3}, v3")
    a("v_mul_u32_u24 v23, 9, v6")
    a("v_add_u32 v23, v23, v5")
    a("v_lshlrev_b32 v23, 3, v23")
    a("v_add_u32 v22, v22, v23")
    for e in range(8):
        a(f"ds_read_b64 v[{30+2*e}:{31+2*e}], v22 offset:{RA + 576*e}")
    a("v_lshlrev_b32 v20, 3, v6")
    a("v_add_u32 v20, v7, v20")
    a("v_mul_u32_u24 v21, 72, v6")
    a("v_add_u32 v21, v7, v21")
    a("s_waitcnt lgkmcnt(0)")
    pool = P2(200, 244); g = FG(a, pool)
    ys = g.dft([((30+2*b, 1), (31+2*b, 1)) for b in range(8)], 1)
    for aa in range(8):
        d = 60 + 2 * aa
        if aa == 0:
            g.mov(ys[0][0], d); g.mov(ys[0][1], d + 1); g.frc(ys[0])
        else:
            g.cmul(ys[aa], 80 + 2*aa, 81 + 2*aa, dst=d)
    for aa in range(8):
        d = 60 + 2 * aa
        a(f"ds_write_b64 v20, v[{d}:{d+1}] offset:{RB + 72*aa}")
    a("s_waitcnt lgkmcnt(0)")
    a("s_barrier")
    for c in range(8):
        a(f"ds_read_b64 v[{30+2*c}:{31+2*c}], v21 offset:{RB + 8*c}")
    a("s_waitcnt lgkmcnt(0)")
    pool = P2(200, 244); g = FG(a, pool)
    g.dft([((30+2*b, 1), (31+2*b, 1)) for b in range(8)], 1, [60 + 2*b for b in range(8)])
    for b in range(8):
        d = 60 + 2 * b
        a(f"ds_write_b64 v20, v[{d}:{d+1}] offset:{RA + 64*b}")
    a("s_mov_b64 exec, s[30:31]")
    a("v_cvt_f32_u32 v60, v2")
    for k1 in range(1, 9):
        a(f"v_mul_f32 v61, {fl(k1/576.0)}, v60")
        a(f"v_cos_f32 v{80+2*k1}, v61")
        a(f"v_sin_f32 v{81+2*k1}, v61")
    a("s_waitcnt lgkmcnt(0)")
    a("s_barrier")
    a("s_cmp_ge_u32 s40, 4")
    a("s_cbranch_scc1 L_d_skip1")
    a(f"s_mul_i32 s43, s40, {QS}")
    a("v_lshlrev_b32 v10, 3, v2")
    a("v_add_u32 v10, s43, v10")
    for k1 in range(9):
        a(f"ds_read_b64 v[{30+2*k1}:{31+2*k1}], v10 offset:{RA + 576*k1}")
    a("s_waitcnt lgkmcnt(0)")
    pool = P2(200, 244); g = FG(a, pool)
    xs = []
    for k1 in range(9):
        x = ((30+2*k1, 1), (31+2*k1, 1))
        xs.append(x if k1 == 0 else g.cmul(x, 80 + 2*k1, 81 + 2*k1))
    g.dft(xs, 1, [60 + 2*n for n in range(9)])
    sc = fl(1.0 / (2.0 * 2048 * 576))
    for n in range(9):
        a(f"v_mul_f32 v{60+2*n}, {sc}, v{60+2*n}")
        a(f"v_mul_f32 v{61+2*n}, {sc}, v{61+2*n}")
        round_bf16_pair(a, 60 + 2*n, 61 + 2*n, 17 + (n & 1))
    a("s_mul_i32 s43, s40, 4608")
    a("v_lshlrev_b32 v10, 2, v2")
    a("v_add_u32 v10, s43, v10")
    for n in range(9):
        a(f"ds_write_b32 v10, v{60+2*n} offset:{RB + 256*n}")
        a(f"ds_write_b32 v10, v{61+2*n} offset:{RB + 2304 + 256*n}")
    a.label("L_d_skip1")
    a("s_waitcnt lgkmcnt(0)")
    a("s_barrier")
    a("s_branch L_k2_end")
    a.label("L_d_red")
    a("s_cmp_lg_u32 s33, 7")
    a("s_cbranch_scc1 L_d_red2")
    a("s_lshl_b32 s51, s2, 7")
    a("s_add_u32 s51, s51, 65536")
    a("v_mov_b32 v244, 1")
    a("v_mov_b32 v245, 0")
    a("s_mov_b64 s[30:31], exec")
    a("s_mov_b64 exec, 1")
    a("buffer_store_dword v244, v245, s[56:59], s51 offen sc0 sc1")
    a("s_mov_b64 exec, s[30:31]")
    a.label("L_d_red2")
    a("s_lshr_b32 s52, s2, 4")
    a("v_lshrrev_b32 v240, 2, v2")
    a("v_lshlrev_b32 v240, 1, v240")
    a("s_lshr_b32 s53, s52, 3")
    a("v_add_u32 v240, s53, v240")
    a("s_and_b32 s53, s52, 7")
    a("s_lshl_b32 s53, s53, 2")
    a("v_and_b32 v241, 3, v2")
    a("v_add_u32 v241, s53, v241")
    a("v_lshlrev_b32 v241, 3, v241")
    a("v_add_u32 v240, v240, v241")
    a("v_lshlrev_b32 v240, 7, v240")
    a("v_cmp_le_u32 vcc, 16, v2")
    a("s_nop 1")
    a("v_cndmask_b32 v242, 0, 1, vcc")
    a("v_subrev_u32 v1, 320, v0")
    a(f"s_mul_i32 s32, s2, {4608*4}")
    a(f"s_mul_i32 s34, s2, {4608*2}")
    a("v_lshlrev_b32 v15, 4, v1")
    a("v_lshlrev_b32 v9, 3, v1")
    for m in range(6):
        a(f"s_add_u32 s35, s34, {m*1536}")
        a(f"buffer_load_dwordx2 v[{20+2*m}:{21+2*m}], v9, s[12:15], s35 offen")
        a(f"v_add_u32 v10, {192*m}, v1")
        a("v_mul_u32_u24 v10, 3641, v10")
        a("v_lshrrev_b32 v10, 19, v10")
        a("v_lshlrev_b32 v10, 1, v10")
        a("s_lshl_b32 s35, s2, 4")
        a(f"buffer_load_ushort v{32+m}, v10, s[16:19], s35 offen")
    a("s_barrier")
    a("s_barrier")
    a("s_mov_b32 s50, 400000")
    a("s_mov_b32 s51, 65536")
    a.label("L_poll_d")
    a("buffer_load_dword v243, v240, s[56:59], s51 offen sc0 sc1")
    a("s_waitcnt vmcnt(0)")
    a("v_or_b32 v243, v243, v242")
    a("v_cmp_eq_u32 vcc, 0, v243")
    a("s_sub_u32 s50, s50, 1")
    a("s_cmp_eq_u32 s50, 0")
    a("s_cbranch_scc1 L_pollx_d")
    a("s_cmp_eq_u64 vcc, 0")
    a("s_cbranch_scc1 L_pollx_d")
    a("s_sleep 2")
    a("s_branch L_poll_d")
    a.label("L_pollx_d")
    PB = 100
    for m in range(6):
        for ks in range(4):
            a(f"s_add_u32 s35, s32, {ks*2048*2304 + m*3072}")
            a(f"buffer_load_dwordx4 v[{PB+16*m+4*ks}:{PB+3+16*m+4*ks}], v15, s[20:23], s35 offen")
    a("s_waitcnt vmcnt(0)")
    for m in range(6):
        b = PB + 16 * m
        for r in range(4):
            a(f"v_add_f32 v{b+r}, v{b+r}, v{b+4+r}")
            a(f"v_add_f32 v{b+8+r}, v{b+8+r}, v{b+12+r}")
            a(f"v_add_f32 v{b+r}, v{b+r}, v{b+8+r}")
        a(f"v_lshlrev_b32 v{32+m}, 16, v{32+m}")
        round_bf16_pair(a, b, b + 1, 4)
        round_bf16_pair(a, b + 2, b + 3, 5)
        for r in range(4):
            a(f"v_add_f32 v{b+r}, v{b+r}, v{32+m}")
        round_bf16_pair(a, b, b + 1, 4)
        round_bf16_pair(a, b + 2, b + 3, 5)
        a(f"v_lshlrev_b32 v{b+4}, 16, v{20+2*m}")
        a(f"v_and_b32 v{b+5}, 0xffff0000, v{20+2*m}")
        a(f"v_lshlrev_b32 v{b+6}, 16, v{21+2*m}")
        a(f"v_and_b32 v{b+7}, 0xffff0000, v{21+2*m}")
    a("s_barrier")
    for m in range(6):
        a(f"ds_read_b128 v[{40+4*m}:{43+4*m}], v15 offset:{RB + 3072*m}")
    a("s_waitcnt lgkmcnt(0)")
    rstamp(a, 6)
    for m in range(6):
        b = PB + 16 * m
        for r in range(4):
            a(f"v_add_f32 v{b+4+r}, v{b+4+r}, v{40+4*m+r}")
        round_bf16_pair(a, b + 4, b + 5, 4)
        round_bf16_pair(a, b + 6, b + 7, 5)
        for r in range(4):
            a(f"v_add_f32 v{b+r}, v{b+r}, v{b+4+r}")
        a(f"v_cvt_pk_bf16_f32 v{b+8}, v{b}, v{b+1}")
        a(f"v_cvt_pk_bf16_f32 v{b+9}, v{b+2}, v{b+3}")
        a(f"s_add_u32 s35, s34, {m*1536}")
        a(f"buffer_store_dwordx2 v[{b+8}:{b+9}], v9, s[24:27], s35 offen")

KNAME = "parallel_sum__spectral_gfnet__mixer_token_mlp__prompt_kernel"
def gen_k2(a):
    name = KNAME
    kernel_begin(a, name)
    rstamp(a, 0)
    a("s_cmp_ge_u32 s2, 256")
    a("s_cbranch_scc1 L_k2_end")
    a("s_load_dwordx2 s[8:9], s[0:1], 80")
    a("v_lshrrev_b32 v1, 6, v0")
    a("v_and_b32 v2, 63, v0")
    a("s_nop 0")
    a("v_readfirstlane_b32 s33, v1")
    a("s_waitcnt lgkmcnt(0)")
    srd(a, 56, 8, FL_OFF, FL_SZ)
    phase_a(a)
    a.label("L_phA_done")
    a("s_waitcnt vmcnt(0)")
    a.label("L_phA_done2")
    a("s_load_dwordx2 s[4:5], s[0:1], 32")
    a("s_load_dwordx2 s[6:7], s[0:1], 40")
    a("s_load_dwordx2 s[42:43], s[0:1], 72")
    set_flag(a, 56, 0, novm=True)
    rstamp(a, 1)
    a("s_cmp_lt_u32 s2, 253")
    a("s_cbranch_scc1 L_b_busy")
    sync_a(a, "i")
    a("s_branch L_phB_done")
    a.label("L_b_busy")
    a("s_cmp_ge_u32 s2, 216")
    a("s_cbranch_scc1 L_k2_fft")
    gen_gemm1(a)
    a.label("L_k2_fft")
    gen_colfft(a)
    a.label("L_phB_done")
    a("s_waitcnt vmcnt(0)")
    a.label("L_phB_done2")
    rstamp(a, 3)
    a("s_load_dwordx2 s[4:5], s[0:1], 48")
    set_flag(a, 56, 32768, novm=True)
    phase_c2(a)
    a.label("L_phC_done")
    rstamp(a, 4)
    phase_d(a)
    rstamp(a, 7)
    if "stamp" in DBG:
        a("s_waitcnt vmcnt(0) lgkmcnt(0)")
        a("s_cmp_lg_u32 s40, 7")
        a("s_cbranch_scc1 L_k2_end")
        a("s_mov_b64 exec, 1")
        stamp_flush(a, 8, 8, 0)
    a.label("L_k2_end")
    a("s_endpgm")
    return name, 256

def main(out):
    a = Asm()
    hdr = open("parallel_sum__spectral_gfnet__mixer_token_mlp__prompt.s.ref").read().split("\n")
    for l in hdr:
        if l.startswith("; @launch"):
            break
        a.raw(l)
    a.raw("; @launch grid=(256,1,1) block=(512,1,1) lds=156672")
    a.raw('.amdgcn_target "amdgcn-amd-amdhsa--gfx950"')
    a.raw(".text")
    ks = [gen_k2(a)]
    a.raw('.section .rodata,"a"')
    for n, v in ks:
        kd(a, n, v)
    open(out, "w").write(a.text())

if __name__ == "__main__":
    for x in sys.argv[2:]: DBG.add(x)
    main(sys.argv[1] if len(sys.argv) > 1 else "parallel_sum__spectral_gfnet__mixer_token_mlp__prompt.s")
```

```python
import math, sys
from fftlib import Pool, FG

S, D, F = 2048, 576, 4608
DF = 289
HT_OFF = 0;                 HT_SZ = 256 * 576 * 16
U_OFF = 0x400000;           U_SZ = 576 * 576 * 16
PART_OFF = 0x1000000;       PART_SZ = 4 * 2048 * 576 * 4
PT_OFF = 0x3000000;         PBLK = 290 * 64; PT_SZ = 256 * PBLK
WT_OFF = 0x3800000;         WT_SZ = 289 * 2048 * 4
ZT_OFF = 0x4000000;         ZBLK = 290 * 128; ZT_SZ = 128 * ZBLK
YA_OFF = 0x4800000;         YA_SZ = 2048 * 576 * 2
FL_OFF = 0x5000000;         FL_SZ = 3 * 256 * 128

class Asm:
    def __init__(self):
        self.lines = []
        self.lab = 0
    def __call__(self, s):
        for l in s.strip("\n").split("\n"):
            self.lines.append("    " + l.strip())
    def label(self, name):
        self.lines.append(name + ":")
    def newlabel(self, p="L"):
        self.lab += 1
        return f"{p}_{self.lab}"
    def raw(self, s):
        self.lines.append(s)
    def text(self):
        return "\n".join(self.lines) + "\n"

def f32bits(x):
    import struct
    return struct.unpack("<I", struct.pack("<f", x))[0]
def fl(x):
    return "0x%08x" % f32bits(x)

def srd(a, sd, sbase, off, size):
    if off:
        a(f"s_add_u32 s{sd}, s{sbase}, {off}")
        a(f"s_addc_u32 s{sd+1}, s{sbase+1}, 0")
    else:
        a(f"s_mov_b32 s{sd}, s{sbase}")
        a(f"s_mov_b32 s{sd+1}, s{sbase+1}")
    a(f"s_mov_b32 s{sd+2}, {size}")
    a(f"s_mov_b32 s{sd+3}, 0x00020000")

def kernel_begin(a, name):
    a.raw(f".globl {name}")
    a.raw(".p2align 8")
    a.raw(f".type {name},@function")
    a.label(name)

def kd(a, name, vgpr, sgpr=102):
    acc = (vgpr + 3) // 4 * 4
    a.raw(".p2align 6")
    a.raw(f".amdhsa_kernel {name}")
    a.raw(f"  .amdhsa_next_free_vgpr {vgpr}")
    a.raw(f"  .amdhsa_next_free_sgpr {sgpr}")
    a.raw(f"  .amdhsa_accum_offset {acc}")
    a.raw("  .amdhsa_group_segment_fixed_size 0")
    a.raw("  .amdhsa_float_denorm_mode_32 3")
    a.raw("  .amdhsa_kernarg_size 88")
    a.raw("  .amdhsa_user_sgpr_count 2")
    a.raw("  .amdhsa_user_sgpr_kernarg_segment_ptr 1")
    a.raw("  .amdhsa_system_sgpr_workgroup_id_x 1")
    a.raw(".end_amdhsa_kernel")

def wave_reduce(a, vregs, sregs):
    for ctrl in ["row_shr:1", "row_shr:2", "row_shr:4", "row_shr:8"]:
        for v in vregs:
            a(f"v_add_f32_dpp v{v}, v{v}, v{v} {ctrl} row_mask:0xf bank_mask:0xf bound_ctrl:0")
        if len(vregs) < 3:
            a("s_nop 1")
    for v in vregs:
        a(f"v_add_f32_dpp v{v}, v{v}, v{v} row_bcast:15 row_mask:0xa bank_mask:0xf")
    if len(vregs) < 3:
        a("s_nop 1")
    for v in vregs:
        a(f"v_add_f32_dpp v{v}, v{v}, v{v} row_bcast:31 row_mask:0xc bank_mask:0xf")
    a("s_nop 1")
    for v, s in zip(vregs, sregs):
        a(f"v_readlane_b32 s{s}, v{v}, 63")

def round_bf16_pair(a, va, vb, vt):
    a(f"v_cvt_pk_bf16_f32 v{vt}, v{va}, v{vb}")
    a(f"v_lshlrev_b32 v{va}, 16, v{vt}")
    a(f"v_and_b32 v{vb}, 0xffff0000, v{vt}")

def layernorm_pair(a, xa, xb, oa, ob, t0, sbase):
    T = [t0 + i for i in range(12)]
    s0, s1, s2, s3 = sbase, sbase + 1, sbase + 2, sbase + 3
    a(f"v_add_f32 v{T[0]}, v{xa[0]}, v{xa[1]}")
    a(f"v_add_f32 v{T[1]}, v{xb[0]}, v{xb[1]}")
    for i in range(2, 9):
        a(f"v_add_f32 v{T[0]}, v{T[0]}, v{xa[i]}")
        a(f"v_add_f32 v{T[1]}, v{T[1]}, v{xb[i]}")
    a("s_nop 1")
    wave_reduce(a, [T[0], T[1]], [s0, s1])
    a("s_nop 1")
    c576 = fl(1.0 / 576.0)
    a(f"v_mov_b32 v{T[10]}, {c576}")
    a(f"v_mul_f32 v{T[2]}, s{s0}, v{T[10]}")
    a(f"v_mul_f32 v{T[3]}, s{s1}, v{T[10]}")
    a(f"v_sub_f32 v{T[4]}, v{xa[0]}, v{T[2]}")
    a(f"v_sub_f32 v{T[5]}, v{xb[0]}, v{T[3]}")
    a(f"v_mul_f32 v{T[0]}, v{T[4]}, v{T[4]}")
    a(f"v_mul_f32 v{T[1]}, v{T[5]}, v{T[5]}")
    for i in range(1, 9):
        a(f"v_sub_f32 v{T[4]}, v{xa[i]}, v{T[2]}")
        a(f"v_sub_f32 v{T[5]}, v{xb[i]}, v{T[3]}")
        a(f"v_fmac_f32 v{T[0]}, v{T[4]}, v{T[4]}")
        a(f"v_fmac_f32 v{T[1]}, v{T[5]}, v{T[5]}")
    a("s_nop 1")
    wave_reduce(a, [T[0], T[1]], [s2, s3])
    a("s_nop 1")
    a(f"v_mul_f32 v{T[6]}, s{s2}, v{T[10]}")
    a(f"v_mul_f32 v{T[7]}, s{s3}, v{T[10]}")
    round_bf16_pair(a, T[6], T[7], T[8])
    round_bf16_pair(a, T[2], T[3], T[9])
    eps = fl(1.0013580322265625e-05)
    a(f"v_add_f32 v{T[6]}, {eps}, v{T[6]}")
    a(f"v_add_f32 v{T[7]}, {eps}, v{T[7]}")
    round_bf16_pair(a, T[6], T[7], T[8])
    a(f"v_sqrt_f32 v{T[6]}, v{T[6]}")
    a(f"v_sqrt_f32 v{T[7]}, v{T[7]}")
    a("s_nop 0")
    round_bf16_pair(a, T[6], T[7], T[8])
    a(f"v_rcp_f32 v{T[6]}, v{T[6]}")
    a(f"v_rcp_f32 v{T[7]}, v{T[7]}")
    for i in range(9):
        a(f"v_sub_f32 v{oa[i]}, v{xa[i]}, v{T[2]}")
        a(f"v_sub_f32 v{ob[i]}, v{xb[i]}, v{T[3]}")
        round_bf16_pair(a, oa[i], ob[i], T[8] if i % 2 == 0 else T[9])
        a(f"v_mul_f32 v{oa[i]}, v{oa[i]}, v{T[6]}")
        a(f"v_mul_f32 v{ob[i]}, v{ob[i]}, v{T[7]}")
        round_bf16_pair(a, oa[i], ob[i], T[4] if i % 2 == 0 else T[5])

K1_NWT = 64
K1_NPF = 64
import os
PFROWS = int(os.environ.get('PFROWS', '2048'))
W2PF_FFT = False
W2PF_GEMM = False
import os
K1PF = True
SLEEPN = int(os.environ.get('SLEEPN', '2'))
CODEPF = int(os.environ.get('CODEPF', '0'))
W2TAIL = int(os.environ.get('W2TAIL', '0'))
KROT = int(os.environ.get('KROT', '1'))
KROT3 = int(os.environ.get('KROT3', '1'))
PF_LEAD1 = 12
PF_LEAD2 = 10
K1_DUMMY = 0
class P2(Pool):
    def release(self, r):
        if r < self.lo or r >= self.hi: return
        Pool.release(self, r)

def phase_a(a):
    WTL = 51200
    a("s_load_dwordx2 s[4:5], s[0:1], 0")
    a("s_load_dwordx4 s[36:39], s[0:1], 8")
    a("s_load_dwordx2 s[40:41], s[0:1], 32")
    a("s_load_dwordx2 s[42:43], s[0:1], 72")
    a("s_cmp_ge_u32 s33, 5")
    a("s_cbranch_scc1 L_a_aux")
    E1 = 9216; E2 = E1 + 20736; QS = 5184; E3 = E1; QS3 = 4672
    a("v_mul_u32_u24 v3, 911, v0")
    a("v_lshrrev_b32 v3, 16, v3")
    a("v_mul_u32_u24 v4, 72, v3")
    a("v_sub_u32 v4, v0, v4")
    a("v_lshrrev_b32 v5, 3, v4")
    a("v_and_b32 v6, 7, v4")
    a(f"v_mul_u32_u24 v7, {QS}, v3")
    a("v_mul_u32_u24 v8, 576, v5")
    a("v_add_u32 v7, v7, v8")
    a("s_lshl_b32 s21, s2, 3")
    a("s_lshl_b32 s22, s33, 1")
    a("s_add_u32 s21, s21, s22")
    a("s_mul_i32 s21, s21, 1152")
    a("v_lshlrev_b32 v9, 1, v2")
    a("s_waitcnt lgkmcnt(0)")
    srd(a, 12, 4, 0, S * D * 2)
    srd(a, 16, 8, HT_OFF, HT_SZ)
    srd(a, 24, 8, PT_OFF, PT_SZ)
    a("s_cmp_ge_u32 s33, 4")
    a("s_cbranch_scc1 L_a_skipln")
    XA = list(range(10, 19)); XB = list(range(20, 29))
    for i in range(9):
        a(f"buffer_load_ushort v{XA[i]}, v9, s[12:15], s21 offen offset:{128*i}")
        a(f"buffer_load_ushort v{XB[i]}, v9, s[12:15], s21 offen offset:{1152+128*i}")
    a("v_cvt_f32_u32 v60, v2")
    for k1 in range(1, 9):
        a(f"v_mul_f32 v61, {fl(-k1/576.0)}, v60")
        a(f"v_cos_f32 v{80+2*k1}, v61")
        a(f"v_sin_f32 v{81+2*k1}, v61")
    a("s_waitcnt vmcnt(0)")
    for i in range(9):
        a(f"v_lshlrev_b32 v{XA[i]}, 16, v{XA[i]}")
        a(f"v_lshlrev_b32 v{XB[i]}, 16, v{XB[i]}")
    NA = [30 + 2*i for i in range(9)]; NB = [31 + 2*i for i in range(9)]
    layernorm_pair(a, XA, XB, NA, NB, 60, 44)
    HA = list(range(10, 19)); HB = list(range(20, 29))
    layernorm_pair(a, NA, NB, HA, HB, 60, 44)
    a("v_lshlrev_b32 v9, 4, v2")
    a("s_lshl_b32 s22, s33, 2")
    a("v_add_u32 v9, s22, v9")
    for i in range(9):
        a(f"v_cvt_pk_bf16_f32 v{50+i}, v{HA[i]}, v{HB[i]}")
    for i in range(9):
        a(f"ds_write_b32 v9, v{50+i} offset:{1024*i}")
    pool = P2(98, 128); g = FG(a, pool)
    xs = [((NA[i], 1), (NB[i], 1)) for i in range(9)]
    ys = g.dft(xs, -1)
    a(f"s_mul_i32 s22, s33, {QS}")
    a("v_lshlrev_b32 v9, 3, v2")
    a("v_add_u32 v9, s22, v9")
    for k1 in range(9):
        d = 60 + 2 * k1
        if k1 == 0:
            g.mov(ys[0][0], d); g.mov(ys[0][1], d + 1); g.frc(ys[0])
        else:
            g.cmul(ys[k1], 80 + 2*k1, 81 + 2*k1, dst=d)
    for k1 in range(9):
        d = 60 + 2 * k1
        a(f"ds_write_b64 v9, v[{d}:{d+1}] offset:{E1 + 576*k1}")
    a.label("L_a_skipln")
    a("v_cvt_f32_u32 v60, v6")
    for c in range(1, 8):
        a(f"v_mul_f32 v61, {fl(-c/64.0)}, v60")
        a(f"v_cos_f32 v{80+2*c}, v61")
        a(f"v_sin_f32 v{81+2*c}, v61")
    a("s_waitcnt lgkmcnt(0)")
    a("s_barrier")
    a("v_cmp_gt_u32 vcc, 288, v0")
    a("s_and_saveexec_b64 s[30:31], vcc")
    a("v_lshlrev_b32 v9, 4, v0")
    a("ds_read_b128 v[10:13], v9")
    a("ds_read_b128 v[14:17], v9 offset:4608")
    a("v_lshlrev_b32 v20, 3, v6")
    a("v_add_u32 v20, v7, v20")
    for b in range(8):
        a(f"ds_read_b64 v[{30+2*b}:{31+2*b}], v20 offset:{E1 + 64*b}")
    a(f"s_mul_i32 s23, s2, {576*16}")
    a("s_waitcnt lgkmcnt(8)")
    a("buffer_store_dwordx4 v[10:13], v9, s[16:19], s23 offen sc0 sc1")
    a("v_add_u32 v21, 4608, v9")
    a("buffer_store_dwordx4 v[14:17], v21, s[16:19], s23 offen sc0 sc1")
    a("s_waitcnt lgkmcnt(0)")
    pool = P2(98, 128); g = FG(a, pool)
    ys = g.dft([((30+2*b, 1), (31+2*b, 1)) for b in range(8)], -1)
    a("v_mul_u32_u24 v22, 72, v6")
    a("v_add_u32 v22, v7, v22")
    for c in range(8):
        d = 60 + 2 * c
        if c == 0:
            g.mov(ys[0][0], d); g.mov(ys[0][1], d + 1); g.frc(ys[0])
        else:
            g.cmul(ys[c], 80 + 2*c, 81 + 2*c, dst=d)
    for c in range(8):
        d = 60 + 2 * c
        a(f"ds_write_b64 v22, v[{d}:{d+1}] offset:{E2 + 8*c}")
    a("s_waitcnt lgkmcnt(0)")
    a("s_barrier")
    for aa in range(8):
        a(f"ds_read_b64 v[{30+2*aa}:{31+2*aa}], v20 offset:{E2 + 72*aa}")
    a("s_waitcnt lgkmcnt(0)")
    pool = P2(98, 128); g = FG(a, pool)
    g.dft([((30+2*b, 1), (31+2*b, 1)) for b in range(8)], -1, [60 + 2*e for e in range(8)])
    a(f"v_mul_u32_u24 v22, {QS3}, v3")
    a("v_mul_u32_u24 v23, 9, v6")
    a("v_add_u32 v23, v23, v5")
    a("v_lshlrev_b32 v23, 3, v23")
    a("v_add_u32 v22, v22, v23")
    for e in range(8):
        d = 60 + 2 * e
        a(f"ds_write_b64 v22, v[{d}:{d+1}] offset:{E3 + 576*e}")
    a("s_mov_b64 exec, s[30:31]")
    a("s_waitcnt lgkmcnt(0)")
    a("s_barrier")
    a(f"s_mul_i32 s23, s2, {PBLK}")
    for rnd in range(4):
        a(f"v_add_u32 v10, {320*rnd}, v0")
        if rnd == 3:
            a("v_cmp_gt_u32 vcc, 1156, v10")
            a("s_and_saveexec_b64 s[30:31], vcc")
            a("s_cbranch_execz L_a_unp_done")
        a("v_lshrrev_b32 v11, 2, v10")
        a("v_and_b32 v12, 3, v10")
        a(f"v_mul_u32_u24 v13, {QS3}, v12")
        a("v_sub_u32 v14, 576, v11")
        a("v_cmp_eq_u32 vcc, 0, v11")
        a("v_lshlrev_b32 v15, 3, v11")
        a("v_add_u32 v15, v15, v13")
        a("v_cndmask_b32 v14, v14, v11, vcc")
        a("v_lshlrev_b32 v14, 3, v14")
        a("v_add_u32 v14, v14, v13")
        b = 30 + 8 * rnd
        a(f"ds_read_b64 v[{b}:{b+1}], v15 offset:{E3}")
        a(f"ds_read_b64 v[{b+2}:{b+3}], v14 offset:{E3}")
        a(f"v_lshlrev_b32 v{70+rnd}, 4, v10")
        a("s_waitcnt lgkmcnt(0)")
        a(f"v_add_f32 v{b+4}, v{b}, v{b+2}")
        a(f"v_sub_f32 v{b+5}, v{b+1}, v{b+3}")
        a(f"v_add_f32 v{b+6}, v{b+1}, v{b+3}")
        a(f"v_sub_f32 v{b+7}, v{b+2}, v{b}")
        a(f"buffer_store_dwordx4 v[{b+4}:{b+7}], v{70+rnd}, s[24:27], s23 offen sc0 sc1")
    a.label("L_a_unp_done")
    a("s_mov_b64 exec, s[30:31]")
    a("s_branch L_phA_done")
    a.label("L_a_aux")
    a("v_subrev_u32 v1, 320, v0")
    a("s_waitcnt lgkmcnt(0)")
    a("s_cmp_lg_u32 s33, 7")
    a("s_cbranch_scc1 L_a_aux2")
    srd(a, 44, 42, 0, 256)
    a("s_lshl_b32 s21, s2, 7")
    a("v_mov_b32 v9, 0")
    a("v_lshlrev_b32 v10, 15, v2")
    a("buffer_store_dword v9, v10, s[56:59], s21 offen sc0 sc1")
    a("s_waitcnt vmcnt(0)")
    a("v_mov_b32 v9, 1")
    a("v_mov_b32 v10, 0")
    a("s_mov_b64 s[30:31], exec")
    a("s_mov_b64 exec, 1")
    a("buffer_atomic_add v9, v10, s[44:47], 0 offen sc1")
    a("s_mov_b64 exec, s[30:31]")
    a.label("L_a_aux2")
    a("s_cmp_lt_u32 s2, 64")
    a("s_cbranch_scc1 L_a_wt")
    if CODEPF:
        a("s_lshr_b32 s22, s2, 3")
        a("s_cmp_lg_u32 s22, 8")
        a("s_cbranch_scc1 L_a_nocode")
        a("s_getpc_b64 s[12:13]")
        a.label("L_a_pc")
        a("s_mov_b32 s14, L_k2_end-L_a_pc")
        a("s_mov_b32 s15, 0x00020000")
        a("v_lshlrev_b32 v10, 7, v1")
        for i in range(3):
            a(f"buffer_load_dword v76, v10, s[12:15], 0 offen")
            a(f"v_add_u32 v10, {192*128}, v10")
        a.label("L_a_nocode")
    srd(a, 12, 40, 0, S * F * 2)
    a("s_and_b32 s22, s2, 7")
    a("s_mul_i32 s22, s22, 1152")
    a("s_lshr_b32 s23, s2, 3")
    a("s_sub_u32 s23, s23, 8")
    a("s_mul_i32 s23, s23, 192")
    a("s_mov_b32 s24, 9216")
    nper = (PFROWS * 9 + 24 * 192 - 1) // (24 * 192)
    for i in range(nper):
        a(f"v_add_u32 v10, {i * 24 * 192}, v1")
        a("v_add_u32 v10, s23, v10")
        a("v_mul_hi_u32 v11, v10, v121") if False else None
        a("v_mul_u32_u24 v11, 7282, v10") if False else None
        a("s_mov_b32 s25, 0x1c71c71d")
        a("v_mul_hi_u32 v11, v10, s25")
        a("v_mul_u32_u24 v12, 9, v11")
        a("v_sub_u32 v12, v10, v12")
        a("v_mul_lo_u32 v11, v11, s24")
        a("v_lshlrev_b32 v12, 7, v12")
        a("v_add_u32 v11, v11, v12")
        a(f"buffer_load_dword v76, v11, s[12:15], s22 offen")
    a("s_barrier"); a("s_barrier"); a("s_barrier")
    a("s_branch L_phA_done2")
    a.label("L_a_wt")
    srd(a, 12, 36, 0, S * DF * 2)
    srd(a, 16, 38, 0, S * DF * 2)
    srd(a, 24, 8, WT_OFF, WT_SZ)
    a("s_mul_i32 s22, s2, 18496")
    a("v_lshlrev_b32 v9, 4, v1")
    for rnd in range(7):
        a(f"v_add_u32 v10, {192*16*rnd}, v9")
        if rnd == 6:
            a("v_cmp_gt_u32 vcc, 18496, v10")
            a("s_and_saveexec_b64 s[30:31], vcc")
        a(f"buffer_load_dwordx4 v[{20+8*rnd}:{23+8*rnd}], v10, s[12:15], s22 offen")
        a(f"buffer_load_dwordx4 v[{24+8*rnd}:{27+8*rnd}], v10, s[16:19], s22 offen")
    a("s_mov_b64 exec, s[30:31]")
    a("s_waitcnt vmcnt(0)")
    for rnd in range(7):
        a(f"v_add_u32 v10, {192*16*rnd}, v9")
        if rnd == 6:
            a("v_cmp_gt_u32 vcc, 18496, v10")
            a("s_and_saveexec_b64 s[30:31], vcc")
        a(f"ds_write_b128 v10, v[{20+8*rnd}:{23+8*rnd}] offset:{WTL}")
        a(f"v_add_u32 v11, {WTL + 18496}, v10")
        a(f"ds_write_b128 v11, v[{24+8*rnd}:{27+8*rnd}]")
    a("s_mov_b64 exec, s[30:31]")
    a("s_waitcnt lgkmcnt(0)")
    a("s_barrier")
    a("s_lshl_b32 s23, s2, 7")
    a("v_and_b32 v11, 7, v1")
    a("v_mul_u32_u24 v12, 2312, v11")
    a("v_lshrrev_b32 v13, 3, v1")
    a("v_lshlrev_b32 v14, 1, v13")
    a("v_add_u32 v12, v12, v14")
    a(f"v_add_u32 v12, {WTL}, v12")
    a(f"v_add_u32 v16, 18496, v12")
    a("v_lshlrev_b32 v14, 13, v13")
    a("v_lshlrev_b32 v15, 4, v11")
    a("v_add_u32 v14, v14, v15")
    def wt_round(rnd, slot):
        r0 = 20 + 12 * slot
        for k in range(4):
            a(f"ds_read_u16 v{r0+2*k}, v12 offset:{48*rnd + 578*k}")
            a(f"ds_read_u16 v{r0+2*k+1}, v16 offset:{48*rnd + 578*k}")
    def wt_store(rnd, slot):
        r0 = 20 + 12 * slot
        for k in range(4):
            a(f"v_lshl_or_b32 v{r0+8+k}, v{r0+2*k+1}, 16, v{r0+2*k}")
        a(f"s_add_u32 s36, s23, {rnd*24*8192}")
        a(f"buffer_store_dwordx4 v[{r0+8}:{r0+11}], v14, s[24:27], s36 offen sc0 sc1")
    for grp in range(3):
        rr = list(range(4 * grp, 4 * grp + 4))
        for i, rnd in enumerate(rr): wt_round(rnd, i)
        a("s_waitcnt lgkmcnt(0)")
        for i, rnd in enumerate(rr): wt_store(rnd, i)
        if grp < 2: a("s_barrier")
    a("v_cmp_gt_u32 vcc, 8, v1")
    a("s_and_saveexec_b64 s[30:31], vcc")
    a("s_cbranch_execz L_a_wt_done")
    wt_round(12, 0)
    a("s_waitcnt lgkmcnt(0)")
    wt_store(12, 0)
    a.label("L_a_wt_done")
    a("s_mov_b64 exec, s[30:31]")

DBG = set()
STAMP_OFF = 0x8000000
def stamp(a, idx):
    if "stamp" in DBG:
        a(f"s_memtime s[{60+2*idx}:{61+2*idx}]")
def stamp_flush(a, n, wsbase, slot):
    if "stamp" not in DBG: return
    a("s_waitcnt lgkmcnt(0)")
    srd(a, 56, wsbase, STAMP_OFF + slot * 0x10000, 0x10000)
    a("s_lshl_b32 s55, s2, 6")
    for i in range(n):
        a(f"v_mov_b32 v121, s{60+2*i}")
        a(f"v_mov_b32 v120, {4*i}")
        a(f"buffer_store_dword v121, v120, s[56:59], s55 offen")
def interleave(a, mf, other, per=2):
    if "nomfma" in DBG: mf = []
    if "noread" in DBG: other = []
    j = 0
    for i, m in enumerate(mf):
        a(m)
        k = min(len(other), (i + 1) * per)
        while j < k:
            a(other[j]); j += 1
    while j < len(other):
        a(other[j]); j += 1

def ring_loader(a, tag, R, NS, SZ, n, dma, pf=None, done=None, split=None):
    nst = NS - R
    lab = f"L_{tag}_ld"
    peel = 0
    if split is None:
        for st in range(R):
            a(f"s_mov_b32 s40, {st*SZ}")
            for x in dma(40): a(x)
        a(f"s_waitcnt vmcnt({(R-1)*n})")
    else:
        dma_w, dma_u, nW, nU, mid = split
        for st in range(R):
            a(f"s_mov_b32 s40, {st*SZ}")
            for x in dma_w(40): a(x)
        mid()
        for st in range(R):
            a(f"s_mov_b32 s40, {st*SZ}")
            for x in dma_u(40): a(x)
        a(f"s_waitcnt vmcnt({(R-1)*nU})")
        peel = R - 2
    a("s_barrier")
    a("s_mov_b32 s40, 0")
    def adv():
        a(f"s_add_u32 s40, s40, {SZ}")
        a(f"s_cmp_eq_u32 s40, {R*SZ}")
        a("s_cselect_b32 s40, 0, s40")
    for i in range(peel):
        a(f"s_waitcnt vmcnt({(R-2-i)*nU + i*n})")
        a("s_barrier")
        for x in dma(40): a(x)
        adv()
    a(f"s_mov_b32 s45, {nst - peel}")
    a.label(lab)
    a(f"s_waitcnt vmcnt({(R-2)*n})")
    a("s_barrier")
    for x in dma(40): a(x)
    adv()
    a("s_sub_u32 s45, s45, 1")
    a("s_cmp_lg_u32 s45, 0")
    a(f"s_cbranch_scc1 {lab}")
    for i in range(nst, NS):
        vm = max(0, NS - 1 - (i + 1)) * n
        a(f"s_waitcnt vmcnt({vm})")
        a("s_barrier")
    if done is None: a("s_endpgm")
    else: a(f"s_branch {done}")

def ring_compute(a, tag, R, NS, SZ, mfmas, reads, addr_upd, hook=None, mid=False):
    if mid: a("s_barrier")
    a("s_barrier")
    a("s_mov_b32 s41, 0")
    for x in addr_upd(41): a(x)
    for x in reads(0, 0): a(x)
    a(f"s_mov_b32 s45, {NS-1}")
    lab = f"L_{tag}_cp"
    a.label(lab)
    for h in (hook or []):
        if h.endswith(":"): a.label(h[:-1])
        else: a(h)
    a("s_waitcnt lgkmcnt(0)")
    interleave(a, mfmas(0), reads(1, 1))
    a(f"s_add_u32 s41, s41, {SZ}")
    a(f"s_cmp_eq_u32 s41, {R*SZ}")
    a("s_cselect_b32 s41, 0, s41")
    for x in addr_upd(41): a(x)
    a("s_waitcnt lgkmcnt(0)")
    a("s_barrier")
    interleave(a, mfmas(1), reads(0, 0))
    a("s_sub_u32 s45, s45, 1")
    a("s_cmp_lg_u32 s45, 0")
    a(f"s_cbranch_scc1 {lab}")
    a("s_waitcnt lgkmcnt(0)")
    interleave(a, mfmas(0), reads(1, 1))
    a("s_waitcnt lgkmcnt(0)")
    a("s_barrier")
    interleave(a, mfmas(1), [])

def poll_flags(a, tag, sfl, phase_off, vmask_gen, nld=4, vtmp=244, maxspin=400000):
    a(f"v_lshlrev_b32 v{vtmp+4}, 7, v2")
    a(f"s_mov_b32 s50, {maxspin}")
    a.label(f"L_poll_{tag}")
    for i in nld:
        a(f"s_mov_b32 s51, {phase_off + i*64*128}")
        a(f"buffer_load_dword v{vtmp+i}, v{vtmp+4}, s[{sfl}:{sfl+3}], s51 offen sc0 sc1")
    a("s_waitcnt vmcnt(0)")
    first = True
    for i in nld:
        a(f"v_or_b32 v{vtmp+i}, v{vtmp+i}, v{vtmp+8+i}")
        if not first: a(f"v_min_u32 v{vtmp+nld[0]}, v{vtmp+nld[0]}, v{vtmp+i}")
        first = False
    a(f"v_cmp_eq_u32 vcc, 0, v{vtmp+nld[0]}")
    a("s_sub_u32 s50, s50, 1")
    a("s_cmp_eq_u32 s50, 0")
    a(f"s_cbranch_scc1 L_pollx_{tag}")
    a("s_cmp_eq_u64 vcc, 0")
    a(f"s_cbranch_scc1 L_pollx_{tag}")
    a(f"s_sleep {SLEEPN}")
    a(f"s_branch L_poll_{tag}")
    a.label(f"L_pollx_{tag}")

def set_flag(a, sfl, phase_off, novm=False):
    a("s_waitcnt lgkmcnt(0)" if novm else "s_waitcnt vmcnt(0) lgkmcnt(0)")
    a("s_barrier")
    lab = a.newlabel("L_nf")
    a("s_cmp_lg_u32 s33, 0")
    a(f"s_cbranch_scc1 {lab}")
    a("s_lshl_b32 s51, s2, 7")
    a(f"s_add_u32 s51, s51, {phase_off}")
    a("v_mov_b32 v244, 1")
    a("v_mov_b32 v245, 0")
    a("s_mov_b64 s[30:31], exec")
    a("s_mov_b64 exec, 1")
    a(f"buffer_store_dword v244, v245, s[{sfl}:{sfl+3}], s51 offen sc0 sc1")
    a("s_mov_b64 exec, s[30:31]")
    a.label(lab)

def sync_a(a, tag):
    a("s_cmp_lg_u32 s33, 7")
    a(f"s_cbranch_scc1 L_b_go_{tag}")
    a("s_load_dwordx2 s[90:91], s[0:1], 72")
    a("s_waitcnt lgkmcnt(0)")
    srd(a, 92, 90, 0, 256)
    a("v_mov_b32 v245, 0")
    a("s_mov_b32 s50, 400000")
    a.label(f"L_poll_z0_{tag}")
    a("buffer_load_dword v244, v245, s[92:95], 0 offen sc0 sc1")
    a("s_waitcnt vmcnt(0)")
    a("v_readfirstlane_b32 s51, v244")
    a("s_sub_u32 s50, s50, 1")
    a("s_cmp_eq_u32 s50, 0")
    a(f"s_cbranch_scc1 L_pollx_z0_{tag}")
    a("s_cmp_ge_u32 s51, 256")
    a(f"s_cbranch_scc1 L_pollx_z0_{tag}")
    a(f"s_sleep {SLEEPN}")
    a(f"s_branch L_poll_z0_{tag}")
    a.label(f"L_pollx_z0_{tag}")
    for i in range(4): a(f"v_mov_b32 v{252+i}, 0")
    poll_flags(a, f"a_{tag}", 56, 0, None, nld=[0, 1, 2, 3])
    a.label(f"L_b_go_{tag}")
    a("s_barrier")

def gen_gemm1(a):
    R = 5; NS = 32; SZ = 28672
    srd(a, 12, 4, 0, S * F * 2)
    srd(a, 16, 8, HT_OFF, HT_SZ)
    srd(a, 20, 8, U_OFF, U_SZ)
    srd(a, 24, 6, 0, F * 2)
    a("s_and_b32 s28, s2, 7")
    a("s_lshr_b32 s29, s2, 3")
    a("s_mul_i32 s28, s28, 27")
    a("s_add_u32 s28, s28, s29")
    a("s_mul_i32 s29, s28, 171")
    a("s_lshr_b32 s29, s29, 10")
    a("s_mul_i32 s30, s29, 6")
    a("s_sub_u32 s30, s28, s30")
    a("s_lshl_b32 s31, s29, 8")
    a("s_mul_i32 s32, s30, 1536")
    a("s_and_b32 s34, s33, 3")
    a("s_lshr_b32 s35, s33, 2")
    a("s_and_b32 s36, s34, 1")
    a("s_lshr_b32 s37, s34, 1")
    a("v_lshrrev_b32 v3, 4, v2")
    a("v_and_b32 v4, 15, v2")
    a("v_lshrrev_b32 v5, 2, v4")
    a("v_and_b32 v6, 3, v4")
    a("s_cmp_eq_u32 s35, 0")
    a("s_cbranch_scc1 L_g1_compute")
    a("s_lshl_b32 s38, s34, 4")
    a("v_add_u32 v9, s38, v3")
    a("s_mov_b32 s39, 9216")
    a("v_mul_lo_u32 v9, v9, s39")
    a("v_add_u32 v9, s31, v9")
    a("v_lshlrev_b32 v10, 1, v3")
    a("v_xor_b32 v11, v10, v4")
    a("v_lshlrev_b32 v11, 4, v11")
    a("v_add_u32 v20, v9, v11")
    a("v_xor_b32 v11, 8, v10")
    a("v_xor_b32 v11, v11, v4")
    a("v_lshlrev_b32 v11, 4, v11")
    a("v_add_u32 v21, v9, v11")
    for i in range(3):
        a("s_mul_i32 s38, s34, 192")
        a(f"s_add_u32 s38, s38, {64*i}")
        a("v_add_u32 v9, s38, v2")
        a("v_mul_u32_u24 v10, 683, v9")
        a("v_lshrrev_b32 v10, 16, v10")
        a("v_mul_u32_u24 v11, 96, v10")
        a("v_sub_u32 v11, v9, v11")
        a("v_mul_u32_u24 v10, 9216, v10")
        a("v_lshlrev_b32 v11, 4, v11")
        a("v_add_u32 v10, v10, v11")
        a(f"s_sub_u32 s38, s32, {1024*i}") if i else a("s_mov_b32 s38, s32")
        a(f"v_add_u32 v{22+i}, s38, v10")
    a("s_lshl_b32 s43, s34, 12")
    a("s_mul_i32 s46, s34, 3072")
    a("s_add_u32 s46, s46, 16384")
    a("s_mov_b32 s47, 0")
    a("s_mov_b32 s42, 0")
    if KROT:
        a("s_lshl_b32 s38, s30, 5")
        a("s_mul_i32 s38, s38, 171")
        a("s_lshr_b32 s38, s38, 10")
        a(f"s_mul_i32 s42, s38, {64*9216}")
        a(f"s_mul_i32 s47, s38, {8*9216}")
    def dma_w(wr):
        out = [f"s_add_u32 m0, s{wr}, s43"]
        for i in range(4):
            out.append(f"s_add_u32 s44, s42, {i*(4*9216-1024)}")
            out.append(f"buffer_load_dwordx4 v{20 + (i>>1)}, s[12:15], s44 offen offset:{1024*i} lds")
        out.append(f"s_add_u32 s42, s42, {64*9216}")
        out += [f"s_cmp_eq_u32 s42, {NS*64*9216}", "s_cselect_b32 s42, 0, s42"]
        return out
    def dma_h(wr):
        out = [f"s_add_u32 m0, s{wr}, s46", "s_nop 0"]
        for i in range(3):
            out.append(f"buffer_load_dwordx4 v{22+i}, s[16:19], s47 offen offset:{1024*i} lds")
        out.append(f"s_add_u32 s47, s47, {8*9216}")
        out += [f"s_cmp_eq_u32 s47, {NS*8*9216}", "s_cselect_b32 s47, 0, s47"]
        return out
    def dma(wr): return dma_w(wr) + dma_h(wr)
    def mid():
        sync_a(a, "g1")
    ring_loader(a, "g1", R, NS, SZ, 7, dma, done="L_g1_epi_ld", split=(dma_w, dma_h, 4, 3, mid))
    a.label("L_g1_compute")
    hook = None
    VW = [100, 101, 102, 103]; VH = 104
    VWc = [105, 106, 107, 108]; VHc = 109
    a("v_and_b32 v7, 1, v3")
    a("v_lshlrev_b32 v7, 2, v7")
    a("v_or_b32 v7, v7, v5")
    a("v_lshlrev_b32 v8, 3, v3")
    a("v_add_u32 v8, v8, v5")
    a("v_lshlrev_b32 v8, 8, v8")
    a("v_lshlrev_b32 v9, 3, v6")
    a("v_add_u32 v8, v8, v9")
    a("s_lshl_b32 s38, s36, 2")
    for fbk in range(4):
        a(f"s_add_u32 s39, s38, {fbk}")
        a(f"v_xor_b32 v9, s39, v7")
        a(f"v_lshlrev_b32 v9, 5, v9")
        a(f"v_add_u32 v{VW[fbk]}, v8, v9")
    a("v_mul_u32_u24 v9, 96, v3")
    a("s_mul_i32 s38, s37, 48")
    a("v_add_u32 v9, s38, v9")
    a("v_add_u32 v9, v9, v4")
    a("v_lshlrev_b32 v9, 4, v9")
    a(f"v_add_u32 v{VH}, 16384, v9")
    ACC = 16
    for i in range(48):
        a(f"v_mov_b32 v{ACC+i}, 0")
    FR = [112, 140]
    def acc(fbk, dbk):
        b = ACC + (fbk * 3 + dbk) * 4
        return f"v[{b}:{b+3}]"
    def mfmas(st):
        out = []
        for dbk in range(3):
            for fbk in range(4):
                w = FR[st] + 4 * fbk; h = FR[st] + 16 + 4 * dbk
                out.append(f"v_mfma_f32_16x16x32_bf16 {acc(fbk,dbk)}, v[{w}:{w+3}], v[{h}:{h+3}], {acc(fbk,dbk)}")
        return out
    def reads(st, sub):
        out = []
        for fbk in range(4):
            w = FR[st] + 4 * fbk
            out.append(f"ds_read_b64_tr_b16 v[{w}:{w+1}], v{VWc[fbk]} offset:{sub*8192}")
            out.append(f"ds_read_b64_tr_b16 v[{w+2}:{w+3}], v{VWc[fbk]} offset:{sub*8192+1024}")
        for dbk in range(3):
            h = FR[st] + 16 + 4 * dbk
            out.append(f"ds_read_b128 v[{h}:{h+3}], v{VHc} offset:{sub*6144+256*dbk}")
        return out
    def addr_upd(sreg):
        out = [f"v_add_u32 v{VWc[k]}, s{sreg}, v{VW[k]}" for k in range(4)]
        out.append(f"v_add_u32 v{VHc}, s{sreg}, v{VH}")
        return out
    ring_compute(a, "g1", R, NS, SZ, mfmas, reads, addr_upd, hook, mid=True)
    a("v_lshlrev_b32 v9, 4, v2")
    a("s_mul_i32 s38, s34, 6144")
    a("v_add_u32 v10, s38, v9")
    a("s_nop 4")
    for j in range(6):
        b = ACC + (6 + j) * 4
        a(f"ds_write_b128 v10, v[{b}:{b+3}] offset:{1024*j}")
    a("s_branch L_g1_epi")
    a.label("L_g1_epi_ld")
    a("v_lshlrev_b32 v9, 4, v2")
    a("s_mul_i32 s38, s34, 6144")
    a("v_add_u32 v10, s38, v9")
    a.label("L_g1_epi")
    a("s_lshl_b32 s38, s36, 7")
    a("s_add_u32 s38, s38, s31")
    a("s_lshl_b32 s39, s35, 6")
    a("s_add_u32 s38, s38, s39")
    a("v_lshlrev_b32 v12, 3, v3")
    for k in range(2):
        a(f"buffer_load_dwordx2 v[{64+2*k}:{65+2*k}], v12, s[24:27], s38 offen offset:{32*k}")
    k0 = -2.0 * math.log2(math.e) * math.sqrt(2.0 / math.pi)
    k1 = k0 * 0.044715
    a(f"s_mov_b32 s46, {fl(k0)}")
    a(f"s_mov_b32 s47, {fl(k1)}")
    a("v_mov_b32 v102, s46")
    a("s_lshl_b32 s38, s29, 4")
    a("s_lshl_b32 s39, s36, 3")
    a("s_add_u32 s38, s38, s39")
    a("s_lshl_b32 s39, s35, 2")
    a("s_add_u32 s38, s38, s39")
    a("v_lshrrev_b32 v12, 1, v3")
    a("v_add_u32 v12, s38, v12")
    a("v_mul_u32_u24 v12, 576, v12")
    a("s_mul_i32 s38, s37, 48")
    a("v_add_u32 v12, s38, v12")
    a("v_add_u32 v12, v12, v4")
    a("v_lshlrev_b32 v12, 4, v12")
    a("v_add_u32 v12, s32, v12")
    a("v_and_b32 v13, 1, v3")
    a("v_lshlrev_b32 v13, 3, v13")
    a("v_add_u32 v12, v12, v13")
    a("s_waitcnt lgkmcnt(0)")
    a("s_barrier")
    a("s_cmp_eq_u32 s35, 0")
    a("s_cbranch_scc1 L_g1_epi2")
    for j in range(6):
        b = ACC + j * 4
        a(f"ds_read_b128 v[{b}:{b+3}], v10 offset:{1024*j}")
    a.label("L_g1_epi2")
    a("s_waitcnt vmcnt(0) lgkmcnt(0)")
    for k in range(2):
        a(f"v_lshlrev_b32 v{80+4*k}, 16, v{64+2*k}")
        a(f"v_and_b32 v{81+4*k}, 0xffff0000, v{64+2*k}")
        a(f"v_lshlrev_b32 v{82+4*k}, 16, v{65+2*k}")
        a(f"v_and_b32 v{83+4*k}, 0xffff0000, v{65+2*k}")
    cnt = 0
    for k in range(2):
        for dbk in range(3):
            b = ACC + (k * 3 + dbk) * 4
            for r in (0, 2):
                round_bf16_pair(a, b + r, b + r + 1, 64)
                a(f"v_add_f32 v{b+r}, v{b+r}, v{80+4*k+r}")
                a(f"v_add_f32 v{b+r+1}, v{b+r+1}, v{80+4*k+r+1}")
                round_bf16_pair(a, b + r, b + r + 1, 65)
            for r in range(4):
                t = 66 + r
                a(f"v_mul_f32 v{t}, v{b+r}, v{b+r}")
                a(f"v_fma_f32 v{t}, v{t}, s47, v102")
                a(f"v_mul_f32 v{t}, v{t}, v{b+r}")
                a(f"v_exp_f32 v{t}, v{t}")
            for r in range(4):
                t = 66 + r
                a(f"v_add_f32 v{t}, 1.0, v{t}")
                a(f"v_rcp_f32 v{t}, v{t}")
            a("s_nop 0")
            for r in range(4):
                t = 66 + r
                a(f"v_mul_f32 v{t}, v{t}, v{b+r}")
            o = 70 + 2 * (cnt % 4); cnt += 1
            a(f"v_cvt_pk_bf16_f32 v{o}, v66, v67")
            a(f"v_cvt_pk_bf16_f32 v{o+1}, v68, v69")
            a(f"s_mov_b32 s38, {k*18432}")
            a(f"buffer_store_dwordx2 v[{o}:{o+1}], v12, s[20:23], s38 offen offset:{256*dbk} sc0 sc1")
    if not W2TAIL:
        a("s_branch L_phB_done")
    a("s_load_dwordx2 s[88:89], s[0:1], 48")
    a("s_and_b32 s48, s2, 7")
    a("s_lshr_b32 s49, s48, 1")
    a("s_mul_i32 s49, s49, 1152")
    a("s_and_b32 s48, s48, 1")
    a("s_lshl_b32 s48, s48, 11")
    a("s_lshr_b32 s50, s2, 3")
    a("s_lshl_b32 s50, s50, 3")
    a("s_add_u32 s50, s50, s33")
    a("s_lshl_b32 s51, s50, 2")
    a("s_add_u32 s49, s49, s51")
    a("v_add_u32 v30, s49, v3")
    a("v_lshlrev_b32 v30, 12, v30")
    a("v_lshlrev_b32 v31, 7, v4")
    a("v_add_u32 v30, v30, v31")
    a("v_add_u32 v30, s48, v30")
    a("s_waitcnt lgkmcnt(0)")
    srd(a, 92, 88, 0, S * F * 2)
    a("buffer_load_dword v110, v30, s[92:95], 0 offen")
    a("s_mov_b32 s52, 0x7f000000")
    a("s_cmp_lt_u32 s50, 72")
    a(f"s_cselect_b32 s51, {864*4096}, s52")
    a("buffer_load_dword v110, v30, s[92:95], s51 offen")
    a("s_waitcnt vmcnt(2)")
    a("s_branch L_phB_done2")

TB1 = 139264; TB2 = TB1 + 16384
def gen_colfft(a):
    srd(a, 12, 8, PT_OFF, PT_SZ)
    srd(a, 16, 8, WT_OFF, WT_SZ)
    srd(a, 20, 8, ZT_OFF, ZT_SZ)
    a("s_sub_u32 s28, s2, 216")
    a("s_lshl_b32 s28, s28, 3")
    a("s_add_u32 s28, s28, s33")
    a("s_lshl_b32 s29, s28, 6")
    a("v_lshrrev_b32 v14, 2, v2")
    a(f"v_mul_u32_u24 v14, {PBLK}, v14")
    a("v_and_b32 v15, 3, v2")
    a("v_lshlrev_b32 v15, 4, v15")
    a("v_add_u32 v14, v14, v15")
    a("s_lshl_b32 s30, s28, 13")
    a("v_lshlrev_b32 v3, 4, v2")
    a("v_lshlrev_b32 v4, 2, v2")
    for i in range(4):
        a(f"v_add_u32 v5, {512*i}, v0")
        a("v_lshrrev_b32 v6, 7, v5")
        a("v_and_b32 v7, 127, v5")
        a("v_mul_u32_u24 v6, v6, v7")
        a("v_cvt_f32_u32 v6, v6")
        a(f"v_mul_f32 v6, {fl(-1.0/2048)}, v6")
        a("v_cos_f32 v8, v6")
        a("v_sin_f32 v9, v6")
        a("v_lshlrev_b32 v5, 3, v5")
        a(f"v_add_u32 v5, {TB1}, v5")
        a("ds_write_b64 v5, v[8:9]")
    a("v_cmp_gt_u32 vcc, 128, v0")
    a("s_and_saveexec_b64 s[34:35], vcc")
    a("v_lshrrev_b32 v6, 3, v0")
    a("v_and_b32 v7, 7, v0")
    a("v_mul_u32_u24 v6, v6, v7")
    a("v_cvt_f32_u32 v6, v6")
    a(f"v_mul_f32 v6, {fl(-1.0/128)}, v6")
    a("v_cos_f32 v8, v6")
    a("v_sin_f32 v9, v6")
    a("v_lshlrev_b32 v5, 3, v0")
    a(f"v_add_u32 v5, {TB2}, v5")
    a("ds_write_b64 v5, v[8:9]")
    a("s_mov_b64 exec, s[34:35]")
    a("s_waitcnt lgkmcnt(0)")
    sync_a(a, "f")
    rstamp(a, 2)
    DQ = [16 + 4*i for i in range(16)]
    for aa in range(16):
        a(f"s_add_u32 s31, s29, {16*PBLK*aa}")
        a(f"buffer_load_dwordx4 v[{DQ[aa]}:{DQ[aa]+3}], v14, s[12:15], s31 offen")
    WR = 80
    for m in range(4):
        for kc in range(8):
            a(f"buffer_load_dword v{WR + 8*m + kc}, v4, s[16:19], s30 offen offset:{256*m + 1024*kc}") if 256*m + 1024*kc < 4096 else None
            if 256*m + 1024*kc >= 4096:
                a(f"s_add_u32 s31, s30, {1024*kc}")
                a(f"buffer_load_dword v{WR + 8*m + kc}, v4, s[16:19], s31 offen offset:{256*m}")
    a("s_cmp_ge_u32 s28, 289")
    a("s_cbranch_scc1 L_phB_done")
    a("s_mul_i32 s32, s33, 17408")
    a("v_add_u32 v5, s32, v3")
    a("v_lshrrev_b32 v10, 2, v2")
    a("v_and_b32 v11, 3, v2")
    a("v_mul_u32_u24 v6, 1088, v10")
    a("v_lshlrev_b32 v12, 4, v11")
    a("v_add_u32 v6, v6, v12")
    a("v_add_u32 v6, s32, v6")
    a("v_mul_u32_u24 v7, 4128, v11")
    a("v_lshlrev_b32 v13, 4, v10")
    a("v_add_u32 v7, v7, v13")
    a("v_add_u32 v7, s32, v7")
    a(f"v_add_u32 v8, {TB1}, v3")
    a(f"v_add_u32 v9, {TB2}, v12")
    TW = 112
    def tw_reads(vaddr, stride):
        for i in range(1, 16):
            a(f"ds_read_b128 v[{TW+4*i}:{TW+4*i+3}], v{vaddr} offset:{stride*i}")
    pool = P2(176, 256)
    g = FG(a, pool)
    def quads_to_c(h):
        return [((DQ[i] + 2*h, 1), (DQ[i] + 2*h + 1, 1)) for i in range(16)]
    tw_reads(8, 1024)
    a("s_waitcnt vmcnt(32)")
    def dft16_both(sgn):
        return [g.dft(quads_to_c(h), sgn) for h in range(2)]
    outs = dft16_both(-1)
    a("s_waitcnt lgkmcnt(0)")
    for k in range(16):
        for h in range(2):
            d = DQ[k] + 2*h
            if k == 0:
                g.mov(outs[h][0][0], d); g.mov(outs[h][0][1], d + 1); g.frc(outs[h][0])
            else:
                g.cmul(outs[h][k], TW + 4*k + 2*h, TW + 4*k + 2*h + 1, dst=d)
        a(f"ds_write_b128 v5, v[{DQ[k]}:{DQ[k]+3}] offset:{1088*k}")
    for b in range(16):
        a(f"ds_read_b128 v[{DQ[b]}:{DQ[b]+3}], v6 offset:{64*b}")
    tw_reads(9, 64)
    a("s_waitcnt lgkmcnt(15)")
    outs = dft16_both(-1)
    a("s_waitcnt lgkmcnt(0)")
    for k in range(16):
        for h in range(2):
            d = DQ[k] + 2*h
            if k == 0:
                g.mov(outs[h][0][0], d); g.mov(outs[h][0][1], d + 1); g.frc(outs[h][0])
            else:
                g.cmul(outs[h][k], TW + 4*k + 2*h, TW + 4*k + 2*h + 1, dst=d)
        a(f"ds_write_b128 v7, v[{DQ[k]}:{DQ[k]+3}] offset:{256*k}")
    for m in range(4):
        for cp in range(4):
            q = DQ[4*m + cp]
            a(f"ds_read_b128 v[{q}:{q+3}], v5 offset:{4128*cp + 1024*m}")
    a("s_waitcnt vmcnt(0) lgkmcnt(0)")
    if W2PF_FFT:
        a("s_load_dwordx2 s[88:89], s[0:1], 48")
        a("s_and_b32 s48, s2, 7")
        a("s_lshr_b32 s49, s48, 1")
        a("s_mul_i32 s49, s49, 1152")
        a("s_and_b32 s48, s48, 1")
        a("s_lshl_b32 s48, s48, 11")
        a("s_sub_u32 s50, s2, 216")
        a("s_lshr_b32 s50, s50, 3")
        a("s_lshl_b32 s50, s50, 3")
        a("s_add_u32 s50, s50, s33")
        a("s_lshl_b32 s50, s50, 5")
        a("s_add_u32 s49, s49, s50")
        a("v_lshrrev_b32 v10, 4, v2")
        a("v_add_u32 v10, s49, v10")
        a("v_lshlrev_b32 v10, 12, v10")
        a("v_and_b32 v11, 15, v2")
        a("v_lshlrev_b32 v11, 7, v11")
        a("v_add_u32 v10, v10, v11")
        a("v_add_u32 v10, s48, v10")
        a("s_waitcnt lgkmcnt(0)")
        srd(a, 92, 88, 0, S * F * 2)
        a("s_cmp_ge_u32 s50, 1152")
        a("s_cbranch_scc1 L_cf_nopf")
        for i in range(8):
            a(f"s_mov_b32 s51, {i*4*4096}")
            a(f"buffer_load_dword v13, v10, s[92:95], s51 offen")
        a.label("L_cf_nopf")
    for m in range(4):
        xs = []
        for c in range(8):
            q = DQ[4*m + (c >> 1)] + 2*(c & 1)
            xs.append(((q, 1), (q + 1, 1)))
        X = g.dft(xs, -1)
        Y = []
        for kc in range(8):
            w = WR + 8*m + kc
            wr = pool.alloc(); wi = pool.alloc()
            a(f"v_lshlrev_b32 v{wr}, 16, v{w}")
            a(f"v_and_b32 v{wi}, 0xffff0000, v{w}")
            Y.append(g.cmul(X[kc], wr, wi))
            pool.release(wr); pool.release(wi)
        dsts = [DQ[4*m + (c >> 1)] + 2*(c & 1) for c in range(8)]
        g.dft(Y, 1, dsts)
        for cp in range(4):
            q = DQ[4*m + cp]
            a(f"ds_write_b128 v5, v[{q}:{q+3}] offset:{4128*cp + 1024*m}")
    for kb in range(16):
        a(f"ds_read_b128 v[{DQ[kb]}:{DQ[kb]+3}], v7 offset:{256*kb}")
    a("s_waitcnt lgkmcnt(0)")
    def twiddle_in(conj):
        res = [[], []]
        for k in range(16):
            for h in range(2):
                q = DQ[k] + 2*h
                x = ((q, 1), (q + 1, 1))
                if k == 0: res[h].append(x)
                else: res[h].append(g.cmul(x, TW + 4*k + 2*h, TW + 4*k + 2*h + 1, conj=conj))
        return res
    xin = twiddle_in(True)
    tw_reads(8, 1024)
    for h in range(2):
        g.dft(xin[h], 1, [DQ[b] + 2*h for b in range(16)])
    for b in range(16):
        a(f"ds_write_b128 v6, v[{DQ[b]}:{DQ[b]+3}] offset:{64*b}")
    for ka in range(16):
        a(f"ds_read_b128 v[{DQ[ka]}:{DQ[ka]+3}], v5 offset:{1088*ka}")
    a("s_waitcnt lgkmcnt(0)")
    xin = twiddle_in(True)
    for h in range(2):
        g.dft(xin[h], 1, [DQ[aa] + 2*h for aa in range(16)])
    a("v_lshrrev_b32 v15, 3, v2")
    a(f"v_mul_u32_u24 v15, {ZBLK}, v15")
    a("v_and_b32 v13, 7, v2")
    a("v_lshlrev_b32 v13, 4, v13")
    a("v_add_u32 v15, v15, v13")
    a("s_lshl_b32 s38, s28, 7")
    for aa in range(16):
        a(f"s_add_u32 s31, s38, {8*ZBLK*aa}")
        a(f"buffer_store_dwordx4 v[{DQ[aa]}:{DQ[aa]+3}], v15, s[20:23], s31 offen sc0 sc1")
    a("s_branch L_phB_done")

def rstamp(a, i):
    if "stamp" in DBG:
        a(f"s_memrealtime s[{60+2*i}:{61+2*i}]")

def phase_c2(a):
    R = 4; NS = 18; SZ = 34816
    a("s_and_b32 s28, s2, 7")
    a("s_lshr_b32 s29, s2, 3")
    a("s_lshr_b32 s30, s28, 1")
    a("s_and_b32 s31, s28, 1")
    a("s_lshl_b32 s31, s31, 3")
    a("s_lshr_b32 s32, s29, 2")
    a("s_add_u32 s31, s31, s32")
    a("s_and_b32 s32, s29, 3")
    a("s_and_b32 s34, s33, 3")
    a("s_lshr_b32 s35, s33, 2")
    a("v_lshrrev_b32 v3, 4, v2")
    a("v_and_b32 v4, 15, v2")
    a("v_lshrrev_b32 v5, 2, v4")
    a("v_and_b32 v6, 3, v4")
    srd(a, 12, 4, 0, S * F * 2)
    srd(a, 16, 8, U_OFF, U_SZ)
    srd(a, 20, 8, PART_OFF, PART_SZ)
    a("s_cmp_eq_u32 s35, 0")
    a("s_cbranch_scc1 L_g2_compute")
    a("s_mul_i32 s38, s30, 1152")
    a("s_lshl_b32 s39, s34, 4")
    a("s_add_u32 s38, s38, s39")
    a("v_add_u32 v9, s38, v3")
    a("v_lshlrev_b32 v9, 12, v9")
    a("s_lshl_b32 s39, s31, 8")
    a("v_add_u32 v9, s39, v9")
    a("v_lshlrev_b32 v10, 1, v3")
    a("v_xor_b32 v11, v10, v4")
    a("v_lshlrev_b32 v11, 4, v11")
    a("v_add_u32 v20, v9, v11")
    a("v_xor_b32 v11, 8, v10")
    a("v_xor_b32 v11, v11, v4")
    a("v_lshlrev_b32 v11, 4, v11")
    a("v_add_u32 v21, v9, v11")
    a("s_lshl_b32 s43, s34, 12")
    a("s_mov_b32 s42, 0")
    a("s_mov_b32 s47, 0")
    if KROT3:
        a("s_mul_i32 s38, s32, 9")
        a("s_lshr_b32 s38, s38, 1")
        a(f"s_mul_i32 s42, s38, {64*4096}")
        a(f"s_mul_i32 s47, s38, {8*9216}")
    a("s_cmp_lt_u32 s34, 2")
    a("s_cbranch_scc1 L_g2_v1")
    a("s_branch L_g2_v2")
    for var in (1, 2):
        a.label(f"L_g2_v{var}")
        n = 5 if var == 1 else 4
        for i in range(n):
            if var == 1:
                a("s_mul_i32 s38, s34, 320")
                a(f"s_add_u32 s38, s38, {64*i}")
            else:
                a("s_lshl_b32 s38, s34, 8")
                a(f"s_add_u32 s38, s38, {640 - 512 + 64*i}")
            a("v_add_u32 v9, s38, v2")
            a("v_mul_u32_u24 v10, 3641, v9")
            a("v_lshrrev_b32 v10, 19, v10")
            a("v_mul_u32_u24 v11, 144, v10")
            a("v_sub_u32 v11, v9, v11")
            a("v_mul_u32_u24 v10, 9216, v10")
            a("v_lshlrev_b32 v11, 4, v11")
            a("v_add_u32 v10, v10, v11")
            a(f"s_mul_i32 s38, s30, {144*9216}")
            a("s_mul_i32 s39, s32, 2304")
            a("s_add_u32 s38, s38, s39")
            if i & 3:
                a(f"s_sub_u32 s38, s38, {1024*(i&3)}")
            a(f"v_add_u32 v{22+i}, s38, v10")
        if var == 1:
            a("s_mul_i32 s46, s34, 5120")
            a("s_add_u32 s46, s46, 16384")
        else:
            a("s_lshl_b32 s46, s34, 12")
            a(f"s_add_u32 s46, s46, {16384 + 10240 - 8192}")
        def dma_w(wr):
            out = [f"s_add_u32 m0, s{wr}, s43"]
            for i in range(4):
                out.append(f"s_add_u32 s44, s42, {i*(4*4096-1024)}")
                out.append(f"buffer_load_dwordx4 v{20 + (i>>1)}, s[12:15], s44 offen offset:{1024*i} lds")
            out.append(f"s_add_u32 s42, s42, {64*4096}")
            out += [f"s_cmp_eq_u32 s42, {NS*64*4096}", "s_cselect_b32 s42, 0, s42"]
            return out
        def dma_u(wr, n=n):
            out = [f"s_add_u32 m0, s{wr}, s46", "s_nop 0"]
            for i in range(n):
                if i == 4:
                    out.append("s_add_u32 m0, m0, 4096")
                    out.append("s_nop 0")
                out.append(f"buffer_load_dwordx4 v{22+i}, s[16:19], s47 offen offset:{1024*(i&3)} lds")
            out.append(f"s_add_u32 s47, s47, {8*9216}")
            out += [f"s_cmp_eq_u32 s47, {NS*8*9216}", "s_cselect_b32 s47, 0, s47"]
            return out
        def dma(wr): return dma_w(wr) + dma_u(wr)
        def mid(var=var):
            if var == 2:
                a("s_cmp_lg_u32 s33, 7")
                a("s_cbranch_scc1 L_c2_go")
                for i in range(3): a(f"v_mov_b32 v{252+i}, 0")
                a("v_cmp_le_u32 vcc, 24, v2")
                a("s_nop 1")
                a("v_cndmask_b32 v255, 0, 1, vcc")
                poll_flags(a, "u", 56, 32768, None, nld=[0, 1, 2, 3])
                a.label("L_c2_go")
            a("s_barrier")
        ring_loader(a, f"g2v{var}", R, NS, SZ, 4 + n, dma, done="L_phC_done", split=(dma_w, dma_u, 4, n, mid))
    a.label("L_g2_compute")
    VW = [100, 101]; VU = 102; VWc = [103, 104]; VUc = 105
    a("v_and_b32 v7, 1, v3")
    a("v_lshlrev_b32 v7, 2, v7")
    a("v_or_b32 v7, v7, v5")
    a("v_lshlrev_b32 v8, 3, v3")
    a("v_add_u32 v8, v8, v5")
    a("v_lshlrev_b32 v8, 8, v8")
    a("v_lshlrev_b32 v9, 3, v6")
    a("v_add_u32 v8, v8, v9")
    a("s_lshl_b32 s38, s34, 1")
    for sbk in range(2):
        a(f"s_add_u32 s39, s38, {sbk}")
        a(f"v_xor_b32 v9, s39, v7")
        a(f"v_lshlrev_b32 v9, 5, v9")
        a(f"v_add_u32 v{VW[sbk]}, v8, v9")
    a("v_mul_u32_u24 v9, 144, v3")
    a("v_add_u32 v9, v9, v4")
    a("v_lshlrev_b32 v9, 4, v9")
    a(f"v_add_u32 v{VU}, 16384, v9")
    ACC = 16
    for i in range(72):
        a(f"v_mov_b32 v{ACC+i}, 0")
    FR = [112, 156]
    def acc(dbk, sbk):
        b = ACC + (dbk * 2 + sbk) * 4
        return f"v[{b}:{b+3}]"
    def mfmas(st):
        out = []
        for dbk in range(9):
            for sbk in range(2):
                w = FR[st] + 4 * sbk; u = FR[st] + 8 + 4 * dbk
                out.append(f"v_mfma_f32_16x16x32_bf16 {acc(dbk,sbk)}, v[{u}:{u+3}], v[{w}:{w+3}], {acc(dbk,sbk)}")
        return out
    def reads(st, sub):
        out = []
        for sbk in range(2):
            w = FR[st] + 4 * sbk
            out.append(f"ds_read_b64_tr_b16 v[{w}:{w+1}], v{VWc[sbk]} offset:{sub*8192}")
            out.append(f"ds_read_b64_tr_b16 v[{w+2}:{w+3}], v{VWc[sbk]} offset:{sub*8192+1024}")
        for dbk in range(9):
            u = FR[st] + 8 + 4 * dbk
            out.append(f"ds_read_b128 v[{u}:{u+3}], v{VUc} offset:{sub*9216+256*dbk}")
        return out
    def addr_upd(sreg):
        out = [f"v_add_u32 v{VWc[k]}, s{sreg}, v{VW[k]}" for k in range(2)]
        out.append(f"v_add_u32 v{VUc}, s{sreg}, v{VU}")
        return out
    ring_compute(a, "g2", R, NS, SZ, mfmas, reads, addr_upd, mid=True)
    a("s_lshl_b32 s38, s30, 11")
    a("s_lshl_b32 s39, s31, 7")
    a("s_add_u32 s38, s38, s39")
    a("s_lshl_b32 s39, s34, 5")
    a("s_add_u32 s38, s38, s39")
    a("v_add_u32 v12, s38, v4")
    a("s_mov_b32 s39, 2304")
    a("v_mul_lo_u32 v12, v12, s39")
    a("s_mul_i32 s38, s32, 576")
    a("v_add_u32 v12, s38, v12")
    a("v_lshlrev_b32 v13, 4, v3")
    a("v_add_u32 v12, v12, v13")
    a(f"s_mov_b32 s39, {16*2304}")
    a("s_nop 3")
    for dbk in range(9):
        for sbk in range(2):
            b = ACC + (dbk * 2 + sbk) * 4
            so = "s39" if sbk else "0"
            a(f"buffer_store_dwordx4 v[{b}:{b+3}], v12, s[20:23], {so} offen offset:{64*dbk} sc0 sc1")

def phase_d(a):
    RA = 0; RB = 20736; RY = 41472; QS = 5184; QS3 = 4672
    a("s_mov_b32 s40, s33")
    a("s_load_dwordx2 s[4:5], s[0:1], 0")
    a("s_load_dwordx2 s[6:7], s[0:1], 56")
    a("s_load_dwordx2 s[10:11], s[0:1], 64")
    srd(a, 36, 8, ZT_OFF, ZT_SZ)
    srd(a, 20, 8, PART_OFF, PART_SZ)
    a("v_mul_u32_u24 v3, 911, v0")
    a("v_lshrrev_b32 v3, 16, v3")
    a("v_mul_u32_u24 v4, 72, v3")
    a("v_sub_u32 v4, v0, v4")
    a("v_lshrrev_b32 v5, 3, v4")
    a("v_and_b32 v6, 7, v4")
    a(f"v_mul_u32_u24 v7, {QS}, v3")
    a("v_mul_u32_u24 v8, 576, v5")
    a("v_add_u32 v7, v7, v8")
    a("s_cmp_lg_u32 s33, 7")
    a("s_cbranch_scc1 L_d_go")
    a("v_add_u32 v255, 192, v2")
    a("v_subrev_u32 v255, 216, v255")
    a("v_cmp_lt_u32 vcc, 36, v255")
    a("s_nop 1")
    a("v_cndmask_b32 v255, 0, 1, vcc")
    poll_flags(a, "z", 56, 32768, None, nld=[3])
    a.label("L_d_go")
    a("s_barrier")
    a("s_lshr_b32 s42, s2, 1")
    a(f"s_mul_i32 s42, s42, {ZBLK}")
    a("s_and_b32 s43, s2, 1")
    a("s_lshl_b32 s43, s43, 6")
    a("s_add_u32 s42, s42, s43")
    for rnd in range(3):
        a(f"v_add_u32 v10, {512*rnd}, v0")
        a("v_lshrrev_b32 v11, 2, v10")
        a("v_lshlrev_b32 v11, 7, v11")
        a("v_and_b32 v12, 3, v10")
        a("v_lshlrev_b32 v12, 4, v12")
        a("v_add_u32 v13, v11, v12")
        a(f"buffer_load_dwordx4 v[{100+4*rnd}:{103+4*rnd}], v13, s[36:39], s42 offen")
    a("v_cvt_f32_u32 v60, v6")
    for c in range(1, 8):
        a(f"v_mul_f32 v61, {fl(c/64.0)}, v60")
        a(f"v_cos_f32 v{80+2*c}, v61")
        a(f"v_sin_f32 v{81+2*c}, v61")
    a("s_waitcnt vmcnt(0) lgkmcnt(0)")
    srd(a, 12, 4, 0, S * D * 2)
    srd(a, 16, 6, 0, S * 2)
    srd(a, 24, 10, 0, S * D * 2)
    for rnd in range(3):
        b = 100 + 4 * rnd
        a(f"v_add_u32 v10, {512*rnd}, v0")
        if rnd == 2:
            a("v_cmp_gt_u32 vcc, 1156, v10")
            a("s_and_saveexec_b64 s[30:31], vcc")
        a("v_lshrrev_b32 v11, 2, v10")
        a("v_and_b32 v12, 3, v10")
        a(f"v_mul_u32_u24 v13, {QS3}, v12")
        a("v_cmp_eq_u32 vcc, 0, v11")
        a("v_mov_b32 v17, 288")
        a("v_cmp_eq_u32 s[28:29], v17, v11")
        a("s_or_b64 vcc, vcc, s[28:29]")
        a("v_sub_u32 v14, 576, v11")
        a("v_lshlrev_b32 v18, 3, v11")
        a("v_cndmask_b32_e64 v%d, v%d, 0, vcc" % (b+1, b+1))
        a("v_cndmask_b32_e64 v%d, v%d, 0, vcc" % (b+3, b+3))
        a("v_add_u32 v18, v18, v13")
        a("v_lshlrev_b32 v14, 3, v14")
        a("v_add_u32 v14, v14, v13")
        a(f"v_sub_f32 v20, v{b}, v{b+3}")
        a(f"v_add_f32 v21, v{b+1}, v{b+2}")
        a(f"v_add_f32 v22, v{b}, v{b+3}")
        a(f"v_sub_f32 v23, v{b+2}, v{b+1}")
        a(f"ds_write_b64 v18, v[20:21] offset:{RA}")
        a(f"ds_write_b64 v14, v[22:23] offset:{RA}")
    a("s_mov_b64 exec, s[30:31]")
    a("s_waitcnt lgkmcnt(0)")
    a("s_barrier")
    rstamp(a, 5)
    a("s_cmp_ge_u32 s33, 5")
    a("s_cbranch_scc1 L_d_red")
    a("v_cmp_gt_u32 vcc, 288, v0")
    a("s_and_saveexec_b64 s[30:31], vcc")
    a(f"v_mul_u32_u24 v22, {QS3}, v3")
    a("v_mul_u32_u24 v23, 9, v6")
    a("v_add_u32 v23, v23, v5")
    a("v_lshlrev_b32 v23, 3, v23")
    a("v_add_u32 v22, v22, v23")
    for e in range(8):
        a(f"ds_read_b64 v[{30+2*e}:{31+2*e}], v22 offset:{RA + 576*e}")
    a("v_lshlrev_b32 v20, 3, v6")
    a("v_add_u32 v20, v7, v20")
    a("v_mul_u32_u24 v21, 72, v6")
    a("v_add_u32 v21, v7, v21")
    a("s_waitcnt lgkmcnt(0)")
    pool = P2(200, 244); g = FG(a, pool)
    ys = g.dft([((30+2*b, 1), (31+2*b, 1)) for b in range(8)], 1)
    for aa in range(8):
        d = 60 + 2 * aa
        if aa == 0:
            g.mov(ys[0][0], d); g.mov(ys[0][1], d + 1); g.frc(ys[0])
        else:
            g.cmul(ys[aa], 80 + 2*aa, 81 + 2*aa, dst=d)
    for aa in range(8):
        d = 60 + 2 * aa
        a(f"ds_write_b64 v20, v[{d}:{d+1}] offset:{RB + 72*aa}")
    a("s_waitcnt lgkmcnt(0)")
    a("s_barrier")
    for c in range(8):
        a(f"ds_read_b64 v[{30+2*c}:{31+2*c}], v21 offset:{RB + 8*c}")
    a("s_waitcnt lgkmcnt(0)")
    pool = P2(200, 244); g = FG(a, pool)
    g.dft([((30+2*b, 1), (31+2*b, 1)) for b in range(8)], 1, [60 + 2*b for b in range(8)])
    for b in range(8):
        d = 60 + 2 * b
        a(f"ds_write_b64 v20, v[{d}:{d+1}] offset:{RA + 64*b}")
    a("s_mov_b64 exec, s[30:31]")
    a("v_cvt_f32_u32 v60, v2")
    for k1 in range(1, 9):
        a(f"v_mul_f32 v61, {fl(k1/576.0)}, v60")
        a(f"v_cos_f32 v{80+2*k1}, v61")
        a(f"v_sin_f32 v{81+2*k1}, v61")
    a("s_waitcnt lgkmcnt(0)")
    a("s_barrier")
    a("s_cmp_ge_u32 s40, 4")
    a("s_cbranch_scc1 L_d_skip1")
    a(f"s_mul_i32 s43, s40, {QS}")
    a("v_lshlrev_b32 v10, 3, v2")
    a("v_add_u32 v10, s43, v10")
    for k1 in range(9):
        a(f"ds_read_b64 v[{30+2*k1}:{31+2*k1}], v10 offset:{RA + 576*k1}")
    a("s_waitcnt lgkmcnt(0)")
    pool = P2(200, 244); g = FG(a, pool)
    xs = []
    for k1 in range(9):
        x = ((30+2*k1, 1), (31+2*k1, 1))
        xs.append(x if k1 == 0 else g.cmul(x, 80 + 2*k1, 81 + 2*k1))
    g.dft(xs, 1, [60 + 2*n for n in range(9)])
    sc = fl(1.0 / (2.0 * 2048 * 576))
    for n in range(9):
        a(f"v_mul_f32 v{60+2*n}, {sc}, v{60+2*n}")
        a(f"v_mul_f32 v{61+2*n}, {sc}, v{61+2*n}")
        round_bf16_pair(a, 60 + 2*n, 61 + 2*n, 17 + (n & 1))
    a("s_mul_i32 s43, s40, 4608")
    a("v_lshlrev_b32 v10, 2, v2")
    a("v_add_u32 v10, s43, v10")
    for n in range(9):
        a(f"ds_write_b32 v10, v{60+2*n} offset:{RB + 256*n}")
        a(f"ds_write_b32 v10, v{61+2*n} offset:{RB + 2304 + 256*n}")
    a.label("L_d_skip1")
    a("s_waitcnt lgkmcnt(0)")
    a("s_barrier")
    a("s_branch L_k2_end")
    a.label("L_d_red")
    a("s_cmp_lg_u32 s33, 7")
    a("s_cbranch_scc1 L_d_red2")
    a("s_lshl_b32 s51, s2, 7")
    a("s_add_u32 s51, s51, 65536")
    a("v_mov_b32 v244, 1")
    a("v_mov_b32 v245, 0")
    a("s_mov_b64 s[30:31], exec")
    a("s_mov_b64 exec, 1")
    a("buffer_store_dword v244, v245, s[56:59], s51 offen sc0 sc1")
    a("s_mov_b64 exec, s[30:31]")
    a.label("L_d_red2")
    a("s_lshr_b32 s52, s2, 4")
    a("v_lshrrev_b32 v240, 2, v2")
    a("v_lshlrev_b32 v240, 1, v240")
    a("s_lshr_b32 s53, s52, 3")
    a("v_add_u32 v240, s53, v240")
    a("s_and_b32 s53, s52, 7")
    a("s_lshl_b32 s53, s53, 2")
    a("v_and_b32 v241, 3, v2")
    a("v_add_u32 v241, s53, v241")
    a("v_lshlrev_b32 v241, 3, v241")
    a("v_add_u32 v240, v240, v241")
    a("v_lshlrev_b32 v240, 7, v240")
    a("v_cmp_le_u32 vcc, 16, v2")
    a("s_nop 1")
    a("v_cndmask_b32 v242, 0, 1, vcc")
    a("v_subrev_u32 v1, 320, v0")
    a(f"s_mul_i32 s32, s2, {4608*4}")
    a(f"s_mul_i32 s34, s2, {4608*2}")
    a("v_lshlrev_b32 v15, 4, v1")
    a("v_lshlrev_b32 v9, 3, v1")
    for m in range(6):
        a(f"s_add_u32 s35, s34, {m*1536}")
        a(f"buffer_load_dwordx2 v[{20+2*m}:{21+2*m}], v9, s[12:15], s35 offen")
        a(f"v_add_u32 v10, {192*m}, v1")
        a("v_mul_u32_u24 v10, 3641, v10")
        a("v_lshrrev_b32 v10, 19, v10")
        a("v_lshlrev_b32 v10, 1, v10")
        a("s_lshl_b32 s35, s2, 4")
        a(f"buffer_load_ushort v{32+m}, v10, s[16:19], s35 offen")
    a("s_barrier")
    a("s_barrier")
    a("s_mov_b32 s50, 400000")
    a("s_mov_b32 s51, 65536")
    a.label("L_poll_d")
    a("buffer_load_dword v243, v240, s[56:59], s51 offen sc0 sc1")
    a("s_waitcnt vmcnt(0)")
    a("v_or_b32 v243, v243, v242")
    a("v_cmp_eq_u32 vcc, 0, v243")
    a("s_sub_u32 s50, s50, 1")
    a("s_cmp_eq_u32 s50, 0")
    a("s_cbranch_scc1 L_pollx_d")
    a("s_cmp_eq_u64 vcc, 0")
    a("s_cbranch_scc1 L_pollx_d")
    a(f"s_sleep {SLEEPN}")
    a("s_branch L_poll_d")
    a.label("L_pollx_d")
    PB = 100
    for m in range(6):
        for ks in range(4):
            a(f"s_add_u32 s35, s32, {ks*2048*2304 + m*3072}")
            a(f"buffer_load_dwordx4 v[{PB+16*m+4*ks}:{PB+3+16*m+4*ks}], v15, s[20:23], s35 offen")
    a("s_waitcnt vmcnt(0)")
    for m in range(6):
        b = PB + 16 * m
        for r in range(4):
            a(f"v_add_f32 v{b+r}, v{b+r}, v{b+4+r}")
            a(f"v_add_f32 v{b+8+r}, v{b+8+r}, v{b+12+r}")
            a(f"v_add_f32 v{b+r}, v{b+r}, v{b+8+r}")
        a(f"v_lshlrev_b32 v{32+m}, 16, v{32+m}")
        round_bf16_pair(a, b, b + 1, 4)
        round_bf16_pair(a, b + 2, b + 3, 5)
        for r in range(4):
            a(f"v_add_f32 v{b+r}, v{b+r}, v{32+m}")
        round_bf16_pair(a, b, b + 1, 4)
        round_bf16_pair(a, b + 2, b + 3, 5)
        a(f"v_lshlrev_b32 v{b+4}, 16, v{20+2*m}")
        a(f"v_and_b32 v{b+5}, 0xffff0000, v{20+2*m}")
        a(f"v_lshlrev_b32 v{b+6}, 16, v{21+2*m}")
        a(f"v_and_b32 v{b+7}, 0xffff0000, v{21+2*m}")
    a("s_barrier")
    for m in range(6):
        a(f"ds_read_b128 v[{40+4*m}:{43+4*m}], v15 offset:{RB + 3072*m}")
    a("s_waitcnt lgkmcnt(0)")
    rstamp(a, 6)
    for m in range(6):
        b = PB + 16 * m
        for r in range(4):
            a(f"v_add_f32 v{b+4+r}, v{b+4+r}, v{40+4*m+r}")
        round_bf16_pair(a, b + 4, b + 5, 4)
        round_bf16_pair(a, b + 6, b + 7, 5)
        for r in range(4):
            a(f"v_add_f32 v{b+r}, v{b+r}, v{b+4+r}")
        a(f"v_cvt_pk_bf16_f32 v{b+8}, v{b}, v{b+1}")
        a(f"v_cvt_pk_bf16_f32 v{b+9}, v{b+2}, v{b+3}")
        a(f"s_add_u32 s35, s34, {m*1536}")
        a(f"buffer_store_dwordx2 v[{b+8}:{b+9}], v9, s[24:27], s35 offen")

KNAME = "parallel_sum__spectral_gfnet__mixer_token_mlp__prompt_kernel"
def gen_k2(a):
    name = KNAME
    kernel_begin(a, name)
    rstamp(a, 0)
    a("s_cmp_ge_u32 s2, 256")
    a("s_cbranch_scc1 L_k2_end")
    a("s_load_dwordx2 s[8:9], s[0:1], 80")
    a("v_lshrrev_b32 v1, 6, v0")
    a("v_and_b32 v2, 63, v0")
    a("s_nop 0")
    a("v_readfirstlane_b32 s33, v1")
    a("s_waitcnt lgkmcnt(0)")
    srd(a, 56, 8, FL_OFF, FL_SZ)
    phase_a(a)
    a.label("L_phA_done")
    a("s_waitcnt vmcnt(0)")
    a.label("L_phA_done2")
    a("s_load_dwordx2 s[4:5], s[0:1], 32")
    a("s_load_dwordx2 s[6:7], s[0:1], 40")
    a("s_load_dwordx2 s[42:43], s[0:1], 72")
    set_flag(a, 56, 0, novm=True)
    rstamp(a, 1)
    a("s_cmp_lt_u32 s2, 253")
    a("s_cbranch_scc1 L_b_busy")
    sync_a(a, "i")
    a("s_branch L_phB_done")
    a.label("L_b_busy")
    a("s_cmp_ge_u32 s2, 216")
    a("s_cbranch_scc1 L_k2_fft")
    gen_gemm1(a)
    a.label("L_k2_fft")
    gen_colfft(a)
    a.label("L_phB_done")
    a("s_waitcnt vmcnt(0)")
    a.label("L_phB_done2")
    rstamp(a, 3)
    a("s_load_dwordx2 s[4:5], s[0:1], 48")
    set_flag(a, 56, 32768, novm=True)
    phase_c2(a)
    a.label("L_phC_done")
    rstamp(a, 4)
    phase_d(a)
    rstamp(a, 7)
    if "stamp" in DBG:
        a("s_waitcnt vmcnt(0) lgkmcnt(0)")
        a("s_cmp_lg_u32 s40, 7")
        a("s_cbranch_scc1 L_k2_end")
        a("s_mov_b64 exec, 1")
        stamp_flush(a, 8, 8, 0)
    a.label("L_k2_end")
    a("s_endpgm")
    return name, 256

def main(out):
    a = Asm()
    hdr = open("parallel_sum__spectral_gfnet__mixer_token_mlp__prompt.s.ref").read().split("\n")
    for l in hdr:
        if l.startswith("; @launch"):
            break
        a.raw(l)
    a.raw("; @launch grid=(256,1,1) block=(512,1,1) lds=156672")
    a.raw('.amdgcn_target "amdgcn-amd-amdhsa--gfx950"')
    a.raw(".text")
    ks = [gen_k2(a)]
    a.raw('.section .rodata,"a"')
    for n, v in ks:
        kd(a, n, v)
    open(out, "w").write(a.text())

if __name__ == "__main__":
    for x in sys.argv[2:]: DBG.add(x)
    main(sys.argv[1] if len(sys.argv) > 1 else "parallel_sum__spectral_gfnet__mixer_token_mlp__prompt.s")
```
